```python
import torch

def _softmax(x, axis=-1):
    return torch.softmax(x, dim=axis)
def _gelu(x):
    return torch.nn.functional.gelu(x, approximate="tanh")
def _silu(x):
    return torch.nn.functional.silu(x)
def _sigmoid(x):
    return torch.sigmoid(x)
def _layernorm(x, axis=-1, eps=1e-5):
    m = x.mean(dim=axis, keepdim=True)
    v = x.var(dim=axis, keepdim=True, unbiased=False)
    return (x - m) / torch.sqrt(v + eps)
def _scatter_add(tgt, idx, src, axis=0):
    return tgt.clone().index_add_(axis, idx, src)
def _segment_sum(src, seg, n):
    out = torch.zeros((n,) + src.shape[1:], dtype=src.dtype)
    return out.index_add_(0, seg, src)
def _pad(x, pw):
    flat = tuple(v for pair in reversed(pw) for v in pair)
    return torch.nn.functional.pad(x, flat)

kernel_name = 'standalone__deep_cross_xdeepfm__recsys'

def setup_inputs():

    _w = (lambda a: (lambda t: t.to(torch.bfloat16) if t.is_floating_point() else t)(torch.as_tensor(a)))
    B, F, D, L = 16384, 26, 16, 3
    V = min(1000, 100000)
    Din = F * D
    return {
        "idx": _w((lambda lo, hi, *s: torch.randint(lo, hi, s))(0, V, B, F).to(torch.int64)),
        "table": _w((lambda *s: torch.randn(*s, dtype=torch.bfloat16) * 0.8)(V, D)),
        "ws_cin": _w((lambda *s: torch.randn(*s, dtype=torch.bfloat16) * 0.2)(L, F, F, F) * (1.0 / F)),
        "w_cin_out": _w((lambda *s: torch.randn(*s, dtype=torch.bfloat16) * 0.2)(L * F) * ((L * F) ** -0.5)),
        "w_dnn1": _w((lambda *s: torch.randn(*s, dtype=torch.bfloat16) * 0.8)(Din, Din) * (Din ** -0.5)),
        "b_dnn1": _w((lambda *s: torch.randn(*s, dtype=torch.bfloat16) * 3.2)(Din) * 0.1),
        "w_dnn2": _w((lambda *s: torch.randn(*s, dtype=torch.bfloat16) * 0.2)(Din) * (Din ** -0.5)),
        "b_out": _w((lambda *s: torch.randn(*s, dtype=torch.bfloat16) * 0.2)(1)),
    }

def reference(idx, table, ws_cin, w_cin_out, w_dnn1, b_dnn1, w_dnn2, b_out):
    x0 = table[idx]
    B = x0.shape[0]
    L = ws_cin.shape[0]
    xk = x0
    pooled = []
    for l in range(L):
        xk = torch.einsum('bid,bjd,hij->bhd', xk, x0, ws_cin[l])
        pooled.append(xk.sum(axis=-1))
    p_plus = torch.stack(pooled, axis=1).reshape(B, -1)
    logit_cin = p_plus @ w_cin_out
    h = x0.reshape(B, -1)
    h = _gelu(h @ w_dnn1 + b_dnn1)
    logit_dnn = h @ w_dnn2
    return logit_cin + logit_dnn + b_out
```

```python
import re, copy

def _regs(tok):
    tok = tok.strip()
    tok = re.sub(r'^-', '', tok)
    m = re.fullmatch(r'abs\((.*)\)', tok) or re.fullmatch(r'\|(.*)\|', tok)
    if m: tok = m.group(1)
    m = re.fullmatch(r'([vs])(\d+)', tok)
    if m: return [(m.group(1), int(m.group(2)))]
    m = re.fullmatch(r'([vs])\[(\d+):(\d+)\]', tok)
    if m: return [(m.group(1), i) for i in range(int(m.group(2)), int(m.group(3)) + 1)]
    if tok == 'vcc': return [('s', 106), ('s', 107)]
    if tok == 'm0': return [('s', 124)]
    if tok == 'exec': return [('s', 126), ('s', 127)]
    return []

def V(n, w=1): return f"v{n}" if w == 1 else f"v[{n}:{n+w-1}]"
def S(n, w=1): return f"s{n}" if w == 1 else f"s[{n}:{n+w-1}]"

TRANS = ('v_exp_f32', 'v_log_f32', 'v_rcp_f32', 'v_rsq_f32', 'v_sqrt_f32', 'v_sin_f32', 'v_cos_f32', 'v_rcp_f16', 'v_exp_f16')

class Ins:
    __slots__ = ('text', 'cls', 'op', 'rd', 'wr', 'passes', 'srcc', 'ab', 'states', 'flags', 'data')
    def __init__(s, text, cls, op='', rd=(), wr=(), passes=0, srcc=(), ab=(), states=1, flags=(), data=()):
        s.text, s.cls, s.op, s.rd, s.wr, s.passes, s.srcc, s.ab, s.states, s.flags, s.data = text, cls, op, set(rd), set(wr), passes, set(srcc), set(ab), states, set(flags), set(data)

class Tok:
    def __init__(s, kind, dst, cond=False, smem=False): s.kind, s.dst, s.cond, s.smem = kind, set(dst), cond, smem

class Stream:
    def __init__(s):
        s.out = []
        s.vm = []
        s.lg = []
        s.cond = False
        s.nops = 0
        s.hist_start = 0
    def fork(s):
        n = Stream()
        n.vm = list(s.vm); n.lg = list(s.lg)
        n.out = [copy.copy(i) for i in s.out[-24:]]
        for i in n.out: i.text = None
        return n
    def _need(s, c):
        need = 0; dist = 0
        for p in reversed(s.out[-40:]):
            if p.cls == 'label' or p.cls == 'dir': continue
            req = s._req(p, c)
            if req > dist: need = max(need, req - dist)
            dist += p.states
            if dist >= 20: break
        return need
    @staticmethod
    def _req(p, c):
        r = 0
        cv = c.cls == 'valu'
        touch = c.rd | c.wr
        if p.cls == 'valu':
            wv = {x for x in p.wr if x[0] == 'v'}; ws = {x for x in p.wr if x[0] == 's'}
            if c.cls == 'mfma' and wv & c.rd: r = max(r, 2)
            if cv:
                if p.op in TRANS and wv & c.rd: r = max(r, 1)
                if c.op.startswith(('v_readlane', 'v_readfirstlane')) and wv & c.rd: r = max(r, 1)
                if c.op.startswith('v_permlane') and wv & c.rd: r = max(r, 2)
                if 'dpp' in c.flags and wv & c.rd: r = max(r, 2)
                if ws & c.rd: r = max(r, 4 if c.op.startswith(('v_readlane', 'v_writelane')) else 2)
                if 'dstsel' in p.flags and wv & touch: r = max(r, 1)
            if c.cls in ('vmem',) and ws & c.rd: r = max(r, 5)
            if p.op.startswith('v_dot') and wv & touch:
                if not (c.op == p.op and not (wv & c.ab)): r = max(r, 3)
            if p.op in TRANS and c.cls in ('vmem', 'ds') and wv & c.rd: r = max(r, 1)
        if p.cls == 'mfma':
            big = p.passes == 8
            if c.cls == 'mfma':
                if p.wr & c.ab: r = max(r, 12 if big else 8)
                if p.wr & c.srcc and not (p.wr == c.srcc and p.passes == c.passes): r = max(r, 10 if big else 6)
                if p.wr & c.wr and not (p.wr == c.srcc and p.passes == c.passes): r = max(r, 10 if big else 6)
            elif c.cls in ('valu', 'vmem', 'ds'):
                if p.wr & touch: r = max(r, 12 if big else 8)
                if p.srcc & c.wr: r = max(r, 7 if big else 3)
        if p.cls == 'salu' and ('s', 124) in p.wr and 'lds_dma' in c.flags: r = max(r, 1)
        if p.cls in ('vmem', 'ds') and len(p.data) >= 3 and p.data & c.wr: r = max(r, 2)
        return r
    def _count_after(s, q, tok):
        i = q.index(tok)
        return sum(1 for t in q[i + 1:] if not t.cond)
    def wait(s, *toks):
        vmn = None; lgn = None
        for t in toks:
            if t is None: continue
            if t.kind == 'vm' and t in s.vm:
                n = s._count_after(s.vm, t); vmn = n if vmn is None else min(vmn, n)
            if t.kind == 'lg' and t in s.lg:
                n = 0 if any(x.smem for x in s.lg) else s._count_after(s.lg, t)
                lgn = n if lgn is None else min(lgn, n)
        s.waitcnt(vmn, lgn, toks)
    def waitcnt(s, vm=None, lg=None, toks=()):
        parts = []
        if vm is not None:
            vm = min(vm, 63); parts.append(f"vmcnt({vm})")
            keep = s.vm[len(s.vm) - vm:] if vm > 0 else []
            k = []; n = 0
            for t in reversed(s.vm):
                if n >= vm: break
                k.append(t)
                if not t.cond: n += 1
            s.vm = list(reversed(k))
        if lg is not None:
            lg = min(lg, 15); parts.append(f"lgkmcnt({lg})")
            k = []; n = 0
            for t in reversed(s.lg):
                if n >= lg: break
                k.append(t)
                if not t.cond: n += 1
            s.lg = list(reversed(k))
        if parts: s.out.append(Ins("s_waitcnt " + " ".join(parts), 'wait'))
    def _auto(s, c, partial=()):
        touch = (c.rd | c.wr)
        toks = [t for t in s.vm + s.lg if t.dst & touch and not (t.kind == 'lg' and c.cls == 'ds' and not t.smem and not (t.dst & c.rd - set(partial)))]
        if toks: s.wait(*toks)
    def emit(s, c, partial=()):
        s._auto(c, partial)
        n = s._need(c)
        while n > 0:
            k = min(n, 16); s.out.append(Ins(f"s_nop {k-1}", 'nop', states=k)); s.nops += k; n -= k
        s.out.append(c)
        return c
    def label(s, name): s.out.append(Ins(f"{name}:", 'label'))
    def dir(s, text): s.out.append(Ins(text, 'dir'))
    def cmt(s, text): s.out.append(Ins("; " + text, 'dir'))
    def raw(s, text, cls='misc'): return s.emit(Ins(text, cls))
    def v(s, op, dst, *src, mods=""):
        rd = [r for x in src for r in _regs(str(x))]; wr = _regs(dst); fl = []
        base = op.replace('_e32', '').replace('_e64', '')
        if base.startswith(('v_fmac', 'v_fma_mixlo', 'v_fma_mixhi', 'v_dot2c', 'v_writelane')) or 'UNUSED_PRESERVE' in mods: rd += wr
        if base.startswith('v_permlane') and 'swap' in base: wr = wr + _regs(src[0]); rd += _regs(dst)
        if base.startswith('v_fma_mixhi') or 'dst_sel:WORD' in mods or 'dst_sel:BYTE' in mods: fl.append('dstsel')
        if any(k in mods for k in ('row_', 'quad_perm', 'wave_')): fl.append('dpp'); rd += wr
        if base.startswith('v_cndmask') and len(src) == 2: rd += _regs('vcc')
        ab = [r for x in src[:2] for r in _regs(str(x))]
        t = f"{op} {dst}, " + ", ".join(str(x) for x in src) + (" " + mods if mods else "")
        return s.emit(Ins(t, 'valu', base, rd, wr, ab=ab, flags=fl))
    def s(s_, op, *a):
        nd = op.startswith(('s_cmp', 's_cbranch', 's_branch', 's_barrier', 's_setprio', 's_sleep', 's_endpgm', 's_nop', 's_bitcmp'))
        wr = [] if nd else _regs(str(a[0])); rd = [r for x in (a if nd else a[1:]) for r in _regs(str(x))]
        if 'saveexec' in op: wr += _regs('exec')
        return s_.emit(Ins(f"{op} " + ", ".join(str(x) for x in a), 'salu', op, rd, wr))
    def mfma(s, op, d, a, b, c):
        passes = 8 if '32x32' in op else 4
        ab = _regs(a) + _regs(b); cc = _regs(str(c))
        return s.emit(Ins(f"{op} {d}, {a}, {b}, {c}", 'mfma', op, ab + cc, _regs(d), passes, cc, ab))
    def sload(s, op, dst, base, off):
        s.emit(Ins(f"{op} {dst}, {base}, {off}", 'smem', op, _regs(base), _regs(dst)))
        t = Tok('lg', _regs(dst), s.cond, True); s.lg.append(t); return t
    def dsr(s, op, dst, addr, off=0):
        rd = _regs(addr); part = []
        if 'd16' in op: part = _regs(dst)
        s.emit(Ins(f"{op} {dst}, {addr}" + (f" offset:{off}" if off else ""), 'ds', op, rd, _regs(dst)), part)
        t = Tok('lg', _regs(dst), s.cond); s.lg.append(t); return t
    def dsw(s, op, addr, data, off=0):
        s.emit(Ins(f"{op} {addr}, {data}" + (f" offset:{off}" if off else ""), 'ds', op, _regs(addr) + _regs(data), [], data=_regs(data)))
        t = Tok('lg', [], s.cond); s.lg.append(t); return t
    def bload(s, op, dst, voff, srd, soff=0, off=0, mods=""):
        t = f"{op} {dst}, {voff}, {srd}, {soff} offen" + (f" offset:{off}" if off else "") + (" " + mods if mods else "")
        s.emit(Ins(t, 'vmem', op, _regs(voff) + _regs(srd) + _regs(str(soff)), _regs(dst)))
        k = Tok('vm', _regs(dst), s.cond); s.vm.append(k); return k
    def dma(s, voff, srd, soff=0, off=0, op="buffer_load_dwordx4"):
        t = f"{op} {voff}, {srd}, {soff} offen" + (f" offset:{off}" if off else "") + " lds"
        s.emit(Ins(t, 'vmem', op, _regs(voff) + _regs(srd) + _regs(str(soff)) + _regs('m0'), [], flags=['lds_dma']))
        k = Tok('vm', [], s.cond); s.vm.append(k); return k
    def bstore(s, op, data, voff, srd, soff=0, off=0, mods=""):
        t = f"{op} {data}, {voff}, {srd}, {soff} offen" + (f" offset:{off}" if off else "") + (" " + mods if mods else "")
        s.emit(Ins(t, 'vmem', op, _regs(voff) + _regs(srd) + _regs(str(soff)) + _regs(data), [], data=_regs(data)))
        k = Tok('vm', [], s.cond); s.vm.append(k); return k
    def gload(s, op, dst, voff, sbase, off=0, mods=""):
        t = f"{op} {dst}, {voff}, {sbase}" + (f" offset:{off}" if off else "") + (" " + mods if mods else "")
        s.emit(Ins(t, 'vmem', op, _regs(voff) + _regs(sbase), _regs(dst)))
        k = Tok('vm', _regs(dst), s.cond); s.vm.append(k); return k
    def gstore(s, op, voff, data, sbase, off=0, mods=""):
        t = f"{op} {voff}, {data}, {sbase}" + (f" offset:{off}" if off else "") + (" " + mods if mods else "")
        s.emit(Ins(t, 'vmem', op, _regs(voff) + _regs(sbase) + _regs(data), [], data=_regs(data)))
        k = Tok('vm', [], s.cond); s.vm.append(k); return k
    def text(s):
        L = []
        for i in s.out:
            if i.text is None: continue
            L.append(i.text if i.cls == 'label' else "  " + i.text)
        return "\n".join(L) + "\n"
    def stats(s):
        c = {}
        for i in s.out:
            if i.text is None: continue
            c[i.cls] = c.get(i.cls, 0) + 1
        return c
```

```python
def phi(hf, f):
    if hf == 0: return f
    return (f + 3) % 26 if f % 2 == 0 else (f + 1) % 26
quad = []
for r in range(13):
    for dl in range(1, 7):
        quad.append(('A', r, (r + dl) % 13))
for r in range(0, 13, 2): quad.append(('D', r))
for r in (1, 5, 9): quad.append(('E', r, r + 2))
assert len(quad) == 88
lin = [('L', r) for r in range(0, 13, 2)] + [('K',)]
assert len(lin) == 8
dwords = quad + lin
CONST = 26
def monos(ins, hf):
    lo = lambda r: phi(hf, 2 * r)
    hi = lambda r: phi(hf, 2 * r + 1)
    k = ins[0]
    if k == 'A': return (lo(ins[1]), lo(ins[2])), (lo(ins[1]), hi(ins[2]))
    if k == 'D': return (lo(ins[1]), lo(ins[1])), (lo(ins[1]), hi(ins[1]))
    if k == 'E': return (lo(ins[1]), lo(ins[1])), (lo(ins[2]), lo(ins[2]))
    if k == 'L': return (lo(ins[1]), CONST), (hi(ins[1]), CONST)
    if k == 'K': return (CONST, CONST), None
target = {}
dups = []
for hf in range(2):
    for di, ins in enumerate(dwords):
        for half, m in enumerate(monos(ins, hf)):
            if m is None: continue
            key = (min(m), max(m))
            if key in target: dups.append((key, hf, di, half))
            else: target[key] = (hf, di, half)
assert len(target) == 27 * 28 // 2, len(target)
if __name__ == "__main__":
    print(len(target), dups)
```

```python
import sys, struct
from asmlib import *
import slotmap as sm

NAME = "standalone__deep_cross_xdeepfm__recsys_kernel"
OPT = dict(stamps=False)
for a in sys.argv[2:]:
    k, v = a.split("="); OPT[k] = int(v)
STAMPS = OPT["stamps"]

X0 = 0
AIMG = 53248
FSTR = 1040
NS = 4
RING = AIMG + 46 * FSTR
MISC = RING + 4 * NS * 3072
CNT1, CNT2, CNT3 = MISC, MISC + 4, MISC + 8
RED = MISC + 64
RED2 = RED + 1024
DSC = RED2 + 1024
LDS_TOTAL = DSC + 4096
M3B = AIMG
AUX = AIMG + 2048
STG = AIMG + 4096
assert LDS_TOTAL <= 163840
def f32(x): return "0x%08x" % struct.unpack("<I", struct.pack("<f", x))[0]
K1 = -2.0 * 0.7978845608028654 * 1.4426950408889634
K2 = K1 * 0.044715

def rowpos(p): return p if p < 25 else 28
def frag_id(blk, ks): return ks if blk == 0 else 22 + ks

stamp_n = [0]
def stamp(st, idx):
    if STAMPS:
        st.raw(f"s_memtime s[{64+2*idx}:{65+2*idx}]", 'misc')
        st.lg.append(Tok('lg', [], True, True))
def dump_stamps(st, n, vt, va):
    if not STAMPS: return
    st.waitcnt(None, 0)
    st.s("s_lshl_b32", "s5", "s2", 3); st.s("s_add_u32", "s5", "s5", "s3"); st.s("s_lshl_b32", "s5", "s5", 6)
    st.s("s_add_u32", "s5", "s5", 0x100000)
    st.v("v_mov_b32", V(va), "s5")
    for i in range(n):
        st.v("v_mov_b32", V(vt), f"s{64+2*i}")
        st.gstore("global_store_dword", V(va), V(vt), "s[36:37]", off=4 * i)
    st.waitcnt(0, None)

def srd(st, r, base, size):
    st.s("s_mov_b64", S(r, 2), S(base, 2))
def srd_const(st, r, size):
    st.s("s_mov_b32", S(r + 2), size); st.s("s_mov_b32", S(r + 3), "0x20000")

def lds_signal(st, vaddr, vone, off):
    st.s("s_mov_b64", "exec", 1)
    st.dsw("ds_add_u32", V(vaddr), V(vone), off)
    st.s("s_mov_b64", "exec", -1)
def lds_wait(st, vaddr, vtmp, off, target, name):
    st.label(name)
    st.dsr("ds_read_b32", V(vtmp), V(vaddr), off)
    st.waitcnt(None, 0)
    st.v("v_readfirstlane_b32", "s5", V(vtmp))
    st.s("s_cmp_lt_u32", "s5", target)
    st.s("s_cbranch_scc1", name)

P = Stream()
P.s("s_cmp_ge_u32", "s2", 256)
P.s("s_cbranch_scc1", "L_end")
stamp(P, 0)
ka = P.sload("s_load_dwordx16", "s[16:31]", "s[0:1]", 0)
P.sload("s_load_dwordx4", "s[32:35]", "s[0:1]", 64)
P.sload("s_load_dwordx2", "s[36:37]", "s[0:1]", 80)
P.v("v_lshrrev_b32", "v2", 6, "v0")
P.v("v_and_b32", "v1", 63, "v0")
P.v("v_readfirstlane_b32", "s3", "v2")
P.s("s_lshr_b32", "s4", "s2", 3); P.s("s_lshl_b32", "s4", "s4", 1)
P.s("s_mul_i32", "s5", "s4", 79); P.s("s_lshr_b32", "s5", "s5", 10); P.s("s_mul_i32", "s5", "s5", 13); P.s("s_sub_u32", "s4", "s4", "s5")
P.s("s_cmp_ge_u32", "s3", 4)
P.s("s_cbranch_scc1", "L_D")
D = P.fork()
C = P

R_IDX, R_TAB, R_CIN, R_WS, R_OUT, R_DBG = 40, 44, 48, 52, 56, 60
srd_const(C, R_IDX, 16384 * 104); srd_const(C, R_TAB, 32000); srd_const(C, R_CIN, 105456)
srd_const(C, R_WS, 52 * 1024); srd_const(C, R_OUT, 32768); srd_const(C, R_DBG, 256)
C.s("s_lshr_b32", "s6", "s3", 1); C.s("s_and_b32", "s7", "s3", 1)
C.s("s_add_u32", "s8", "s4", "s7")
for m in range(7):
    if m: C.s("s_add_u32", S(8 + m), S(7 + m), 2)
    C.s("s_cmp_ge_u32", S(8 + m), 13); C.s("s_cselect_b32", "s5", 13, 0); C.s("s_sub_u32", S(8 + m), S(8 + m), "s5")
for m in range(7): C.s("s_lshl_b32", S(8 + m), S(8 + m), 3)
C.s("s_lshl_b32", "s5", "s2", 1); C.s("s_add_u32", "s5", "s5", "s6"); C.s("s_mul_i32", "s5", "s5", 32 * 104)
C.v("v_lshrrev_b32", "v3", 1, "v1"); C.v("v_mul_u32_u24", "v3", 104, "v3"); C.v("v_add_u32", "v3", "s5", "v3")
C.v("v_lshrrev_b32", "v4", 5, "v1"); C.v("v_xor_b32", "v4", "v4", "v1"); C.v("v_and_b32", "v4", 1, "v4"); C.v("v_lshlrev_b32", "v4", 4, "v4")
C.v("v_mov_b32", "v5", 0)
C.v("v_mov_b32", "v6", 1)
C.s("s_lshr_b32", "s5", "s2", 3); C.s("s_add_u32", "s5", "s5", "s3"); C.s("s_and_b32", "s5", "s5", 3); C.s("s_lshl_b32", "s15", "s5", 13)
C.v("v_lshlrev_b32", "v7", 7, "v1")
C.v("v_mov_b32", "v22", MISC)
C.wait(ka)
for r, b in ((R_IDX, 16), (R_TAB, 18), (R_CIN, 20), (R_WS, 36), (R_OUT, 32), (R_DBG, 34)): srd(C, r, b, 0)
idxt = []
for m in range(7):
    idxt.append(C.bload("buffer_load_dwordx2", V(8 + 2 * m, 2), "v3", S(R_IDX, 4), S(8 + m)))
C.bload("buffer_load_dword", "v23", "v7", S(R_TAB, 4), "s15")
C.v("v_mov_b32", "v24", 0); C.v("v_mov_b32", "v25", 0); C.v("v_mov_b32", "v26", 0); C.v("v_mov_b32", "v27", 0)
C.dsw("ds_write_b128", "v22", "v[24:27]")
stamp(C, 1)

W3R, NF, LUT, IDN, MF = 64, 116, 124, 140, 148
C.s("s_mov_b32", "s38", 0)
C.s("s_cmp_ge_u32", "s2", 14)
C.s("s_cbranch_scc1", "L_C_np1")
C.cond = True
C.s("s_cmp_ge_u32", "s2", 7)
C.s("s_cselect_b32", "s38", 2, 1)
C.s("s_cselect_b32", "s5", 7, 0)
C.s("s_sub_u32", "s39", "s2", "s5"); C.s("s_lshl_b32", "s39", "s39", 2); C.s("s_add_u32", "s39", "s39", "s3")
C.s("s_cmp_eq_u32", "s38", 2)
C.s("s_cbranch_scc1", "L_C_p1x")
C.sload("s_load_dwordx8", "s[80:87]", "s[22:23]", 104)
C.sload("s_load_dwordx4", "s[88:91]", "s[22:23]", 136)
C.sload("s_load_dword", "s92", "s[22:23]", 152)
C.v("v_lshlrev_b32", "v28", 3, "v0")
C.s("s_cmp_eq_u32", "s3", 3)
C.s("s_cbranch_scc1", "L_C_p1x")
for h in range(26):
    if h % 4 == 0: C.s("s_mov_b32", "s5", 70304 + h * 1352)
    C.bload("buffer_load_dwordx2", V(W3R + 2 * h, 2), "v28", S(R_CIN, 4), "s5", (h % 4) * 1352)
C.label("L_C_p1x")
C.s("s_cmp_eq_u32", "s38", 1)
C.s("s_cselect_b32", "s5", 1352, 52)
C.s("s_cselect_b32", "s93", 52, 1352)
C.s("s_cselect_b32", "s94", 35152, 0)
C.s("s_mul_i32", "s93", "s93", "s39"); C.s("s_add_u32", "s93", "s93", "s94")
C.v("v_and_b32", "v29", 31, "v1"); C.v("v_lshrrev_b32", "v30", 5, "v1")
C.v("v_mul_u32_u24", "v31", "s5", "v29"); C.v("v_lshl_add_u32", "v31", "v30", 4, "v31")
C.bload("buffer_load_dwordx4", V(NF, 4), "v31", S(R_CIN, 4), "s93")
C.bload("buffer_load_dwordx4", V(NF + 4, 4), "v31", S(R_CIN, 4), "s93", 32)
C.raw("s_getpc_b64 s[94:95]", 'salu')
C.label("L_pc")
C.raw("s_add_u32 s94, s94, L_lut-L_pc", 'salu'); C.raw("s_addc_u32 s95, s95, 0", 'salu')
C.v("v_lshlrev_b32", "v32", 4, "v1")
for c in range(4): C.gload("global_load_dwordx4", V(LUT + 4 * c, 4), "v32", "s[94:95]", c * 1024)
C.v("v_lshlrev_b32", "v33", 1, "v29")
C.v("v_min_u32", "v33", 50, "v33")
C.gload("global_load_ushort", "v34", "v33", "s[22:23]", 52)
C.s("s_min_u32", "s5", "s39", 25); C.s("s_lshl_b32", "s5", "s5", 1); C.v("v_mov_b32", "v35", "s5")
C.gload("global_load_ushort", "v35", "v35", "s[22:23]", 0)
C.v("v_and_b32", "v36", 1, "v29"); C.v("v_lshlrev_b32", "v36", 4, "v36")
C.v("v_mov_b32", "v37", "0x3f80"); C.v("v_lshlrev_b32", "v37", "v36", "v37")
C.v("v_cmp_gt_u32", "vcc", 26, "v29"); C.v("v_cndmask_b32", "v37", 0, "v37", "vcc")
C.v("v_lshrrev_b32", "v38", 1, "v29")
C.v("v_lshlrev_b32", "v39", 2, "v30"); C.v("v_sub_u32", "v39", "v38", "v39")
C.v("v_lshlrev_b32", "v40", 1, "v30"); C.v("v_sub_u32", "v40", "v38", "v40")
for s_ in range(2):
    for m in range(4):
        C.v("v_cmp_eq_u32", "vcc", 8 * s_ + m, "v39")
        C.v("v_cmp_eq_u32", "s[96:97]", 8 * s_ + 4 * (m >> 1) + (m & 1), "v40")
        C.v("v_cndmask_b32", V(IDN + 4 * s_ + m), 0, "v37", "vcc")
        C.v("v_cndmask_b32", V(MF + 4 * s_ + m), 0, "v37", "s[96:97]")
C.s("s_lshl_b32", "s5", "s3", 10); C.s("s_add_u32", "s98", "s5", STG)
C.v("v_add_u32", "v41", "s98", "v32")
C.dsw("ds_write_b128", "v41", "v[24:27]")
C.cond = False
C.label("L_C_np1")

C.s("s_lshl_b32", "s6", "s6", 10)
gt = []
for m in range(7):
    if m == 6:
        C.s("s_cmp_eq_u32", "s7", 1); C.s("s_cbranch_scc1", "L_C_g6"); C.cond = True
    C.s("s_lshl_b32", "s5", S(8 + m), 9)
    C.s("s_add_u32", "s5", "s5", "s6")
    for e in range(2):
        C.v("v_lshl_add_u32", V(8 + 2 * m + e), V(8 + 2 * m + e), 5, "v4")
        C.s("s_add_u32", "m0", "s5", X0 + 2048 * e)
        gt.append(C.dma(V(8 + 2 * m + e), S(R_TAB, 4)))
C.cond = False
C.label("L_C_g6")
stamp(C, 2)

C.s("s_cmp_lg_u32", "s38", 1)
C.s("s_cbranch_scc1", "L_C_np2")
C.cond = True
for k in range(4): C.v("v_mov_b32", V(44 + k), 0)
C.s("s_cmp_eq_u32", "s3", 3)
C.s("s_cbranch_scc1", "L_C_p2w")
C.waitcnt(None, 0)
for h in range(26):
    sd = S(80 + h // 2)
    if h % 2 == 0:
        C.s("s_and_b32", "s96", sd, "0xffff"); C.s("s_lshl_b32", "s97", sd, 16)
    else:
        C.s("s_lshr_b32", "s96", sd, 16); C.s("s_and_b32", "s97", sd, "0xffff0000")
    if h % 4 == 0 or h == 25:
        pass
    C.v("v_dot2_f32_bf16", "v44", V(W3R + 2 * h), "s96", "v44")
    C.v("v_dot2_f32_bf16", "v45", V(W3R + 2 * h), "s97", "v45")
    C.v("v_dot2_f32_bf16", "v46", V(W3R + 2 * h + 1), "s96", "v46")
    C.v("v_dot2_f32_bf16", "v47", V(W3R + 2 * h + 1), "s97", "v47")
C.label("L_C_p2w")
C.v("v_cvt_pk_bf16_f32", "v44", "v44", "v45"); C.v("v_cvt_pk_bf16_f32", "v45", "v46", "v47")
C.v("v_cmp_gt_u32", "vcc", 169, "v0")
C.v("v_cndmask_b32", "v44", 0, "v44", "vcc"); C.v("v_cndmask_b32", "v45", 0, "v45", "vcc")
C.dsw("ds_write_b64", "v28", "v[44:45]", M3B)
C.v("v_cmp_gt_u32", "vcc", 26, "v29"); C.v("v_cndmask_b32", "v34", 0, "v34", "vcc")
C.v("v_mul_u32_u24", "v42", 52, "v29")
C.dsw("ds_write_b32", "v42", "v34", AUX)
C.cond = False
C.label("L_C_np2")

C.wait(gt[3]); C.waitcnt(None, 0)
C.s("s_barrier")
stamp(C, 3)
C.waitcnt(0, None)
lds_signal(C, 22, 6, CNT1 - MISC)

C.s("s_cmp_eq_u32", "s38", 0)
C.s("s_cbranch_scc1", "L_C_np3")
C.s("s_cmp_ge_u32", "s39", 26)
C.s("s_cbranch_scc1", "L_C_np3")
C.cond = True
TD, TF, SD = 160, 176, 184
C.mfma("v_mfma_f32_32x32x16_bf16", V(TD, 16), V(NF, 4), V(IDN, 4), 0)
C.mfma("v_mfma_f32_32x32x16_bf16", V(TD, 16), V(NF + 4, 4), V(IDN + 4, 4), V(TD, 16))
C.v("v_lshlrev_b32", "v35", 16, "v35")
C.s("s_cmp_eq_u32", "s38", 2)
C.s("s_cbranch_scc1", "L_C_p3x")
C.v("v_lshlrev_b32", "v42", 1, "v29")
C.v("v_cmp_gt_u32", "vcc", 26, "v29"); C.v("v_mov_b32", "v43", 2048 + 2); C.v("v_cndmask_b32", "v42", "v43", "v42", "vcc")
C.v("v_cmp_eq_u32", "vcc", 26, "v29"); C.v("v_mov_b32", "v43", 2048); C.v("v_cndmask_b32", "v42", "v42", "v43", "vcc")
C.v("v_mul_u32_u24", "v43", 4 * 52, "v30"); C.v("v_add_u32", "v42", "v42", "v43")
for s_ in range(2):
    for j in range(8):
        i0 = 16 * s_ + 8 * (j // 4) + j % 4
        C.dsr("ds_read_u16", V(W3R + 16 + 8 * s_ + j), "v42", M3B + i0 * 52)
for m in range(8): C.v("v_lshl_or_b32", V(MF + m), V(W3R + 17 + 2 * m), 16, V(W3R + 16 + 2 * m))
C.s("s_branch", "L_C_p3j")
C.label("L_C_p3x")
C.v("v_mov_b32", "v35", 0)
C.label("L_C_p3j")
C.raw("s_nop 7", 'nop'); C.out[-1].states = 8
C.raw("s_nop 3", 'nop'); C.out[-1].states = 4
for m in range(8): C.v("v_cvt_pk_bf16_f32", V(TF + m), V(TD + 2 * m), V(TD + 2 * m + 1))
C.waitcnt(None, 0)
C.mfma("v_mfma_f32_32x32x16_bf16", V(SD, 16), V(TF, 4), V(MF, 4), 0)
C.mfma("v_mfma_f32_32x32x16_bf16", V(SD, 16), V(TF + 4, 4), V(MF + 4, 4), V(SD, 16))
C.mfma("v_mfma_f32_32x32x16_bf16", V(SD, 16), V(MF, 4), V(TF, 4), V(SD, 16))
C.mfma("v_mfma_f32_32x32x16_bf16", V(SD, 16), V(MF + 4, 4), V(TF + 4, 4), V(SD, 16))
for k in range(15):
    C.v("v_and_b32", V(W3R + k), "0xffff0000", V(LUT + k))
    C.v("v_and_b32", V(LUT + k), "0xffff", V(LUT + k))
    C.v("v_add_u32", V(LUT + k), "s98", V(LUT + k))
C.v("v_mov_b32", V(SD + 14), "v35")
for k in range(15): C.v("v_mul_f32", V(SD + k), V(SD + k), V(W3R + k))
C.v("v_max3_f32", "v44", f"|{V(SD)}|", f"|{V(SD+1)}|", f"|{V(SD+2)}|")
for k in range(3, 15, 2): C.v("v_max3_f32", "v44", f"|{V(SD+k)}|", f"|{V(SD+k+1)}|", "v44")
for sh in (8, 4, 2, 1): C.v("v_max_f32_dpp", "v44", "v44", "v44", mods=f"row_ror:{sh} row_mask:0xf bank_mask:0xf")
for q in range(4): C.v("v_readlane_b32", S(94 + q), "v44", 16 * q)
C.s("s_max_u32", "s94", "s94", "s95"); C.s("s_max_u32", "s96", "s96", "s97"); C.s("s_max_u32", "s94", "s94", "s96")
C.s("s_lshr_b32", "s94", "s94", 23); C.s("s_max_u32", "s94", "s94", 67); C.s("s_min_u32", "s94", "s94", 187)
C.s("s_sub_u32", "s95", 268, "s94"); C.s("s_lshl_b32", "s95", "s95", 23)
for k in range(15):
    C.v("v_mul_f32", V(SD + k), "s95", V(SD + k))
for k in range(15):
    C.v("v_cvt_f16_f32", V(SD + k), V(SD + k))
    C.dsw("ds_write_b16", V(LUT + k), V(SD + k))
C.dsr("ds_read_b128", "v[44:47]", "v41")
C.s("s_cmp_eq_u32", "s38", 1); C.s("s_cselect_b32", "s5", 26, 0); C.s("s_cselect_b32", "s96", 32, 0)
C.s("s_add_u32", "s5", "s5", "s39"); C.s("s_lshl_b32", "s5", "s5", 10)
C.s("s_cmp_eq_u32", "s39", 25); C.s("s_cselect_b32", "s97", 28, "s39"); C.s("s_add_u32", "s96", "s96", "s97"); C.s("s_lshl_b32", "s96", "s96", 2)
C.waitcnt(None, 0)
C.bstore("buffer_store_dwordx4", "v[44:47]", "v32", S(R_WS, 4), "s5", mods="sc0 sc1")
C.v("v_mov_b32", "v48", "s94")
C.waitcnt(0, None)
C.s("s_mov_b64", "exec", 1)
C.bstore("buffer_store_dword", "v48", "v5", S(R_DBG, 4), "s96", mods="sc0 sc1")
C.s("s_mov_b64", "exec", -1)
C.cond = False
C.label("L_C_np3")
stamp(C, 4)

FB = 8
RAW = 112
ACC = 112
SACC = 176
KAP, KAP2, ET = 189, 190, 191
ZR = 192
NSTG = 6
STGR = 204
RES0 = STGR + 4 * NSTG
TMP = 176
C.v("v_mov_b32", "v2", MISC)
C.v("v_and_b32", "v3", 15, "v1"); C.v("v_lshlrev_b32", "v3", 5, "v3")
C.v("v_lshrrev_b32", "v4", 4, "v1"); C.v("v_xor_b32", "v4", "s7", "v4"); C.v("v_and_b32", "v4", 1, "v4"); C.v("v_lshl_add_u32", "v3", "v4", 4, "v3")
C.v("v_lshrrev_b32", "v4", 5, "v1"); C.v("v_lshl_add_u32", "v3", "v4", 3, "v3")
C.s("s_lshl_b32", "s5", "s7", 9); C.s("s_add_u32", "s5", "s5", "s6"); C.v("v_add_u32", "v3", "s5", "v3")
C.v("v_lshlrev_b32", "v7", 2, "v1")
lds_wait(C, 2, 4, CNT1 - MISC, 4, "L_C_w1")
stamp(C, 5)
for f in range(26): C.dsr("ds_read_b64", V(RAW + 2 * f, 2), "v3", X0 + f * 2048)
MX, MN = TMP, TMP + 1
C.v("v_pk_maximum3_f16", V(MX), V(RAW), V(RAW + 1), V(RAW + 1)); C.v("v_pk_minimum3_f16", V(MN), V(RAW), V(RAW + 1), V(RAW + 1))
for f in range(1, 26):
    C.v("v_pk_maximum3_f16", V(MX), V(RAW + 2 * f), V(RAW + 2 * f + 1), V(MX))
    C.v("v_pk_minimum3_f16", V(MN), V(RAW + 2 * f), V(RAW + 2 * f + 1), V(MN))
C.v("v_and_b32", V(MX), "0x7fff7fff", V(MX)); C.v("v_and_b32", V(MN), "0x7fff7fff", V(MN))
C.v("v_pk_max_u16", V(MX), V(MX), V(MN))
C.v("v_lshrrev_b32", V(MN), 16, V(MX)); C.v("v_and_b32", V(MX), "0xffff", V(MX)); C.v("v_max_u32", V(MX), V(MX), V(MN))
C.v("v_mov_b32", V(MN), V(MX))
C.v("v_permlane32_swap_b32", V(MX), V(MN))
C.v("v_max_u32", V(MX), V(MX), V(MN))
C.v("v_lshrrev_b32", V(MX), 7, V(MX)); C.v("v_max_u32", V(MX), 127, V(MX)); C.v("v_min_u32", V(MX), 254, V(MX))
SC = 4
C.v("v_sub_u32", V(MN), 260, V(MX)); C.v("v_lshlrev_b32", V(SC), 23, V(MN))
C.v("v_lshlrev_b32", V(MX), 2, V(MX)); C.v("v_subrev_u32", "v3", 4 * 133 + 282, V(MX))
C.v("v_cvt_pkrtz_f16_f32", V(KAP), V(SC), V(SC))
C.v("v_pk_mul_f16", V(KAP2), V(KAP), V(KAP)); C.v("v_and_b32", V(KAP2), "0xffff", V(KAP2))
flagt = C.bload("buffer_load_dword", V(255), "v7", S(R_DBG, 4), 0, mods="sc0 sc1")
def Fr(u, r): return FB + 13 * u + r
C.v("v_mov_b32", V(ET), "0xfff8fff8")
T0 = 192
for r in range(13):
    for kk in range(2):
        a, b = RAW + 2 * (2 * r) + kk, RAW + 2 * (2 * r + 1) + kk
        t = T0 + 4 * ((2 * r + kk) % 4)
        C.v("v_lshlrev_b32", V(t), 16, V(a)); C.v("v_lshlrev_b32", V(t + 1), 16, V(b))
        C.v("v_mul_f32", V(t + 2), V(SC), V(a)); C.v("v_mul_f32", V(t + 3), V(SC), V(b))
        C.v("v_mul_f32", V(t), V(SC), V(t)); C.v("v_mul_f32", V(t + 1), V(SC), V(t + 1))
        lo, hi = Fr(2 * kk, r), Fr(2 * kk + 1, r)
        C.v("v_cvt_pkrtz_f16_f32", V(hi), V(t + 2), V(t + 3))
        C.v("v_cvt_pkrtz_f16_f32", V(lo), V(t), V(t + 1))
        C.v("v_and_b32", V(hi), V(ET), V(hi))
        rp = (r - 1) % 13
        C.v("v_cvt_pkrtz_f16_f32", V(Fr(4 + 2 * kk, rp)), V(t + 1), V(t))
        C.v("v_alignbit_b32", V(Fr(5 + 2 * kk, rp)), V(hi), V(hi), 16)
    if r >= 2:
        for k in range(4): C.v("v_permlane32_swap_b32", V(Fr(k, r - 2)), V(Fr(4 + k, r - 2)))
for r in (11, 12):
    for k in range(4): C.v("v_permlane32_swap_b32", V(Fr(k, r)), V(Fr(4 + k, r)))
stamp(C, 6)

C.s("s_mov_b32", "s8", "0x11ffffff"); C.s("s_mov_b32", "s9", "0x11ffffff")
C.s("s_mov_b32", "s10", 1 << 18)
C.label("L_C_poll")
C.waitcnt(0, None)
C.v("v_cmp_ne_u32", "vcc", 0, V(255))
C.s("s_and_b64", "vcc", "vcc", "s[8:9]"); C.s("s_cmp_eq_u64", "vcc", "s[8:9]")
C.s("s_cbranch_scc1", "L_C_ready")
C.s("s_sub_u32", "s10", "s10", 1); C.s("s_cmp_eq_u32", "s10", 0); C.s("s_cbranch_scc1", "L_C_ready")
C.s("s_sleep", 2)
C.bload("buffer_load_dword", V(255), "v7", S(R_DBG, 4), 0, mods="sc0 sc1")
C.s("s_branch", "L_C_poll")
C.label("L_C_ready")
C.vm = []
stamp(C, 7)
C.v("v_lshlrev_b32", V(254), 4, "v1")
C.s("s_mul_i32", "s5", "s3", 13 * 1024)
AL = 112
for n in range(13):
    if n % 4 == 0 and n: C.s("s_add_u32", "s5", "s5", 4096)
    C.bload("buffer_load_dwordx4", V(AL + 4 * n, 4), V(254), S(R_WS, 4), "s5", (n % 4) * 1024, mods="sc0 sc1")
C.v("v_and_b32", V(253), 31, "v1"); C.v("v_lshrrev_b32", V(252), 5, "v1")
C.s("s_cmp_ge_u32", "s3", 2); C.s("s_cselect_b32", "s5", 22 * FSTR, 0); C.s("s_cselect_b32", "s10", 24, 22); C.s("s_add_u32", "s5", "s5", AIMG)
C.s("s_mul_i32", "s11", "s7", 13 * 16); C.s("s_add_u32", "s5", "s5", "s11")
C.v("v_cmp_gt_u32", "vcc", "s10", V(253))
C.v("v_mul_u32_u24", V(253), FSTR, V(253)); C.v("v_lshl_add_u32", V(253), V(252), 9, V(253)); C.v("v_add_u32", V(253), "s5", V(253))
C.s("s_mul_i32", "s11", "s7", 48); C.v("v_add_u32", V(252), "s11", V(253))
C.s("s_mov_b64", "exec", "vcc")
for n in range(13):
    C.dsw("ds_write_b128", V(252 if n == 12 else 253), V(AL + 4 * n, 4), n * 16)
C.s("s_mov_b64", "exec", -1)
C.waitcnt(None, 0)
lds_signal(C, 2, 6, CNT2 - MISC)
for k in range(13): C.v("v_mov_b32", V(SACC + k), 0)
C.v("v_add_u32", "v7", AIMG, V(254))
C.s("s_mov_b32", "s12", "0x05040100")
lds_wait(C, 2, 255, CNT2 - MISC, 4, "L_C_w2")
C.s("s_setprio", 1)
stamp(C, 8)

order = list(range(22, 24)) + list(range(22))
steps = [(u, ks) for u in range(8) for ks in order]
slots = []
for si, (u, ks) in enumerate(steps):
    if ks < 22: slots.append((si, 0))
    slots.append((si, 1))
def zops(si):
    u, ks = steps[si]; q = ZR + 4 * (si % 3); L = []
    for j in range(4):
        ins = sm.dwords[4 * ks + j]; d = V(q + j)
        if ins[0] == 'A': L.append(("v_pk_mul_f16", d, V(Fr(u, ins[1])), V(Fr(u, ins[2])), "op_sel:[0,0] op_sel_hi:[0,1]"))
        elif ins[0] == 'D': L.append(("v_pk_mul_f16", d, V(Fr(u, ins[1])), V(Fr(u, ins[1])), "op_sel:[0,0] op_sel_hi:[0,1]"))
        elif ins[0] == 'E':
            L.append(("v_perm_b32", d, V(Fr(u, ins[2])), V(Fr(u, ins[1])), "s12", ""))
            L.append(("v_pk_mul_f16", d, d, d, ""))
        elif ins[0] == 'L': L.append(("v_pk_mul_f16", d, V(Fr(u, ins[1])), V(KAP), ""))
        else: L.append(("v_mov_b32", d, V(KAP2), ""))
    return L
resident = {}
free_quads = list(range(RES0, 249, 4))
LOOK = NSTG - 1
stg_next = [0]
slot_reg = {}
def plan_read(i):
    si, blk = slots[i]; u, ks = steps[si]; fid = frag_id(blk, ks)
    if fid in resident: slot_reg[i] = resident[fid]; return
    if free_quads and u < 7:
        reg = free_quads.pop(0); resident[fid] = reg
    else:
        reg = STGR + 4 * stg_next[0]; stg_next[0] = (stg_next[0] + 1) % NSTG
    slot_reg[i] = reg
    C.dsr("ds_read_b128", V(reg, 4), "v7", fid * FSTR)
def emitv(o): C.v(o[0], o[1], *o[2:-1], mods=o[-1])
for i in range(LOOK): plan_read(i)
for si in (0, 1):
    for o in zops(si): emitv(o)
pend = []
freed_upto = FB
NK = 176 - 64
first_of = {}
epi = []
for i, (si, blk) in enumerate(slots):
    u, ks = steps[si]
    newstep = i == 0 or slots[i - 1][0] != si
    if newstep:
        assert not pend
        if si + 2 < len(steps): pend = zops(si + 2)
        if ks == order[0] and u > 0:
            a = ACC + 32 * ((u - 1) & 1)
            epi = [("v_fmac_f32", V(SACC + k), V(a + k), V(a + 16 + k), "") for k in range(13)]
            epi_at = i + 3
            lim = FB + 13 * u
            while freed_upto + 4 <= lim:
                free_quads.append(freed_upto); freed_upto += 4
    last_in_step = i + 1 == len(slots) or slots[i + 1][0] != si
    if i + LOOK < len(slots): plan_read(i + LOOK)
    acc = ACC + 32 * (u & 1) + 16 * blk
    first = (u, blk) not in first_of; first_of[(u, blk)] = 1
    C.mfma("v_mfma_f32_32x32x16_f16", V(acc, 16), V(slot_reg[i], 4), V(ZR + 4 * (si % 3), 4), 0 if first else V(acc, 16))
    n = len(pend) if last_in_step else (len(pend) + 1) // 2
    for o in pend[:n]: emitv(o)
    pend = pend[n:]
    if epi and i >= epi_at:
        emitv(epi.pop(0));
        if epi: emitv(epi.pop(0))
    if u == 7 and ks == order[4] and blk == 0:
        EX = FB + 13 * 6 + 2
        EX = 80
        C.v("v_lshrrev_b32", V(255), 5, "v1"); C.v("v_lshlrev_b32", V(255), 4, V(255))
stamp(C, 9)
a = ACC + 32
EX = STGR
ext = []
for g in range(4):
    C.bload("buffer_load_dwordx4", V(ACC + 4 * g, 4), V(255), S(R_DBG, 4), 0, 32 * g, mods="sc0 sc1")
    C.bload("buffer_load_dwordx4", V(ACC + 16 + 4 * g, 4), V(255), S(R_DBG, 4), 0, 128 + 32 * g, mods="sc0 sc1")
C.gload("global_load_ushort", V(254), "v5", "s[30:31]")
for k in range(13): C.v("v_fmac_f32", V(SACC + k), V(a + k), V(a + 16 + k))
lds_wait(C, 2, 253, CNT3 - MISC, 4, "L_C_w3")
C.v("v_lshrrev_b32", V(252), 4, "v1"); C.v("v_lshlrev_b32", V(252), 8, V(252)); C.v("v_and_b32", V(251), 15, "v1"); C.v("v_lshl_add_u32", V(252), V(251), 2, V(252))
C.s("s_lshl_b32", "s5", "s3", 6); C.s("s_add_u32", "s5", "s5", RED); C.v("v_add_u32", V(252), "s5", V(252))
C.s("s_lshl_b32", "s5", "s3", 8); C.s("s_add_u32", "s5", "s5", RED2); C.v("v_lshlrev_b32", V(250), 2, "v1"); C.v("v_add_u32", V(250), "s5", V(250))
C.dsr("ds_read_b32", V(252), V(252)); C.dsr("ds_read_b32", V(250), V(250))
for k in range(13):
    C.v("v_add3_u32", V(ACC + k), V(ACC + k), V(ACC + 16 + k), "v3")
for k in range(13):
    C.v("v_ldexp_f32", V(SACC + k), V(SACC + k), V(ACC + k))
for st_ in (1, 2, 4, 8):
    for k in range(0, 13, 2 * st_):
        if k + st_ < 13: C.v("v_add_f32", V(SACC + k), V(SACC + k), V(SACC + k + st_))
C.v("v_add_f32", V(252), V(252), V(250)); C.v("v_add_f32", V(SACC), V(SACC), V(252))
C.v("v_mov_b32", V(SACC + 1), V(SACC)); C.v("v_permlane32_swap_b32", V(SACC), V(SACC + 1)); C.v("v_add_f32", V(SACC), V(SACC), V(SACC + 1))
C.v("v_mov_b32", V(SACC + 1), V(SACC)); C.v("v_permlane16_swap_b32", V(SACC), V(SACC + 1)); C.v("v_add_f32", V(SACC), V(SACC), V(SACC + 1))
C.v("v_lshlrev_b32", V(254), 16, V(254)); C.v("v_add_f32", V(SACC), V(SACC), V(254))
C.v("v_cvt_pk_bf16_f32", V(SACC), V(SACC), V(SACC))
C.s("s_lshl_b32", "s5", "s2", 2); C.s("s_add_u32", "s5", "s5", "s3"); C.s("s_lshl_b32", "s5", "s5", 5)
C.v("v_lshlrev_b32", V(251), 1, V(251))
C.s("s_mov_b64", "exec", "0xffff")
C.bstore("buffer_store_short", V(SACC), V(251), S(R_OUT, 4), "s5")
C.s("s_mov_b64", "exec", -1)
stamp(C, 10)
dump_stamps(C, 11, 250, 251)
C.s("s_endpgm")

D.label("L_D")
R_W1 = 40
DACC, WF, XF, IW, B12, IW12, DT = 16, 112, 136, 152, 200, 208, 216
srd_const(D, R_W1, 416 * 832)
D.s("s_setprio", 2)
D.s("s_sub_u32", "s6", "s3", 4)
D.s("s_mul_i32", "s7", "s6", NS * 3072); D.s("s_add_u32", "s7", "s7", RING)
D.s("s_mul_i32", "s5", "s6", 192)
for m in range(3):
    D.v("v_add_u32", "v8", 64 * m, "v1"); D.v("v_mul_u32_u24", "v9", 43691, "v8"); D.v("v_lshrrev_b32", "v9", 19, "v9")
    D.v("v_mul_u32_u24", "v10", 832 - 192, "v9"); D.v("v_lshl_add_u32", V(2 + m), "v8", 4, "v10"); D.v("v_add_u32", V(2 + m), "s5", V(2 + m))
D.v("v_lshlrev_b32", "v8", 2, "v1"); D.v("v_add_u32", "v9", "s5", "v8"); D.v("v_add_u32", "v10", 768 - 192, "v8")
D.v("v_cmp_gt_u32", "vcc", 48, "v1"); D.v("v_cndmask_b32", "v9", "v10", "v9", "vcc")
D.s("s_mul_i32", "s9", "s4", 2 * 13312); D.s("s_mov_b32", "s8", "s4")
D.wait(ka)
srd(D, R_W1, 24, 0)
dmat = {}
def w_dma(t):
    for m in range(3):
        D.s("s_add_u32", "m0", "s7", (t % NS) * 3072 + 1024 * m)
        dmat[t] = D.dma(V(2 + m), S(R_W1, 4), "s9")
def w_adv(t):
    D.s("s_add_u32", "s9", "s9", 13312)
    if t % 2 == 1:
        D.s("s_cmp_eq_u32", "s9", 26 * 13312); D.s("s_cselect_b32", "s9", 0, "s9")
w_dma(0); w_adv(0)
bt = D.gload("global_load_dword", "v10", "v9", "s[26:27]")
wt = D.gload("global_load_dword", "v11", "v9", "s[28:29]")
for t in range(1, NS): w_dma(t); w_adv(t)
stamp(D, 1)
D.v("v_lshrrev_b32", "v12", 5, "v1")
D.v("v_bfe_u32", "v13", "v1", 2, 2); D.v("v_lshl_add_u32", "v13", "v12", 3, "v13"); D.v("v_mul_u32_u24", "v13", 192, "v13")
D.v("v_and_b32", "v14", 1, "v1"); D.v("v_lshl_add_u32", "v13", "v14", 5, "v13")
D.v("v_bfe_u32", "v14", "v1", 1, 1); D.v("v_lshl_add_u32", "v13", "v14", 3, "v13")
D.v("v_bfe_u32", "v14", "v1", 4, 1); D.v("v_lshl_add_u32", "v13", "v14", 4, "v13")
D.v("v_add_u32", "v5", "s7", "v13")
D.v("v_xor_b32", "v14", "v14", "v12"); D.v("v_and_b32", "v13", 31, "v1"); D.v("v_lshlrev_b32", "v13", 5, "v13"); D.v("v_lshl_add_u32", "v6", "v14", 4, "v13")
D.s("s_lshl_b32", "s5", "s6", 10); D.s("s_add_u32", "s5", "s5", DSC)
D.v("v_lshlrev_b32", "v13", 3, "v1"); D.v("v_add_u32", "v13", "s5", "v13")
D.v("v_lshlrev_b32", "v14", 6, "v12"); D.v("v_add_u32", "v14", "s5", "v14")
D.v("v_lshrrev_b32", "v15", 4, "v1"); D.v("v_lshlrev_b32", "v15", 4, "v15"); D.v("v_add_u32", "v15", "s5", "v15")
D.v("v_lshlrev_b32", V(DT), 16, "v10"); D.v("v_and_b32", V(DT + 1), "0xffff0000", "v10")
D.dsw("ds_write_b64", "v13", V(DT, 2))
D.v("v_lshlrev_b32", V(DT + 2), 16, "v11"); D.v("v_and_b32", V(DT + 3), "0xffff0000", "v11")
D.v("v_rcp_f32", V(DT + 2), V(DT + 2)); D.v("v_rcp_f32", V(DT + 3), V(DT + 3))
D.v("v_mov_b32", V(DT + 4), f32(2.0 ** 100));
D.v("v_med3_f32", V(DT + 2), V(DT + 2), V(DT + 4), "-" + V(DT + 4)); D.v("v_med3_f32", V(DT + 3), V(DT + 3), V(DT + 4), "-" + V(DT + 4))
D.dsw("ds_write_b64", "v13", V(DT + 2, 2), 512)
for b in range(3):
    for g in range(4): D.dsr("ds_read_b128", V(DACC + 32 * b + 4 * g, 4), "v14", 128 * b + 16 * g)
for T in range(2): D.dsr("ds_read_b128", V(B12 + 4 * T, 4), "v15", 384 + 64 * T)
for b in range(3):
    for g in range(4): D.dsr("ds_read_b128", V(IW + 16 * b + 4 * g, 4), "v14", 512 + 128 * b + 16 * g)
for T in range(2): D.dsr("ds_read_b128", V(IW12 + 4 * T, 4), "v15", 512 + 384 + 64 * T)
D.v("v_mov_b32", "v8", MISC); D.v("v_mov_b32", "v9", 1)
D.s("s_lshl_b32", "s10", "s4", 12)
D.v("v_add_u32", "v7", "s10", "v6")
def w_reads(t):
    L = []
    for b in range(3):
        for h in range(2):
            L.append(("ds_read_b64_tr_b16", V(WF + 12 * (t & 1) + 4 * b + 2 * h, 2), "v5", (t % NS) * 3072 + 64 * b + 768 * h))
    return L
def x_reads(t): return [("ds_read_b128", V(XF + 8 * (t & 1) + 4 * cb, 4), "v7", X0 + (t & 1) * 2048 + cb * 1024) for cb in range(2)]
D.wait(dmat[0])
for o in w_reads(0): D.dsr(*o)
D.waitcnt(None, 0)
D.s("s_barrier")
stamp(D, 3)
for o in x_reads(0): D.dsr(*o)
b12_groups = [list(range(0, 5)), list(range(5, 9)), list(range(9, 13))]
for t in range(26):
    fill = []
    if t + 1 < 26:
        if t + 1 == 8:
            lds_wait(D, 8, DT, CNT1 - MISC, 4, "L_D_w1")
        if (t + 1) % 2 == 0:
            D.s("s_add_u32", "s10", "s10", 4096); D.s("s_cmp_eq_u32", "s10", 13 * 4096); D.s("s_cselect_b32", "s10", 0, "s10")
        fill = [("X",)] + [("R", o) for o in x_reads(t + 1)] + [("W", t + 1)] + [("R", o) for o in w_reads(t + 1)]
    k = 0
    for b in range(3):
        for cb in (1, 0):
            acc = DACC + 32 * b + 16 * cb
            srcc = V(DACC + 32 * b, 16) if t == 0 else V(acc, 16)
            D.mfma("v_mfma_f32_32x32x16_bf16", V(acc, 16), V(WF + 12 * (t & 1) + 4 * b, 4), V(XF + 8 * (t & 1) + 4 * cb, 4), srcc)
            if k == 0 and t + NS < 26:
                D.wait(*[x for x in D.lg])
                w_dma(t + NS); w_adv(t + NS)
            n = {0: 3, 1: 3, 2: 2, 3: 2, 4: 0, 5: 0}[k]
            for f in fill[:n]:
                if f[0] == "X":
                    if (t + 1) % 2 == 0: D.v("v_add_u32", "v7", "s10", "v6")
                elif f[0] == "W": D.wait(dmat[f[1]])
                else: D.dsr(*f[1])
            fill = fill[n:]
            k += 1
    assert not fill
stamp(D, 4)
D.s("s_setprio", 0)
D.v("v_lshrrev_b32", "v10", 2, "v1"); D.v("v_mul_u32_u24", "v10", 832, "v10")
D.v("v_lshrrev_b32", "v11", 4, "v1"); D.v("v_and_b32", "v11", 2, "v11"); D.v("v_xor_b32", "v11", "v11", "v1"); D.v("v_and_b32", "v11", 3, "v11")
D.v("v_lshl_add_u32", "v2", "v11", 4, "v10"); D.v("v_add_u32", "v2", 768, "v2")
D.v("v_lshrrev_b32", "v10", 4, "v1"); D.v("v_bfe_u32", "v11", "v1", 2, 2); D.v("v_lshl_add_u32", "v11", "v10", 3, "v11"); D.v("v_lshlrev_b32", "v11", 6, "v11")
D.v("v_and_b32", "v12", 1, "v10"); D.v("v_lshl_add_u32", "v11", "v12", 5, "v11"); D.v("v_and_b32", "v13", 3, "v1"); D.v("v_lshl_add_u32", "v11", "v13", 3, "v11")
D.v("v_xor_b32", "v13", 32, "v11"); D.v("v_add_u32", "v3", "s7", "v11"); D.v("v_add_u32", "v4", "s7", "v13")
D.s("s_and_b32", "s5", "s6", 1); D.v("v_xor_b32", "v12", "s5", "v12"); D.v("v_lshrrev_b32", "v10", 1, "v10"); D.v("v_lshlrev_b32", "v10", 11, "v10")
D.v("v_lshl_add_u32", "v10", "v12", 4, "v10"); D.v("v_and_b32", "v13", 15, "v1"); D.v("v_lshl_add_u32", "v10", "v13", 5, "v10")
D.s("s_lshl_b32", "s5", "s6", 9); D.v("v_add_u32", "v7", "s5", "v10")
def b12_dma(grp):
    tk = None
    for n, t in enumerate(grp):
        for h in range(2):
            D.s("s_mov_b32", "s9", (32 * t + 16 * h) * 832)
            D.s("s_add_u32", "m0", "s7", n * 2048 + 1024 * h)
            tk = D.dma("v2", S(R_W1, 4), "s9")
    return tk
def b12_mm(grp, tk):
    D.wait(tk)
    for n, t in enumerate(grp):
        o = 12 * (n & 1)
        D.dsr("ds_read_b128", V(WF + o + 8, 4), "v7", X0 + t * 4096)
        for T in range(2):
            for h in range(2): D.dsr("ds_read_b64_tr_b16", V(WF + o + 4 * T + 2 * h, 2), V(3 + T), n * 2048 + 256 * h)
        for T in range(2):
            D.mfma("v_mfma_f32_16x16x32_bf16", V(B12 + 4 * T, 4), V(WF + o + 4 * T, 4), V(WF + o + 8, 4), V(B12 + 4 * T, 4))
VK1, VK2, S0, S1, S2 = DT, DT + 1, DT + 2, DT + 3, DT + 4
D.v("v_mov_b32", V(VK1), f32(K1)); D.v("v_mov_b32", V(VK2), f32(K2))
for r in (S0, S1, S2): D.v("v_mov_b32", V(r), 0)
GT = DT + 8
def gelu(items):
    for g0 in range(0, len(items), 4):
        grp = items[g0:g0 + 4]
        t = [GT + 4 * ((g0 // 4) & 1) + i for i in range(len(grp))]
        for (x, w, s), r in zip(grp, t): D.v("v_mul_f32", V(r), V(x), V(x))
        for (x, w, s), r in zip(grp, t): D.v("v_fma_f32", V(r), V(r), V(VK2), V(VK1))
        for (x, w, s), r in zip(grp, t): D.v("v_mul_f32", V(r), V(x), V(r))
        for (x, w, s), r in zip(grp, t): D.v("v_exp_f32", V(r), V(r))
        for (x, w, s), r in zip(grp, t): D.v("v_fma_f32", V(r), V(r), V(w), V(w))
        for (x, w, s), r in zip(grp, t): D.v("v_rcp_f32", V(r), V(r))
        for (x, w, s), r in zip(grp, t): D.v("v_fmac_f32", V(s), V(x), V(r))
for b in range(3):
    D.waitcnt(None, 0)
    tk = b12_dma(b12_groups[b])
    its = []
    for k in range(16):
        its.append((DACC + 32 * b + k, IW + 16 * b + k, S0)); its.append((DACC + 32 * b + 16 + k, IW + 16 * b + k, S1))
    gelu(its)
    b12_mm(b12_groups[b], tk)
gelu([(B12 + k, IW12 + k, S2) for k in range(8)])
D.v("v_permlane32_swap_b32", V(S0), V(S1)); D.v("v_add_f32", V(S0), V(S0), V(S1))
D.s("s_lshl_b32", "s5", "s6", 8); D.s("s_add_u32", "s5", "s5", RED - MISC)
D.v("v_lshl_add_u32", "v10", "v1", 2, "v8"); D.v("v_add_u32", "v10", "s5", "v10")
D.dsw("ds_write_b32", "v10", V(S0)); D.dsw("ds_write_b32", "v10", V(S2), 1024)
D.waitcnt(None, 0)
lds_signal(D, 8, 9, CNT3 - MISC)
stamp(D, 10)
dump_stamps(D, 11, 10, 11)
D.label("L_end")
D.s("s_endpgm")

lut = [[0] * 16 for _ in range(64)]
DUMMY = 30 * 16
for l in range(64):
    j, hfc = l & 31, l >> 5
    for k in range(16):
        ent = (0, DUMMY)
        if k < 14:
            q = 8 * (k // 4) + 4 * hfc + k % 4
            if q < 26 and j <= 26 and q <= j:
                hf, di, half = sm.target[(q, j)]
                ent = (0x3f00 if q == j else 0x3f80, hf * 512 + di * 4 + half * 2)
        elif k == 14 and l == 0:
            hf, di, half = sm.target[(26, 26)]
            ent = (0x3f80, hf * 512 + di * 4 + half * 2)
        lut[l][k] = (ent[0] << 16) | ent[1]
lt = ".p2align 6\n.type L_lut,@object\nL_lut:\n"
for c in range(4):
    for l in range(64): lt += "  .long " + ", ".join("0x%08x" % lut[l][4 * c + e] for e in range(4)) + "\n"
lt += ".size L_lut, 4096\n"

hdr = open("standalone__deep_cross_xdeepfm__recsys.s.ref").read().split("; @launch")[0]
src = hdr + f"; @launch grid=(256,1,1) block=(512,1,1) lds={LDS_TOTAL}\n"
src += f""".amdgcn_target "amdgcn-amd-amdhsa--gfx950"
.text
.globl {NAME}
.p2align 8
.type {NAME},@function
{NAME}:
""" + C.text() + D.text() + lt + f""".section .rodata,"a"
.p2align 6
.amdhsa_kernel {NAME}
  .amdhsa_next_free_vgpr 256
  .amdhsa_next_free_sgpr 102
  .amdhsa_accum_offset 256
  .amdhsa_group_segment_fixed_size 0
  .amdhsa_kernarg_size 88
  .amdhsa_user_sgpr_count 2
  .amdhsa_user_sgpr_kernarg_segment_ptr 1
  .amdhsa_system_sgpr_workgroup_id_x 1
.end_amdhsa_kernel
"""
open(sys.argv[1], "w").write(src)
print("C", C.stats(), "nops", C.nops); print("D", D.stats(), "nops", D.nops); print("LDS", LDS_TOTAL)
```

```python
import sys, struct
from asmlib import *
import slotmap as sm

NAME = "standalone__deep_cross_xdeepfm__recsys_kernel"
OPT = dict(stamps=0, ns=5, nstg=6, early=2)
for a in sys.argv[2:]:
    k, v = a.split("="); OPT[k] = int(v)
STAMPS = OPT["stamps"]

X0 = 0
AIMG = 53248
FSTR = 1040
NS = OPT["ns"]
RING = AIMG + 46 * FSTR
RSZ = NS * 3072
MISC = RING + 4 * RSZ
CNT1, CNT2, CNT3, RDY = 0, 4, 8, 12
ESUM = 64
LDS_TOTAL = MISC + 64 + 128
M3B = AIMG
AUX = AIMG + 2048
STG = AIMG + 4096
DSC = AIMG + 8192
assert LDS_TOTAL <= 163840
def f32(x): return "0x%08x" % struct.unpack("<I", struct.pack("<f", x))[0]
K1 = -2.0 * 0.7978845608028654 * 1.4426950408889634
K2 = K1 * 0.044715
SC1 = "sc1"
def frag_id(blk, ks): return ks if blk == 0 else 22 + ks

def stamp(st, idx):
    if STAMPS:
        st.raw(f"s_memtime s[{64+2*idx}:{65+2*idx}]", 'misc')
        st.lg.append(Tok('lg', [], True, True))
def dump_stamps(st, vt, va):
    if not STAMPS: return
    st.raw("s_memrealtime s[98:99]", 'misc')
    st.waitcnt(None, 0)
    st.s("s_mov_b32", "s86", "s100"); st.s("s_mov_b32", "s88", "s98"); n = 13
    st.s("s_lshl_b32", "s5", "s2", 3); st.s("s_add_u32", "s5", "s5", "s3"); st.s("s_lshl_b32", "s5", "s5", 6)
    st.s("s_add_u32", "s5", "s5", 0x100000)
    st.v("v_mov_b32", V(va), "s5")
    for i in range(n):
        st.v("v_mov_b32", V(vt), f"s{64+2*i}")
        st.gstore("global_store_dword", V(va), V(vt), "s[36:37]", off=4 * i)
    st.waitcnt(0, None)
def srd(st, r, base): st.s("s_mov_b64", S(r, 2), S(base, 2))
def srd_const(st, r, size):
    st.s("s_mov_b32", S(r + 2), size); st.s("s_mov_b32", S(r + 3), "0x20000")
def lds_signal(st, vaddr, vone, off):
    st.s("s_mov_b64", "exec", 1)
    st.dsw("ds_add_u32", V(vaddr), V(vone), off)
    st.s("s_mov_b64", "exec", -1)
def lds_wait(st, vaddr, vtmp, off, target, name, sleep=None):
    st.s("s_branch", name + "_in") if sleep is not None else None
    st.label(name)
    if sleep is not None:
        st.s("s_sleep", sleep); st.label(name + "_in")
    st.dsr("ds_read_b32", V(vtmp), V(vaddr), off)
    st.waitcnt(None, 0)
    st.v("v_readfirstlane_b32", "s5", V(vtmp))
    st.s("s_cmp_lt_u32", "s5", target)
    st.s("s_cbranch_scc1", name)

P = Stream()
stamp(P, 0)
if STAMPS: P.raw("s_memrealtime s[100:101]", 'misc')
ka = P.sload("s_load_dwordx16", "s[16:31]", "s[0:1]", 0)
P.v("v_lshrrev_b32", "v2", 6, "v0")
P.v("v_and_b32", "v1", 63, "v0")
P.s("s_cmp_ge_u32", "s2", 256)
P.v("v_readfirstlane_b32", "s3", "v2")
P.s("s_cbranch_scc1", "L_end")
P.raw("s_getpc_b64 s[94:95]", 'salu')
P.label("L_pc")
P.s("s_lshr_b32", "s15", "s2", 3)
P.s("s_lshl_b32", "s4", "s15", 1)
P.s("s_mul_i32", "s5", "s4", 79); P.s("s_lshr_b32", "s5", "s5", 10); P.s("s_mul_i32", "s5", "s5", 13); P.s("s_sub_u32", "s4", "s4", "s5")
P.s("s_and_b32", "s15", "s15", 7)
P.s("s_cmp_lt_u32", "s3", 4)
P.s("s_cbranch_scc1", "L_C")
C = P.fork()
D = P

R_W1 = 40
DACC, WF, XF, IW, B12, IW12, DT = 16, 112, 136, 152, 200, 208, 216
D.s("s_sub_u32", "s6", "s3", 4)
D.s("s_lshl_b32", "s5", "s15", 2); D.s("s_add_u32", "s5", "s5", "s6"); D.s("s_mul_i32", "s5", "s5", 9 * 128)
D.v("v_lshl_add_u32", "v8", "v1", 7, "s5")
D.raw("v_min_u32 v8, L_lut_end-L_pc-4, v8", 'misc')
D.s("s_mov_b64", "exec", "0x1ff")
D.gload("global_load_dword", "v255", "v8", "s[94:95]")
D.s("s_mov_b64", "exec", -1)
if STAMPS: D.sload("s_load_dwordx2", "s[36:37]", "s[0:1]", 80)
srd_const(D, R_W1, 416 * 832)
D.s("s_setprio", 2)
D.s("s_mul_i32", "s7", "s6", RSZ); D.s("s_add_u32", "s7", "s7", RING)
D.s("s_mul_i32", "s5", "s6", 192)
for m in range(3):
    D.v("v_add_u32", "v8", 64 * m, "v1") if m else None
    src = "v8" if m else "v1"
    D.v("v_mul_u32_u24", "v9", 43691, src); D.v("v_lshrrev_b32", "v9", 19, "v9")
    D.v("v_mul_u32_u24", "v10", 832 - 192, "v9"); D.v("v_lshl_add_u32", V(2 + m), src, 4, "v10"); D.v("v_add_u32", V(2 + m), "s5", V(2 + m))
D.v("v_lshlrev_b32", "v8", 2, "v1"); D.v("v_add_u32", "v9", "s5", "v8"); D.v("v_add_u32", "v10", 768 - 192, "v8")
D.v("v_cmp_gt_u32", "vcc", 48, "v1")
D.s("s_mul_i32", "s9", "s4", 2 * 13312)
D.s("s_mov_b32", "m0", "s7")
D.v("v_cndmask_b32", "v9", "v10", "v9", "vcc")
D.wait(ka)
srd(D, R_W1, 24)
dmat = {}
def w_m0(t, m): D.s("s_add_u32", "m0", "s7", (t % NS) * 3072 + 1024 * m)
def w_piece(t, m): dmat[t] = D.dma(V(2 + m), S(R_W1, 4), "s9")
def w_adv(t):
    D.s("s_add_u32", "s9", "s9", 13312)
    if t % 2 == 1:
        D.s("s_cmp_eq_u32", "s9", 26 * 13312); D.s("s_cselect_b32", "s9", 0, "s9")
w_piece(0, 0); w_m0(0, 1)
bt = D.gload("global_load_dword", "v10", "v9", "s[26:27]")
w_piece(0, 1); w_m0(0, 2)
wt = D.gload("global_load_dword", "v11", "v9", "s[28:29]")
w_piece(0, 2); w_adv(0)
for t in range(1, OPT["early"]):
    for m in range(3): w_m0(t, m); w_piece(t, m)
    w_adv(t)
stamp(D, 1)
D.s("s_branch", "L_D2")
D1 = D
D = D1.fork()

R_IDX, R_TAB, R_CIN, R_WS, R_OUT, R_DBG = 40, 44, 48, 52, 56, 60
C.label("L_C")
k2 = C.sload("s_load_dwordx4", "s[32:35]", "s[0:1]", 64)
C.sload("s_load_dwordx2", "s[36:37]", "s[0:1]", 80)
srd_const(C, R_IDX, 16384 * 104); srd_const(C, R_TAB, 32000)
C.s("s_lshr_b32", "s6", "s3", 1); C.s("s_and_b32", "s7", "s3", 1)
C.s("s_add_u32", "s8", "s4", "s7")
C.s("s_lshl_b32", "s5", "s2", 1); C.s("s_add_u32", "s5", "s5", "s6"); C.s("s_mul_i32", "s5", "s5", 32 * 104)
C.v("v_lshrrev_b32", "v3", 1, "v1"); C.v("v_mul_u32_u24", "v3", 104, "v3"); C.v("v_add_u32", "v3", "s5", "v3")
C.v("v_and_b32", "v4", 1, "v1"); C.v("v_lshl_add_u32", "v5", "v4", 1, "s8")
for m in range(4):
    if m: C.v("v_add_u32", "v5", 4, "v5")
    C.v("v_subrev_u32", "v6", 13, "v5"); C.v("v_min_u32", "v5", "v5", "v6")
    C.v("v_lshl_add_u32", V(16 + m), "v5", 3, "v3")
C.s("s_lshl_b32", "s5", "s15", 2); C.s("s_add_u32", "s5", "s5", "s3"); C.s("s_lshl_b32", "s15", "s5", 10)
C.v("v_lshrrev_b32", "v5", 5, "v1"); C.v("v_xor_b32", "v4", "v4", "v5"); C.v("v_lshlrev_b32", "v4", 4, "v4")
C.s("s_lshl_b32", "s6", "s6", 10)
C.s("s_lshl_b32", "s8", "s8", 12); C.s("s_add_u32", "s8", "s8", "s6")
for n in range(7):
    if n: C.s("s_add_u32", S(8 + n), S(7 + n), 8192)
    C.s("s_sub_u32", "s5", S(8 + n), 13 * 4096); C.s("s_min_u32", S(8 + n), S(8 + n), "s5")
C.v("v_lshlrev_b32", "v7", 7, "v1")
C.wait(ka)
srd(C, R_IDX, 16)
for m in range(4):
    C.bload("buffer_load_dwordx2", V(8 + 2 * m, 2), V(16 + m), S(R_IDX, 4), 0)
    if m == 0: srd(C, R_TAB, 18)
C.s("s_mov_b64", "exec", "0xff")
C.bload("buffer_load_dword", "v23", "v7", S(R_TAB, 4), "s15")
C.s("s_mov_b64", "exec", -1)
stamp(C, 1)
C.s("s_cmp_ge_u32", "s2", 14)
C.s("s_cbranch_scc1", "L_CN")
CP = C.fork()
C.label("L_CN")

def c_setup2(C):
    srd_const(C, R_WS, 52 * 1024); srd_const(C, R_OUT, 32768); srd_const(C, R_DBG, 256)
    for r, b in ((R_WS, 36), (R_OUT, 32), (R_DBG, 34)): srd(C, r, b)
    C.v("v_mov_b32", "v2", MISC)
    for r in range(24, 28): C.v("v_mov_b32", V(r), 0)
    C.dsw("ds_write_b128", "v2", "v[24:27]")
    C.v("v_mov_b32", "v5", 0); C.v("v_mov_b32", "v6", 1)
def c_gathers(C, tag):
    gt = []
    for n in range(7):
        if n == 6:
            C.s("s_cmp_eq_u32", "s7", 1); C.s("s_cbranch_scc1", "L_g6" + tag); C.cond = True
        m, e = n // 2, n % 2
        for f in range(2):
            t = 16 + (2 * n + f) % 4
            C.s("s_add_u32", "m0", S(8 + n), X0 + 2048 * f)
            C.v("v_lshlrev_b32_dpp", V(t), V(8 + 2 * m + f), V(8 + 2 * m + f), mods="X")
            C.out.pop()
            C.v("v_mov_b32_dpp", V(t), V(8 + 2 * m + f), mods=("quad_perm:[1,1,3,3]" if e else "quad_perm:[0,0,2,2]") + " row_mask:0xf bank_mask:0xf")
            C.v("v_lshl_add_u32", V(t), V(t), 5, "v4")
            gt.append(C.dma(V(t), S(R_TAB, 4)))
    C.cond = False
    C.label("L_g6" + tag)
    return gt

gt = c_gathers(C, "n")
c_setup2(C)
stamp(C, 2)
C.wait(gt[3]); C.waitcnt(None, 0)
C.s("s_barrier")
stamp(C, 3)
C.waitcnt(0, None)
lds_signal(C, 2, 6, CNT1)
C.label("L_C_join")
stamp(C, 4)

FB = 8
UORD = [0, 1, 4, 5, 2, 3, 6, 7]
RAW = 112
ACC = 112
SACC = 176
KAP, KAP2, MSK = 189, 190, 191
ZR = 192
NSTG = OPT["nstg"]
STGR = 204
RES0 = STGR + 4 * NSTG
def Fr(u, r): return FB + 13 * UORD.index(u) + r
C.v("v_and_b32", "v3", 15, "v1"); C.v("v_lshlrev_b32", "v3", 5, "v3")
C.v("v_lshrrev_b32", "v4", 4, "v1"); C.v("v_xor_b32", "v4", "s7", "v4"); C.v("v_and_b32", "v4", 1, "v4"); C.v("v_lshl_add_u32", "v3", "v4", 4, "v3")
C.v("v_lshrrev_b32", "v4", 5, "v1"); C.v("v_lshl_add_u32", "v3", "v4", 3, "v3")
C.s("s_lshl_b32", "s5", "s7", 9); C.s("s_add_u32", "s5", "s5", "s6"); C.v("v_add_u32", "v3", "s5", "v3")
C.v("v_lshlrev_b32", "v7", 2, "v1")
lds_wait(C, 2, 4, CNT1, 4, "L_C_w1")
stamp(C, 5)
for f in range(26): C.dsr("ds_read_b64", V(RAW + 2 * f, 2), "v3", X0 + f * 2048)
MX, MN = 176, 177
C.v("v_pk_maximum3_f16", V(MX), V(RAW), V(RAW + 1), V(RAW + 1)); C.v("v_pk_minimum3_f16", V(MN), V(RAW), V(RAW + 1), V(RAW + 1))
for f in range(1, 26):
    C.v("v_pk_maximum3_f16", V(MX), V(RAW + 2 * f), V(RAW + 2 * f + 1), V(MX))
    C.v("v_pk_minimum3_f16", V(MN), V(RAW + 2 * f), V(RAW + 2 * f + 1), V(MN))
for r in range(13):
    C.dsr("ds_read_b32", V(Fr(2, r)), "v3", X0 + (2 * r) * 2048 + 4)
    C.dsr("ds_read_b32", V(Fr(3, r)), "v3", X0 + (2 * r + 1) * 2048 + 4)
C.v("v_and_b32", V(MX), "0x7fff7fff", V(MX)); C.v("v_and_b32", V(MN), "0x7fff7fff", V(MN))
C.v("v_pk_max_u16", V(MX), V(MX), V(MN))
C.v("v_lshrrev_b32", V(MN), 16, V(MX)); C.v("v_and_b32", V(MX), "0xffff", V(MX)); C.v("v_max_u32", V(MX), V(MX), V(MN))
C.v("v_mov_b32", V(MN), V(MX))
C.v("v_mov_b32", V(MSK), "0xfff8fff8")
C.s("s_mov_b32", "s12", "0x05040100")
C.v("v_permlane32_swap_b32", V(MX), V(MN))
C.v("v_max_u32", V(MX), V(MX), V(MN))
C.v("v_lshrrev_b32", V(MX), 7, V(MX)); C.v("v_max_u32", V(MX), 127, V(MX)); C.v("v_min_u32", V(MX), 254, V(MX))
SCL = 4
C.v("v_sub_u32", V(MN), 260, V(MX)); C.v("v_lshlrev_b32", V(SCL), 23, V(MN))
C.v("v_lshlrev_b32", V(MX), 2, V(MX)); C.v("v_subrev_u32", "v3", 4 * 133 + 282, V(MX))
C.v("v_cvt_pkrtz_f16_f32", V(KAP), V(SCL), V(SCL))
C.v("v_pk_mul_f16", V(KAP2), V(KAP), V(KAP)); C.v("v_and_b32", V(KAP2), "0xffff", V(KAP2))
def conv_ops(kk, srcs, T0, nt):
    L = []
    for r in range(13):
        a, b = srcs(r)
        t = T0 + 4 * (r % nt)
        lo, hi = Fr(2 * kk, r), Fr(2 * kk + 1, r); rp = (r - 1) % 13
        L += [("v_lshlrev_b32", V(t), 16, V(a), ""), ("v_lshlrev_b32", V(t + 1), 16, V(b), ""),
              ("v_mul_f32", V(t + 2), V(SCL), V(a), ""), ("v_mul_f32", V(t + 3), V(SCL), V(b), ""),
              ("v_mul_f32", V(t), V(SCL), V(t), ""), ("v_mul_f32", V(t + 1), V(SCL), V(t + 1), ""),
              ("v_cvt_pkrtz_f16_f32", V(hi), V(t + 2), V(t + 3), ""), ("v_cvt_pkrtz_f16_f32", V(lo), V(t), V(t + 1), ""),
              ("v_and_b32", V(hi), V(MSK), V(hi), ""),
              ("v_cvt_pkrtz_f16_f32", V(Fr(4 + 2 * kk, rp)), V(t + 1), V(t), ""),
              ("v_alignbit_b32", V(Fr(5 + 2 * kk, rp)), V(hi), V(hi), 16, "")]
        if r >= 2:
            for k in range(2): L.append(("v_permlane32_swap_b32", V(Fr(2 * kk + k, r - 2)), V(Fr(4 + 2 * kk + k, r - 2)), ""))
    for r in (12, 11):
        for k in range(2): L.append(("v_permlane32_swap_b32", V(Fr(2 * kk + k, r)), V(Fr(4 + 2 * kk + k, r)), ""))
    return L
def emitv(st, o): st.v(o[0], o[1], *o[2:-1], mods=o[-1])
FLG = 188
C.s("s_mov_b32", "s8", "0x11ffffff"); C.s("s_mov_b32", "s9", "0x11ffffff")
ops0 = conv_ops(0, lambda r: (RAW + 4 * r, RAW + 4 * r + 2), 192, 3)
for i, o in enumerate(ops0):
    if i == len(ops0) - 60:
        C.s("s_cmp_lg_u32", "s3", 0); C.s("s_cbranch_scc1", "L_C_nopoll"); C.cond = True
        C.bload("buffer_load_dword", V(FLG), "v7", S(R_DBG, 4), 0, mods=SC1)
        C.cond = False; C.label("L_C_nopoll")
    emitv(C, o)
stamp(C, 6)
AL = 204
C.v("v_lshlrev_b32", V(187), 4, "v1")
C.v("v_and_b32", V(186), 31, "v1"); C.v("v_lshrrev_b32", V(185), 5, "v1")
C.s("s_cmp_ge_u32", "s3", 2); C.s("s_cselect_b32", "s5", 22 * FSTR, 0); C.s("s_cselect_b32", "s10", 24, 22); C.s("s_add_u32", "s5", "s5", AIMG)
C.s("s_mul_i32", "s11", "s7", 13 * 16); C.s("s_add_u32", "s5", "s5", "s11")
C.v("v_cmp_gt_u32", "s[14:15]", "s10", V(186))
C.v("v_mul_u32_u24", V(186), FSTR, V(186)); C.v("v_lshl_add_u32", V(186), V(185), 9, V(186)); C.v("v_add_u32", V(186), "s5", V(186))
C.s("s_mul_i32", "s11", "s7", 48); C.v("v_add_u32", V(185), "s11", V(186))
C.s("s_mul_i32", "s13", "s3", 13 * 1024)
C.s("s_cmp_lg_u32", "s3", 0); C.s("s_cbranch_scc1", "L_C_w0")
C.s("s_mov_b32", "s10", 1 << 17)
C.label("L_C_poll")
C.waitcnt(0, None)
C.v("v_cmp_ne_u32", "vcc", 0, V(FLG))
C.s("s_and_b64", "vcc", "vcc", "s[8:9]"); C.s("s_cmp_eq_u64", "vcc", "s[8:9]")
C.s("s_cbranch_scc1", "L_C_got")
C.s("s_sub_u32", "s10", "s10", 1); C.s("s_cmp_eq_u32", "s10", 0); C.s("s_cbranch_scc1", "L_C_got")
C.s("s_sleep", 4)
C.bload("buffer_load_dword", V(FLG), "v7", S(R_DBG, 4), 0, mods=SC1)
C.s("s_branch", "L_C_poll")
C.label("L_C_got")
C.vm = []
C.dsw("ds_write_b32", "v2", "v6", RDY)
C.v("v_mov_b32", V(184), V(FLG)); C.v("v_add_u32", V(183), "v2", "v7")
C.v("v_permlane32_swap_b32", V(FLG), V(184)); C.v("v_add_u32", V(184), V(184), V(FLG))
C.s("s_mov_b32", "exec_hi", 0)
C.dsw("ds_write_b32", V(183), V(184), ESUM)
C.s("s_mov_b64", "exec", -1)
C.s("s_branch", "L_C_ready")
C.label("L_C_w0s")
C.s("s_sleep", 1)
C.label("L_C_w0")
C.dsr("ds_read_b32", V(184), "v2", RDY); C.waitcnt(None, 0)
C.v("v_readfirstlane_b32", "s5", V(184)); C.s("s_cmp_eq_u32", "s5", 0); C.s("s_cbranch_scc1", "L_C_w0s")
C.label("L_C_ready")
stamp(C, 7)
C.s("s_mov_b64", "exec", "s[14:15]")
for n in range(13):
    if n % 4 == 0 and n: C.s("s_add_u32", "s13", "s13", 4096)
    C.bload("buffer_load_dwordx4", V(AL + 4 * n, 4), V(187), S(R_WS, 4), "s13", (n % 4) * 1024, mods=SC1)
C.s("s_mov_b64", "exec", -1)
ops1 = conv_ops(1, lambda r: (Fr(2, r), Fr(3, r)), RAW + 64 - 8, 2)
NPRE = 66
for o in ops1[:NPRE]: emitv(C, o)
ops1 = ops1[NPRE:]
C.s("s_mov_b64", "exec", "s[14:15]")
for n in range(13):
    C.dsw("ds_write_b128", V(185 if n == 12 else 186), V(AL + 4 * n, 4), n * 16)
C.s("s_mov_b64", "exec", -1)
C.v("v_add_u32", "v7", AIMG, V(187))
C.waitcnt(None, 0)
lds_signal(C, 2, 6, CNT2)
for k in range(13): C.v("v_mov_b32", V(SACC + k), 0)
C.s("s_setprio", 1)

order = list(range(22, 24)) + list(range(22))
steps = [(n, ks) for n in range(8) for ks in order]
slots = []
for si, (n, ks) in enumerate(steps):
    if ks < 22: slots.append((si, 0))
    slots.append((si, 1))
def zops(si):
    n, ks = steps[si]; u = UORD[n]; q = ZR + 4 * (si % 3); L = []
    for j in range(4):
        ins = sm.dwords[4 * ks + j]; d = V(q + j)
        if ins[0] == 'A': L.append(("v_pk_mul_f16", d, V(Fr(u, ins[1])), V(Fr(u, ins[2])), "op_sel:[0,0] op_sel_hi:[0,1]"))
        elif ins[0] == 'D': L.append(("v_pk_mul_f16", d, V(Fr(u, ins[1])), V(Fr(u, ins[1])), "op_sel:[0,0] op_sel_hi:[0,1]"))
        elif ins[0] == 'E':
            L.append(("v_perm_b32", d, V(Fr(u, ins[2])), V(Fr(u, ins[1])), "s12", ""))
            L.append(("v_pk_mul_f16", d, d, d, ""))
        elif ins[0] == 'L': L.append(("v_pk_mul_f16", d, V(Fr(u, ins[1])), V(KAP), ""))
        else: L.append(("v_mov_b32", d, V(KAP2), ""))
    return L
for si in (0, 1):
    for o in zops(si): emitv(C, o)
lds_wait(C, 2, 255, CNT2, 4, "L_C_w2")
stamp(C, 8)
resident = {}
free_quads = list(range(RES0, 253, 4))
LOOK = NSTG - 1
stg_next = [0]; slot_reg = {}
def plan_read(i):
    si, blk = slots[i]; n, ks = steps[si]; fid = frag_id(blk, ks)
    if fid in resident: slot_reg[i] = resident[fid]; return
    if free_quads and n < 7:
        reg = free_quads.pop(0); resident[fid] = reg
    else:
        reg = STGR + 4 * stg_next[0]; stg_next[0] = (stg_next[0] + 1) % NSTG
    slot_reg[i] = reg
    C.dsr("ds_read_b128", V(reg, 4), "v7", fid * FSTR)
for i in range(LOOK): plan_read(i)
pend = []; freed_upto = FB; first_of = {}; epi = []
EXR = 84
tail_pre = []
for i, (si, blk) in enumerate(slots):
    n, ks = steps[si]
    newstep = i == 0 or slots[i - 1][0] != si
    if newstep:
        assert not pend
        if si + 2 < len(steps): pend = zops(si + 2)
        if ks == order[0] and n > 0:
            a = ACC + 32 * ((n - 1) & 1)
            epi = [("v_fmac_f32", V(SACC + k), V(a + k), V(a + 16 + k), "") for k in range(13)]
            epi_at = i + 3
            lim = FB + 13 * n
            while freed_upto + 4 <= lim and n < 7:
                free_quads.append(freed_upto); freed_upto += 4
            if n == 1: assert not ops1, len(ops1)
            if n == 7:
                assert freed_upto == EXR
                T1, T2 = 97, 98
                tail_pre = [
                  ("v", "v_lshrrev_b32", V(T1), 5, "v1", ""), ("v", "v_lshl_add_u32", V(T1), V(T1), 4, "v2", ""),
                  ("r", "ds_read_b128", V(EXR, 4), V(T1), ESUM), ("r", "ds_read_b128", V(EXR + 4, 4), V(T1), ESUM + 32),
                  ("r", "ds_read_b128", V(EXR + 8, 4), V(T1), ESUM + 64), ("r", "ds_read_b32", V(EXR + 12), V(T1), ESUM + 96),
                  ("g",),
                  ("v", "v_lshrrev_b32", V(T1), 4, "v1", ""), ("v", "v_mul_u32_u24", V(T1), RSZ, V(T1), ""), ("v", "v_and_b32", "v5", 15, "v1", ""),
                  ("v", "v_lshl_add_u32", V(T1), "v5", 2, V(T1), ""), ("s", "s_lshl_b32", "s5", "s3", 6), ("s", "s_add_u32", "s5", "s5", RING),
                  ("v", "v_add_u32", V(T1), "s5", V(T1), ""),
                  ("s", "s_mul_i32", "s5", "s3", RSZ), ("s", "s_add_u32", "s5", "s5", RING + 256), ("v", "v_lshl_add_u32", V(T2), "v1", 2, "s5", ""),
                  ("v", "v_lshlrev_b32", "v5", 1, "v5", ""),
                  ("s", "s_lshl_b32", "s13", "s2", 2), ("s", "s_add_u32", "s13", "s13", "s3"), ("s", "s_lshl_b32", "s13", "s13", 5),
                ] + [("v", "v_add_u32", V(EXR + k), V(EXR + k), "v3", "") for k in range(13)] + [("v", "v_lshlrev_b32", "v6", 16, "v6", "")]
    last_in_step = i + 1 == len(slots) or slots[i + 1][0] != si
    if i + LOOK < len(slots): plan_read(i + LOOK)
    acc = ACC + 32 * (n & 1) + 16 * blk
    first = (n, blk) not in first_of; first_of[(n, blk)] = 1
    C.mfma("v_mfma_f32_32x32x16_f16", V(acc, 16), V(slot_reg[i], 4), V(ZR + 4 * (si % 3), 4), 0 if first else V(acc, 16))
    cnt = len(pend) if last_in_step else (len(pend) + 1) // 2
    for o in pend[:cnt]: emitv(C, o)
    pend = pend[cnt:]
    if epi and i >= epi_at:
        for _ in range(2):
            if epi: emitv(C, epi.pop(0))
    elif ops1 and cnt <= 2:
        for _ in range(3):
            if ops1: emitv(C, ops1.pop(0))
    elif tail_pre and not epi and cnt <= 2:
        for _ in range(2):
            if not tail_pre: break
            o = tail_pre.pop(0)
            if o[0] == "v": emitv(C, o[1:])
            elif o[0] == "r": C.dsr(*o[1:])
            elif o[0] == "s": C.s(*o[1:])
            else: C.gload("global_load_ushort", "v6", "v5", "s[30:31]")
    if i == len(slots) - 4:
        assert not tail_pre
        C.dsr("ds_read_b32", V(ZR), "v2", CNT3) if False else None
        C.dsr("ds_read_b32", V(KAP), "v2", CNT3); C.dsr("ds_read_b32", V(KAP2), V(97)); C.dsr("ds_read_b32", V(MSK), V(98))
stamp(C, 9)
a = ACC + 32
C.v("v_readfirstlane_b32", "s5", V(KAP))
C.s("s_cmp_ge_u32", "s5", 4)
C.s("s_cbranch_scc1", "L_C_fin")
lds_wait(C, 2, KAP, CNT3, 4, "L_C_w3", sleep=1)
C.dsr("ds_read_b32", V(KAP2), V(97)); C.dsr("ds_read_b32", V(MSK), V(98))
C.label("L_C_fin")
C.waitcnt(None, 0)
C.v("v_add_f32", V(KAP2), V(KAP2), V(MSK))
C.raw("s_nop 7", 'nop'); C.out[-1].states = 8
for k in range(13): C.v("v_fmac_f32", V(SACC + k), V(a + k), V(a + 16 + k))
for k in range(13): C.v("v_ldexp_f32", V(SACC + k), V(SACC + k), V(EXR + k))
C.v("v_add_f32", V(SACC + 12), V(SACC + 12), V(KAP2))
for st_ in (1, 2, 4, 8):
    for k in range(0, 13, 2 * st_):
        if k + st_ < 13: C.v("v_add_f32", V(SACC + k), V(SACC + k), V(SACC + k + st_))
C.v("v_mov_b32", V(SACC + 1), V(SACC)); C.v("v_permlane32_swap_b32", V(SACC), V(SACC + 1)); C.v("v_add_f32", V(SACC), V(SACC), V(SACC + 1))
C.v("v_mov_b32", V(SACC + 1), V(SACC)); C.v("v_permlane16_swap_b32", V(SACC), V(SACC + 1)); C.v("v_add3_u32", V(SACC + 2), 0, 0, 0) if False else None
C.v("v_add_f32", V(SACC), V(SACC), V(SACC + 1))
C.v("v_add_f32", V(SACC), V(SACC), "v6")
C.v("v_cvt_pk_bf16_f32", V(SACC), V(SACC), V(SACC))
C.s("s_mov_b64", "exec", "0xffff")
C.bstore("buffer_store_short", V(SACC), "v5", S(R_OUT, 4), "s13")
if STAMPS:
    C.s("s_mov_b64", "exec", -1)
    stamp(C, 10)
    dump_stamps(C, 250, 251)
C.s("s_endpgm")

W3R, NF, LUT, IDN, MF, TD, TF, SD, FAC = 64, 116, 124, 140, 148, 160, 176, 184, 200
def producer(Q, typ):
    tag = "u" if typ == 1 else "x"
    Q.s("s_setprio", 3)
    srd_const(Q, R_CIN, 105456); srd(Q, R_CIN, 20)
    if typ == 1:
        Q.v("v_lshlrev_b32", "v28", 3, "v0")
        Q.sload("s_load_dwordx8", "s[80:87]", "s[22:23]", 104)
        Q.sload("s_load_dwordx4", "s[88:91]", "s[22:23]", 136)
        Q.sload("s_load_dword", "s92", "s[22:23]", 152)
        Q.v("v_mov_b32", "v29", "0x100000"); Q.v("v_cmp_gt_u32", "vcc", 169, "v0"); Q.v("v_cndmask_b32", "v29", "v29", "v28", "vcc")
        for h in range(26):
            if h % 4 == 0: Q.s("s_mov_b32", "s5", 70304 + h * 1352)
            Q.bload("buffer_load_dwordx2", V(W3R + 2 * h, 2), "v29", S(R_CIN, 4), "s5", (h % 4) * 1352)
        Q.s("s_lshl_b32", "s39", "s2", 2)
    else:
        Q.s("s_sub_u32", "s39", "s2", 7); Q.s("s_lshl_b32", "s39", "s39", 2)
    Q.s("s_add_u32", "s39", "s39", "s3")
    Q.s("s_mul_i32", "s93", "s39", 52 if typ == 1 else 1352)
    if typ == 1: Q.s("s_add_u32", "s93", "s93", 35152)
    Q.v("v_and_b32", "v29", 31, "v1"); Q.v("v_lshrrev_b32", "v30", 5, "v1")
    Q.v("v_mul_u32_u24", "v31", 1352 if typ == 1 else 52, "v29"); Q.v("v_lshl_add_u32", "v31", "v30", 4, "v31")
    Q.bload("buffer_load_dwordx4", V(NF, 4), "v31", S(R_CIN, 4), "s93")
    Q.bload("buffer_load_dwordx4", V(NF + 4, 4), "v31", S(R_CIN, 4), "s93", 32)
    Q.raw("s_add_u32 s94, s94, L_lut-L_pc", 'salu'); Q.raw("s_addc_u32 s95, s95, 0", 'salu')
    Q.v("v_lshlrev_b32", "v32", 4, "v1")
    for c in range(4): Q.gload("global_load_dwordx4", V(LUT + 4 * c, 4), "v32", "s[94:95]", c * 1024)
    if typ == 1:
        Q.v("v_lshlrev_b32", "v33", 1, "v29"); Q.v("v_min_u32", "v33", 50, "v33")
        Q.gload("global_load_ushort", "v34", "v33", "s[22:23]", 52)
        Q.s("s_min_u32", "s5", "s39", 25); Q.s("s_lshl_b32", "s5", "s5", 1); Q.v("v_mov_b32", "v35", "s5")
        Q.gload("global_load_ushort", "v35", "v35", "s[22:23]", 0)
    Q.s("s_branch", "L_P2" + tag)
    Q.label("L_P2" + tag)
    gt = c_gathers(Q, tag)
    c_setup2(Q)
    stamp(Q, 2)
    Q.v("v_and_b32", "v36", 1, "v29"); Q.v("v_lshlrev_b32", "v36", 4, "v36")
    Q.v("v_mov_b32", "v37", "0x3f80"); Q.v("v_lshlrev_b32", "v37", "v36", "v37")
    Q.v("v_cmp_gt_u32", "vcc", 26, "v29"); Q.v("v_lshrrev_b32", "v38", 1, "v29")
    Q.v("v_lshlrev_b32", "v39", 2, "v30"); Q.v("v_cndmask_b32", "v37", 0, "v37", "vcc")
    Q.v("v_sub_u32", "v39", "v38", "v39")
    Q.v("v_lshlrev_b32", "v40", 1, "v30"); Q.v("v_sub_u32", "v40", "v38", "v40")
    def ident(dst, vsel, key):
        for s_ in range(2):
            for m in range(0, 4, 2):
                Q.v("v_cmp_eq_u32", "vcc", key(s_, m), vsel); Q.v("v_cmp_eq_u32", "s[96:97]", key(s_, m + 1), vsel)
                Q.v("v_cndmask_b32", V(dst + 4 * s_ + m), 0, "v37", "vcc"); Q.v("v_cndmask_b32", V(dst + 4 * s_ + m + 1), 0, "v37", "s[96:97]")
    ident(IDN, "v39", lambda s_, m: 8 * s_ + m)
    if typ == 2: ident(MF, "v40", lambda s_, m: 8 * s_ + 4 * (m >> 1) + (m & 1))
    Q.s("s_lshl_b32", "s5", "s3", 10); Q.s("s_add_u32", "s98", "s5", STG)
    Q.v("v_add_u32", "v41", "s98", "v32")
    Q.dsw("ds_write_b128", "v41", "v[24:27]")
    if typ == 1:
        for k in range(4): Q.v("v_mov_b32", V(44 + k), 0)
        for h in range(26):
            sd = S(80 + h // 2)
            if h % 2 == 0: Q.s("s_and_b32", "s96", sd, "0xffff"); Q.s("s_lshl_b32", "s97", sd, 16)
            else: Q.s("s_lshr_b32", "s96", sd, 16); Q.s("s_and_b32", "s97", sd, "0xffff0000")
            Q.v("v_dot2_f32_bf16", "v44", V(W3R + 2 * h), "s96", "v44"); Q.v("v_dot2_f32_bf16", "v45", V(W3R + 2 * h), "s97", "v45")
            Q.v("v_dot2_f32_bf16", "v46", V(W3R + 2 * h + 1), "s96", "v46"); Q.v("v_dot2_f32_bf16", "v47", V(W3R + 2 * h + 1), "s97", "v47")
        Q.v("v_cmp_gt_u32", "vcc", 26, "v29"); Q.v("v_mul_u32_u24", "v42", 52, "v29")
        Q.v("v_cvt_pk_bf16_f32", "v44", "v44", "v45"); Q.v("v_cvt_pk_bf16_f32", "v45", "v46", "v47")
        Q.dsw("ds_write_b64", "v28", "v[44:45]", M3B)
        Q.v("v_cndmask_b32", "v34", 0, "v34", "vcc")
        Q.dsw("ds_write_b32", "v42", "v34", AUX)
    Q.mfma("v_mfma_f32_32x32x16_bf16", V(TD, 16), V(NF, 4), V(IDN, 4), 0)
    Q.mfma("v_mfma_f32_32x32x16_bf16", V(TD, 16), V(NF + 4, 4), V(IDN + 4, 4), V(TD, 16))
    if typ == 1:
        Q.v("v_lshlrev_b32", "v42", 1, "v29"); Q.v("v_mov_b32", "v43", 2048 + 2); Q.v("v_cndmask_b32", "v42", "v43", "v42", "vcc")
        Q.v("v_cmp_eq_u32", "vcc", 26, "v29"); Q.v("v_mov_b32", "v43", 2048); Q.v("v_mul_u32_u24", "v33", 4 * 52, "v30"); Q.v("v_cndmask_b32", "v42", "v42", "v43", "vcc")
        Q.v("v_add_u32", "v42", "v42", "v33")
        Q.wait(gt[3]); Q.waitcnt(None, 0)
        Q.s("s_barrier")
        stamp(Q, 3)
        for s_ in range(2):
            for j in range(8):
                i0 = 16 * s_ + 8 * (j // 4) + j % 4
                Q.dsr("ds_read_u16", V(W3R + 16 + 8 * s_ + j), "v42", M3B + i0 * 52)
    for k in range(15):
        Q.v("v_and_b32", V(FAC + k), "0xffff0000", V(LUT + k))
        Q.v("v_and_b32", V(LUT + k), "0xffff", V(LUT + k))
        Q.v("v_add_u32", V(LUT + k), "s98", V(LUT + k))
        if k == 3:
            for m in range(8): Q.v("v_cvt_pk_bf16_f32", V(TF + m), V(TD + 2 * m), V(TD + 2 * m + 1))
            if typ == 1:
                for m in range(8): Q.v("v_lshl_or_b32", V(MF + m), V(W3R + 17 + 2 * m), 16, V(W3R + 16 + 2 * m))
        mm = {4: (TF, MF, 0), 6: (TF + 4, MF + 4, V(SD, 16)), 8: (MF, TF, V(SD, 16)), 10: (MF + 4, TF + 4, V(SD, 16))}.get(k)
        if mm: Q.mfma("v_mfma_f32_32x32x16_bf16", V(SD, 16), V(mm[0], 4), V(mm[1], 4), mm[2])
    ne = 15 if typ == 1 else 14
    Q.s("s_add_u32", "s5", "s39", 26 if typ == 1 else 0); Q.s("s_lshl_b32", "s38", "s5", 10)
    Q.s("s_cmp_eq_u32", "s39", 25); Q.s("s_cselect_b32", "s93", 28, "s39"); Q.s("s_lshl_b32", "s93", "s93", 2)
    if typ == 1: Q.s("s_add_u32", "s93", "s93", 128)
    if typ == 1: Q.v("v_lshlrev_b32", V(SD + 14), 16, "v35")
    for k in range(ne): Q.v("v_mul_f32", V(SD + k), V(SD + k), V(FAC + k))
    Q.v("v_max3_f32", "v44", f"|{V(SD)}|", f"|{V(SD+1)}|", f"|{V(SD+ne-1)}|")
    for k in range(2, 14, 2): Q.v("v_max3_f32", "v44", f"|{V(SD+k)}|", f"|{V(SD+k+1)}|", "v44")
    for sh in (8, 4, 2, 1): Q.v("v_max_f32_dpp", "v44", "v44", "v44", mods=f"row_ror:{sh} row_mask:0xf bank_mask:0xf")
    for q in range(4): Q.v("v_readlane_b32", S(80 + q), "v44", 16 * q)
    Q.s("s_max_u32", "s80", "s80", "s81"); Q.s("s_max_u32", "s82", "s82", "s83"); Q.s("s_max_u32", "s80", "s80", "s82")
    Q.s("s_lshr_b32", "s80", "s80", 23); Q.s("s_max_u32", "s80", "s80", 67); Q.s("s_min_u32", "s80", "s80", 187)
    Q.s("s_sub_u32", "s81", 268, "s80"); Q.s("s_lshl_b32", "s81", "s81", 23)
    for k in range(ne):
        Q.v("v_mul_f32", V(SD + k), "s81", V(SD + k))
        if k: Q.v("v_cvt_f16_f32", V(SD + k - 1), V(SD + k - 1)); Q.dsw("ds_write_b16", V(LUT + k - 1), V(SD + k - 1))
    Q.v("v_cvt_f16_f32", V(SD + ne - 1), V(SD + ne - 1)); Q.dsw("ds_write_b16", V(LUT + ne - 1), V(SD + ne - 1))
    Q.dsr("ds_read_b128", "v[44:47]", "v41")
    Q.v("v_mov_b32", "v48", "s80")
    Q.s("s_cmp_ge_u32", "s39", 26)
    Q.s("s_cbranch_scc1", "L_P_skip" + tag)
    Q.cond = True
    Q.bstore("buffer_store_dwordx4", "v[44:47]", "v32", S(R_WS, 4), "s38", mods=SC1)
    Q.cond = False
    Q.label("L_P_skip" + tag)
    if typ == 2:
        Q.wait(gt[3]); Q.waitcnt(None, 0)
        Q.s("s_barrier")
        stamp(Q, 3)
    Q.waitcnt(0, 0)
    Q.s("s_cmp_ge_u32", "s39", 26)
    Q.s("s_cbranch_scc1", "L_P_skip2" + tag)
    Q.s("s_mov_b64", "exec", 1)
    Q.bstore("buffer_store_dword", "v48", "v5", S(R_DBG, 4), "s93", mods=SC1)
    Q.label("L_P_skip2" + tag)
    lds_signal(Q, 2, 6, CNT1)
    Q.s("s_setprio", 0)
    Q.s("s_branch", "L_C_join")
CP.s("s_cmp_ge_u32", "s2", 7)
CP.s("s_cbranch_scc1", "L_CX")
CX = CP.fork()
producer(CP, 1)
CX.label("L_CX")
producer(CX, 2)

D.label("L_D2")
D.v("v_lshrrev_b32", "v12", 5, "v1")
D.v("v_bfe_u32", "v13", "v1", 2, 2); D.v("v_lshl_add_u32", "v13", "v12", 3, "v13"); D.v("v_mul_u32_u24", "v13", 192, "v13")
D.v("v_and_b32", "v14", 1, "v1"); D.v("v_lshl_add_u32", "v13", "v14", 5, "v13")
D.v("v_bfe_u32", "v14", "v1", 1, 1); D.v("v_lshl_add_u32", "v13", "v14", 3, "v13")
D.v("v_bfe_u32", "v14", "v1", 4, 1); D.v("v_lshl_add_u32", "v13", "v14", 4, "v13")
D.v("v_add_u32", "v5", "s7", "v13")
D.v("v_xor_b32", "v14", "v14", "v12"); D.v("v_and_b32", "v13", 31, "v1"); D.v("v_lshlrev_b32", "v13", 5, "v13"); D.v("v_lshl_add_u32", "v6", "v14", 4, "v13")
D.s("s_lshl_b32", "s5", "s6", 10); D.s("s_add_u32", "s5", "s5", DSC)
D.v("v_lshl_add_u32", "v13", "v1", 3, "s5")
D.v("v_lshl_add_u32", "v14", "v12", 6, "s5")
D.v("v_lshrrev_b32", "v15", 4, "v1"); D.v("v_lshl_add_u32", "v15", "v15", 4, "s5")
D.v("v_mov_b32", V(DT + 4), f32(2.0 ** 100))
D.v("v_mov_b32", "v8", MISC); D.v("v_mov_b32", "v9", 1)
D.s("s_lshl_b32", "s10", "s4", 12)
D.v("v_add_u32", "v7", "s10", "v6")
D.v("v_lshlrev_b32", V(DT), 16, "v10"); D.v("v_and_b32", V(DT + 1), "0xffff0000", "v10")
D.dsw("ds_write_b64", "v13", V(DT, 2))
D.v("v_lshlrev_b32", V(DT + 2), 16, "v11"); D.v("v_and_b32", V(DT + 3), "0xffff0000", "v11")
for b in range(3):
    for g in range(4): D.dsr("ds_read_b128", V(DACC + 32 * b + 4 * g, 4), "v14", 128 * b + 16 * g)
D.v("v_rcp_f32", V(DT + 2), V(DT + 2)); D.v("v_rcp_f32", V(DT + 3), V(DT + 3))
for T in range(2): D.dsr("ds_read_b128", V(B12 + 4 * T, 4), "v15", 384 + 64 * T)
D.v("v_med3_f32", V(DT + 2), V(DT + 2), V(DT + 4), "-" + V(DT + 4)); D.v("v_med3_f32", V(DT + 3), V(DT + 3), V(DT + 4), "-" + V(DT + 4))
D.dsw("ds_write_b64", "v13", V(DT + 2, 2), 512)
def w_reads(t):
    return [("ds_read_b64_tr_b16", V(WF + 12 * (t & 1) + 4 * b + 2 * h, 2), "v5", (t % NS) * 3072 + 64 * b + 768 * h) for b in range(3) for h in range(2)]
def x_reads(t): return [("ds_read_b128", V(XF + 8 * (t & 1) + 4 * cb, 4), "v7", X0 + (t & 1) * 2048 + cb * 1024) for cb in (1, 0)]
D.wait(dmat[0])
for o in w_reads(0): D.dsr(*o)
for b in range(3):
    for g in range(4): D.dsr("ds_read_b128", V(IW + 16 * b + 4 * g, 4), "v14", 512 + 128 * b + 16 * g)
for T in range(2): D.dsr("ds_read_b128", V(IW12 + 4 * T, 4), "v15", 512 + 384 + 64 * T)
stamp(D, 2)
for t in range(OPT["early"], NS):
    for m in range(3): w_m0(t, m); w_piece(t, m)
    w_adv(t)
D.waitcnt(None, 0)
D.s("s_barrier")
stamp(D, 3)
for o in x_reads(0): D.dsr(*o)
b12_groups = [list(range(0, 7)), list(range(7, 13))] if NS >= 5 else [list(range(0, 5)), list(range(5, 9)), list(range(9, 13))]
for t in range(26):
    nxt = t + 1 < 26
    wr = w_reads(t + 1) if nxt else []
    xr = x_reads(t + 1) if nxt else []
    dm = t + NS < 26
    k = 0
    for b in range(3):
        for cb in (1, 0):
            acc = DACC + 32 * b + 16 * cb
            srcc = V(DACC + 32 * b, 16) if t == 0 else V(acc, 16)
            D.mfma("v_mfma_f32_32x32x16_bf16", V(acc, 16), V(WF + 12 * (t & 1) + 4 * b, 4), V(XF + 8 * (t & 1) + 4 * cb, 4), srcc)
            if k == 0 and nxt:
                if (t + 1) % 2 == 0:
                    D.s("s_add_u32", "s10", "s10", 4096); D.s("s_cmp_eq_u32", "s10", 13 * 4096); D.s("s_cselect_b32", "s10", 0, "s10")
                if t == 7:
                    D.v("v_readfirstlane_b32", "s5", V(DT)); D.s("s_cmp_ge_u32", "s5", 4); D.s("s_cbranch_scc1", "L_D_ok1")
                    lds_wait(D, 8, DT, CNT1, 4, "L_D_w1")
                    D.label("L_D_ok1")
            if k == 1 and nxt:
                D.wait(dmat[t + 1])
                for o in wr[:4]: D.dsr(*o)
                if (t + 1) % 2 == 0: D.v("v_add_u32", "v7", "s10", "v6")
            if k == 2 and nxt:
                if dm: w_m0(t + NS, 0)
                for o in wr[4:] + xr: D.dsr(*o)
                if t == 6: D.dsr("ds_read_b32", V(DT), "v8", CNT1)
            if k >= 3 and dm:
                w_piece(t + NS, k - 3)
                if k < 5: w_m0(t + NS, k - 2)
                else: w_adv(t + NS)
            k += 1
stamp(D, 4)
D.s("s_setprio", 0)
D.v("v_lshrrev_b32", "v10", 2, "v1"); D.v("v_mul_u32_u24", "v10", 832, "v10")
D.v("v_lshrrev_b32", "v11", 4, "v1"); D.v("v_and_b32", "v11", 2, "v11"); D.v("v_xor_b32", "v11", "v11", "v1"); D.v("v_and_b32", "v11", 3, "v11")
D.v("v_lshl_add_u32", "v2", "v11", 4, "v10"); D.v("v_add_u32", "v2", 768, "v2")
D.v("v_lshrrev_b32", "v10", 4, "v1"); D.v("v_bfe_u32", "v11", "v1", 2, 2); D.v("v_lshl_add_u32", "v11", "v10", 3, "v11"); D.v("v_lshlrev_b32", "v11", 6, "v11")
D.v("v_and_b32", "v12", 1, "v10"); D.v("v_lshl_add_u32", "v11", "v12", 5, "v11"); D.v("v_and_b32", "v13", 3, "v1"); D.v("v_lshl_add_u32", "v11", "v13", 3, "v11")
D.v("v_xor_b32", "v13", 32, "v11"); D.v("v_add_u32", "v3", "s7", "v11"); D.v("v_add_u32", "v4", "s7", "v13")
D.s("s_and_b32", "s5", "s6", 1); D.v("v_xor_b32", "v12", "s5", "v12"); D.v("v_lshrrev_b32", "v10", 1, "v10"); D.v("v_lshlrev_b32", "v10", 11, "v10")
D.v("v_lshl_add_u32", "v10", "v12", 4, "v10"); D.v("v_and_b32", "v13", 15, "v1"); D.v("v_lshl_add_u32", "v10", "v13", 5, "v10")
D.s("s_lshl_b32", "s5", "s6", 9); D.v("v_add_u32", "v7", "s5", "v10")
def b12_dma(grp):
    tk = None
    for n, t in enumerate(grp):
        for h in range(2):
            D.s("s_add_u32", "m0", "s7", n * 2048 + 1024 * h)
            D.s("s_mov_b32", "s9", (32 * t + 16 * h) * 832)
            tk = D.dma("v2", S(R_W1, 4), "s9")
    return tk
def b12_rd(n, t):
    o = 12 * (n % 3)
    D.dsr("ds_read_b128", V(WF + o + 8, 4), "v7", X0 + t * 4096)
    for T in range(2):
        for h in range(2): D.dsr("ds_read_b64_tr_b16", V(WF + o + 4 * T + 2 * h, 2), V(3 + T), n * 2048 + 256 * h)
def b12_mm(grp, tk):
    D.wait(tk)
    for n in range(min(2, len(grp))): b12_rd(n, grp[n])
    for n, t in enumerate(grp):
        if n + 2 < len(grp): b12_rd(n + 2, grp[n + 2])
        o = 12 * (n % 3)
        for T in range(2):
            D.mfma("v_mfma_f32_16x16x32_bf16", V(B12 + 4 * T, 4), V(WF + o + 4 * T, 4), V(WF + o + 8, 4), V(B12 + 4 * T, 4))
VK1, VK2, S0, S1, S2 = DT, DT + 1, DT + 2, DT + 3, DT + 4
D.v("v_mov_b32", V(VK1), f32(K1)); D.v("v_mov_b32", V(VK2), f32(K2))
for r in (S0, S1, S2): D.v("v_mov_b32", V(r), 0)
GT = DT + 8
def gelu(items):
    for g0 in range(0, len(items), 4):
        grp = items[g0:g0 + 4]
        t = [GT + 4 * ((g0 // 4) & 1) + i for i in range(len(grp))]
        for (x, w, s), r in zip(grp, t): D.v("v_mul_f32", V(r), V(x), V(x))
        for (x, w, s), r in zip(grp, t): D.v("v_fma_f32", V(r), V(r), V(VK2), V(VK1))
        for (x, w, s), r in zip(grp, t): D.v("v_mul_f32", V(r), V(x), V(r))
        for (x, w, s), r in zip(grp, t): D.v("v_exp_f32", V(r), V(r))
        for (x, w, s), r in zip(grp, t): D.v("v_fma_f32", V(r), V(r), V(w), V(w))
        for (x, w, s), r in zip(grp, t): D.v("v_rcp_f32", V(r), V(r))
        for (x, w, s), r in zip(grp, t): D.v("v_fmac_f32", V(s), V(x), V(r))
for b in range(3):
    tk = None
    if b < len(b12_groups):
        D.waitcnt(None, 0)
        tk = b12_dma(b12_groups[b])
    its = []
    for k in range(16):
        its.append((DACC + 32 * b + k, IW + 16 * b + k, S0)); its.append((DACC + 32 * b + 16 + k, IW + 16 * b + k, S1))
    gelu(its)
    if tk: b12_mm(b12_groups[b], tk)
gelu([(B12 + k, IW12 + k, S2) for k in range(8)])
D.v("v_permlane32_swap_b32", V(S0), V(S1)); D.v("v_add_f32", V(S0), V(S0), V(S1))
D.v("v_lshl_add_u32", "v10", "v1", 2, "s7")
D.dsw("ds_write_b32", "v10", V(S0)); D.dsw("ds_write_b32", "v10", V(S2), 256)
D.waitcnt(None, 0)
lds_signal(D, 8, 9, CNT3)
stamp(D, 10)
dump_stamps(D, 10, 11)
D.label("L_end")
D.s("s_endpgm")

lut = [[0] * 16 for _ in range(64)]
DUMMY = 30 * 16
for l in range(64):
    j, hfc = l & 31, l >> 5
    for k in range(16):
        ent = (0, DUMMY)
        if k < 14:
            q = 8 * (k // 4) + 4 * hfc + k % 4
            if q < 26 and j <= 26 and q <= j:
                hf, di, half = sm.target[(q, j)]
                ent = (0x3f00 if q == j else 0x3f80, hf * 512 + di * 4 + half * 2)
        elif k == 14 and l == 0:
            hf, di, half = sm.target[(26, 26)]
            ent = (0x3f80, hf * 512 + di * 4 + half * 2)
        lut[l][k] = (ent[0] << 16) | ent[1]
lt = ".p2align 6\n.type L_lut,@object\nL_lut:\n"
for c in range(4):
    for l in range(64): lt += "  .long " + ", ".join("0x%08x" % lut[l][4 * c + e] for e in range(4)) + "\n"
lt += ".size L_lut, 4096\nL_lut_end:\n"

ctext = C.text()
cut = ctext.index("L_CN:")
pt, xt = CP.text(), CX.text()
pc_, xc_ = pt.index("L_P2u:"), xt.index("L_P2x:")
body = D1.text() + ctext[:cut] + pt[:pc_] + xt[:xc_] + ctext[cut:] + pt[pc_:] + xt[xc_:] + D.text()
hdr = open("standalone__deep_cross_xdeepfm__recsys.s.ref").read().split("; @launch")[0]
src = hdr + f"; @launch grid=(256,1,1) block=(512,1,1) lds={LDS_TOTAL}\n"
src += f""".amdgcn_target "amdgcn-amd-amdhsa--gfx950"
.text
.globl {NAME}
.p2align 8
.type {NAME},@function
{NAME}:
""" + body + lt + f""".section .rodata,"a"
.p2align 6
.amdhsa_kernel {NAME}
  .amdhsa_next_free_vgpr 256
  .amdhsa_next_free_sgpr 102
  .amdhsa_accum_offset 256
  .amdhsa_group_segment_fixed_size 0
  .amdhsa_kernarg_size 88
  .amdhsa_user_sgpr_count 2
  .amdhsa_user_sgpr_kernarg_segment_ptr 1
  .amdhsa_system_sgpr_workgroup_id_x 1
.end_amdhsa_kernel
"""
open(sys.argv[1], "w").write(src)
for n_, s_ in (("D1", D1), ("C", C), ("CP", CP), ("CX", CX), ("D", D)): print(n_, s_.stats(), "nops", s_.nops)
print("LDS", LDS_TOTAL)
```

```python
import sys, struct
from asmlib import *
import slotmap as sm

NAME = "standalone__deep_cross_xdeepfm__recsys_kernel"
OPT = dict(stamps=0, ns=4, nstg=6, early=2)
for a in sys.argv[2:]:
    k, v = a.split("="); OPT[k] = int(v) if v.lstrip("-").isdigit() else v
STAMPS = OPT["stamps"]

TAB = 0
IDXS = 32768
AIMG = IDXS + 6656 + 512
RS = 784
BS = 27 * RS
NS = OPT["ns"]
W3S = AIMG
RING = W3S + 4 * 11264
assert 2 * BS <= 4 * 11264
RSZ = NS * 3072
MISC = RING + 4 * RSZ
CNT2, CNT3, RDY, PCNT = 0, 4, 8, 12
M3B = MISC + 64
STG = M3B + 2048 + 64
DSC = STG + 4096
LDS_TOTAL = DSC + 4096
assert LDS_TOTAL <= 163840 and AIMG % 16 == 0
def f32(x): return "0x%08x" % struct.unpack("<I", struct.pack("<f", x))[0]
K1 = -2.0 * 0.7978845608028654 * 1.4426950408889634
K2 = K1 * 0.044715
SC1 = "sc1"
def frag_id(blk, ks): return (blk, ks)

SEL = str(OPT.get("sel", "")).split(",")
def stamp(st, name):
    if name == 0 or name == 10: idx = name
    else:
        if "R" + str(name) in SEL and STAMPS:
            j = 1 + SEL.index("R" + str(name))
            st.raw(f"s_memrealtime s[{64+2*j}:{65+2*j}]", 'misc')
            st.lg.append(Tok('lg', [], True, True))
        if str(name) in SEL: idx = 1 + SEL.index(str(name)); assert idx <= 9
        else: return
    if STAMPS:
        st.raw(f"s_memtime s[{64+2*idx}:{65+2*idx}]", 'misc')
        st.lg.append(Tok('lg', [], True, True))
def dump_stamps(st, vt, va):
    if not STAMPS: return
    st.raw("s_memrealtime s[98:99]", 'misc')
    st.waitcnt(None, 0)
    st.s("s_mov_b32", "s86", "s100"); st.s("s_mov_b32", "s88", "s98"); n = 13
    st.s("s_lshl_b32", "s5", "s2", 3); st.s("s_add_u32", "s5", "s5", "s3"); st.s("s_lshl_b32", "s5", "s5", 6)
    st.s("s_add_u32", "s5", "s5", 0x100000)
    st.v("v_mov_b32", V(va), "s5")
    for i in range(n):
        st.v("v_mov_b32", V(vt), f"s{64+2*i}")
        st.gstore("global_store_dword", V(va), V(vt), "s[36:37]", off=4 * i)
    st.waitcnt(0, None)
def srd(st, r, base): st.s("s_mov_b64", S(r, 2), S(base, 2))
def srd_const(st, r, size):
    st.s("s_mov_b32", S(r + 2), size); st.s("s_mov_b32", S(r + 3), "0x20000")
def lds_signal(st, vaddr, vone, off):
    st.s("s_mov_b64", "exec", 1)
    st.dsw("ds_add_u32", V(vaddr), V(vone), off)
    st.s("s_mov_b64", "exec", -1)
def lds_wait(st, vaddr, vtmp, off, target, name, sleep=None):
    st.s("s_branch", name + "_in") if sleep is not None else None
    st.label(name)
    if sleep is not None:
        st.s("s_sleep", sleep); st.label(name + "_in")
    st.dsr("ds_read_b32", V(vtmp), V(vaddr), off)
    st.waitcnt(None, 0)
    st.v("v_readfirstlane_b32", "s5", V(vtmp))
    st.s("s_cmp_lt_u32", "s5", target)
    st.s("s_cbranch_scc1", name)
def gaddr_ops(dst, idx, vbase, tmp):
    return [("v_lshlrev_b32", V(tmp), 1, V(idx), ""), ("v_lshl_add_u32", V(dst), V(idx), 5, V(vbase), ""),
            ("v_bitop3_b32", V(dst), V(dst), V(tmp), 16, "bitop3:0x78")]
def emitv(st, o): st.v(o[0], o[1], *o[2:-1], mods=o[-1])

P = Stream()
stamp(P, 0)
if STAMPS: P.raw("s_memrealtime s[100:101]", 'misc')
ka = P.sload("s_load_dwordx16", "s[16:31]", "s[0:1]", 0)
P.v("v_lshrrev_b32", "v2", 6, "v0")
P.v("v_and_b32", "v1", 63, "v0")
P.s("s_cmp_ge_u32", "s2", 256)
P.v("v_readfirstlane_b32", "s3", "v2")
P.s("s_cbranch_scc1", "L_end")
P.raw("s_getpc_b64 s[94:95]", 'salu')
P.label("L_pc")
P.s("s_lshr_b32", "s15", "s2", 3)
R_TAB = 44
P.s("s_cmp_lt_u32", "s3", 4)
P.s("s_cbranch_scc1", "L_C")
C = P.fork()
D = P
R_W1 = 40
DACC, WF, XF, IW, B12, IW12, DT = 16, 112, 136, 152, 200, 208, 216
GI = 240
D.s("s_sub_u32", "s6", "s3", 4)
D.s("s_and_b32", "s5", "s15", 7); D.s("s_lshl_b32", "s5", "s5", 2); D.s("s_add_u32", "s5", "s5", "s6"); D.s("s_mul_i32", "s5", "s5", 10 * 128)
D.v("v_lshl_add_u32", "v8", "v1", 7, "s5")
D.raw("v_min_u32 v8, L_lut_end-L_pc-4, v8", 'misc')
D.s("s_mov_b64", "exec", "0x3ff")
D.gload("global_load_dword", "v255", "v8", "s[94:95]")
D.s("s_mov_b64", "exec", -1)
if STAMPS: D.sload("s_load_dwordx2", "s[36:37]", "s[0:1]", 80)
srd_const(D, R_W1, 416 * 832); srd_const(D, R_TAB, 32000)
D.v("v_bfe_u32", "v33", "v1", 4, 1); D.v("v_xor_b32", "v33", "v33", "v1"); D.v("v_lshlrev_b32", "v33", 4, "v33")
D.s("s_lshl_b32", "s13", "s6", 13)
for n in range(4):
    D.s("s_add_u32", "s5", "s15", n); D.s("s_and_b32", "s5", "s5", 3); D.s("s_lshl_b32", "s5", "s5", 11); D.s("s_add_u32", S(8 + n), "s5", "s13")
D.s("s_mul_i32", "s5", "s15", 79); D.s("s_lshr_b32", "s5", "s5", 10); D.s("s_mul_i32", "s5", "s5", 13); D.s("s_sub_u32", "s4", "s15", "s5")
D.s("s_mul_i32", "s12", "s4", 2 * 13312)
D.s("s_mul_i32", "s7", "s6", RSZ); D.s("s_add_u32", "s7", "s7", RING)
D.s("s_mul_i32", "s5", "s6", 192)
for m in range(3):
    D.v("v_add_u32", "v8", 64 * m, "v1") if m else None
    src = "v8" if m else "v1"
    D.v("v_mul_u32_u24", "v9", 43691, src); D.v("v_lshrrev_b32", "v9", 19, "v9")
    D.v("v_mul_u32_u24", "v10", 832 - 192, "v9"); D.v("v_lshl_add_u32", V(2 + m), src, 4, "v10"); D.v("v_add_u32", V(2 + m), "s5", V(2 + m))
D.v("v_lshlrev_b32", "v8", 2, "v1"); D.v("v_add_u32", "v9", "s5", "v8"); D.v("v_add_u32", "v10", 768 - 192, "v8")
D.v("v_cmp_gt_u32", "vcc", 48, "v1")
D.s("s_mov_b32", "m0", "s7")
D.v("v_cndmask_b32", "v9", "v10", "v9", "vcc")
D.s("s_cmp_ge_u32", "s2", 7)
D.s("s_cbranch_scc1", "L_D_nb0")
D.s("s_barrier")
D.label("L_D_nb0")
D.wait(ka)
srd(D, R_W1, 24)
dmat = {}
def w_m0(t, m): D.s("s_add_u32", "m0", "s7", (t % NS) * 3072 + 1024 * m)
def w_piece(t, m): dmat[t] = D.dma(V(2 + m), S(R_W1, 4), "s12")
def w_adv(t):
    D.s("s_add_u32", "s12", "s12", 13312)
    if t % 2 == 1:
        D.s("s_cmp_eq_u32", "s12", 26 * 13312); D.s("s_cselect_b32", "s12", 0, "s12")
w_piece(0, 0); w_m0(0, 1)
bt = D.gload("global_load_dword", "v10", "v9", "s[26:27]")
w_piece(0, 1); w_m0(0, 2)
srd(D, R_TAB, 18)
w_piece(0, 2); w_adv(0)
for n in range(4):
    D.s("s_mov_b32", "m0", S(8 + n))
    D.dma("v33", S(R_TAB, 4), S(8 + n)); tabt = D.dma("v33", S(R_TAB, 4), S(8 + n), 1024)
for t in range(1, OPT["early"]):
    for m in range(3): w_m0(t, m); w_piece(t, m)
    w_adv(t)
wt = D.gload("global_load_dword", "v11", "v9", "s[28:29]")
stamp(D, 1)
D.s("s_branch", "L_D2")
D1 = D
D = D1.fork()

R_IDX, R_CIN, R_WS, R_OUT, R_DBG, R_WO = 48, 40, 52, 56, 60, 48
C.label("L_C")
k2 = C.sload("s_load_dwordx4", "s[32:35]", "s[0:1]", 64)
C.sload("s_load_dwordx2", "s[36:37]", "s[0:1]", 80)
srd_const(C, R_IDX, 16384 * 104)
C.v("v_lshlrev_b32", "v32", 4, "v1")
C.s("s_and_b32", "s7", "s3", 1)
C.s("s_lshl_b32", "s12", "s2", 2); C.s("s_add_u32", "s12", "s12", "s3"); C.s("s_mul_i32", "s12", "s12", 1664)
C.s("s_mul_i32", "s13", "s3", 1664); C.s("s_add_u32", "s13", "s13", IDXS)
C.s("s_mov_b32", "m0", "s13")
srd_const(C, R_CIN, 105456)
C.s("s_lshl_b32", "s14", "s15", 2); C.s("s_add_u32", "s14", "s14", "s3"); C.s("s_mul_i32", "s14", "s14", 3 * 128); C.s("s_add_u32", "s14", "s14", 70272)
C.v("v_lshlrev_b32", "v7", 7, "v1")
C.wait(ka)
srd(C, R_IDX, 16)
C.dma("v32", S(R_IDX, 4), "s12")
C.s("s_mov_b32", "exec_hi", "0xff")
idxt = C.dma("v32", S(R_IDX, 4), "s12", 1024)
srd(C, R_CIN, 20)
C.s("s_mov_b64", "exec", 7)
C.bload("buffer_load_dword", "v23", "v7", S(R_CIN, 4), "s14")
C.s("s_mov_b64", "exec", -1)
stamp(C, 1)
C.s("s_cmp_ge_u32", "s2", 14)
C.s("s_cbranch_scc1", "L_CN")
CP = C.fork()
C.label("L_CN")
GA = 112
def c_setup2(C):
    srd_const(C, R_WS, 2 * BS); srd_const(C, R_OUT, 32768); srd_const(C, R_DBG, 256)
    for r, b in ((R_WS, 36), (R_OUT, 32), (R_DBG, 34)): srd(C, r, b)
    C.v("v_mov_b32", "v2", MISC)
    for r in range(24, 28): C.v("v_mov_b32", V(r), 0)
    C.dsw("ds_write_b128", "v2", "v[24:27]")
    C.v("v_mov_b32", "v5", 0); C.v("v_mov_b32", "v6", 1)
    C.v("v_and_b32", "v8", 15, "v1"); C.v("v_mul_u32_u24", "v7", 104, "v8"); C.v("v_add_u32", "v7", "s13", "v7")
    C.v("v_lshrrev_b32", "v9", 2, "v1"); C.v("v_xor_b32", "v9", "v9", "v1"); C.v("v_and_b32", "v9", 8, "v9")
    C.v("v_and_b32", "v10", 16, "v1"); C.v("v_add_u32", "v4", "v9", "v10")
def c_addr(C):
    C.wait(idxt)
    for r in range(13): C.dsr("ds_read_b64", V(GA + 2 * r, 2), "v7", 8 * r)
    for f in range(26):
        for o in gaddr_ops(GA + f, GA + f, 4, 8 + (f & 1)): emitv(C, o)

C.s("s_mov_b32", "s38", 0)
c_setup2(C)
c_addr(C)
stamp(C, 2)
C.waitcnt(0, 0)
C.s("s_barrier")
stamp(C, 3)
C.label("L_C_join")

FB = 8
UORD = [4, 5, 0, 1, 2, 3, 6, 7]
FREE_AFTER = {1: 21, 2: 34, 3: 34, 4: 34, 5: 60, 6: 60, 7: 99}
ACC = 112
SACC = 176
KAP, KAP2, MSK = 189, 190, 191
ZR = 192
NSTG = OPT["nstg"]
STGR = 204
RES0 = STGR + 4 * NSTG
def Fr(u, r):
    if u < 4: return 34 + 26 * (u & 1) + 2 * r + (u >> 1)
    return {4: 8, 5: 21, 6: 86, 7: 99}[u] + r
def Rw(f): return Fr(f & 1, f >> 1)
MX, MN = 176, 177
LEAD = 12
def sig1():
    C.s("s_cmp_eq_u32", "s38", 0); C.s("s_cbranch_scc1", "L_C_s1")
    C.s("s_mov_b64", "exec", 1)
    C.raw("s_waitcnt vmcnt(0)", 'wait')
    stamp(C, "pe")
    C.raw(f"ds_add_rtn_u32 v192, v2, v6 offset:{PCNT}", 'misc')
    C.v("v_mov_b32", "v193", 1)
    C.s("s_mov_b32", "s38", 0)
    C.raw("s_waitcnt lgkmcnt(0)", 'wait')
    C.v("v_readfirstlane_b32", "s5", "v192")
    C.s("s_cmp_lg_u32", "s5", 3); C.s("s_cbranch_scc1", "L_C_s1b")
    C.raw(f"buffer_atomic_add v193, v5, s[{R_DBG}:{R_DBG+3}], 0 offen sc0 sc1", 'misc')
    C.s("s_mov_b32", "s38", 2)
    C.label("L_C_s1b")
    C.s("s_mov_b64", "exec", -1)
    C.label("L_C_s1")
def sig2():
    C.s("s_cmp_eq_u32", "s38", 0); C.s("s_cbranch_scc1", "L_C_s2")
    C.raw("s_waitcnt vmcnt(0)", 'wait')
    C.v("v_readfirstlane_b32", "s5", "v193")
    C.s("s_cmp_lg_u32", "s5", 13); C.s("s_cbranch_scc1", "L_C_s2")
    C.s("s_mov_b64", "exec", 1)
    C.raw(f"buffer_store_dword v6, v5, s[{R_DBG}:{R_DBG+3}], 0 offen offset:128 sc1", 'misc')
    C.s("s_mov_b64", "exec", -1)
    stamp(C, "pf")
    C.label("L_C_s2")
for f in range(LEAD): C.dsr("ds_read_b64", V(Rw(f), 2), V(GA + f), TAB)
for f in range(26):
    if f == OPT.get("sig1", 6): sig1()
    if f == OPT.get("sig2", 20): sig2()
    if f + LEAD < 26: C.dsr("ds_read_b64", V(Rw(f + LEAD), 2), V(GA + f + LEAD), TAB)
    C.v("v_pk_maximum3_f16", V(MX), V(Rw(f)), V(Rw(f) + 1), V(MX) if f else V(Rw(f)))
    C.v("v_pk_minimum3_f16", V(MN), V(Rw(f)), V(Rw(f) + 1), V(MN) if f else V(Rw(f)))
stamp(C, "mx")
C.v("v_and_b32", V(MX), "0x7fff7fff", V(MX)); C.v("v_and_b32", V(MN), "0x7fff7fff", V(MN))
C.v("v_pk_max_u16", V(MX), V(MX), V(MN))
C.v("v_lshrrev_b32", V(MN), 16, V(MX)); C.v("v_and_b32", V(MX), "0xffff", V(MX)); C.v("v_max_u32", V(MX), V(MX), V(MN))
C.v("v_mov_b32", V(MN), V(MX))
C.v("v_mov_b32", V(MSK), "0xfff8fff8")
C.s("s_mov_b32", "s12", "0x05040100")
C.v("v_permlane32_swap_b32", V(MX), V(MN))
C.v("v_max_u32", V(MX), V(MX), V(MN))
C.v("v_lshrrev_b32", V(MX), 7, V(MX)); C.v("v_max_u32", V(MX), 127, V(MX)); C.v("v_min_u32", V(MX), 254, V(MX))
SCL = 4
C.v("v_sub_u32", V(MN), 260, V(MX)); C.v("v_lshlrev_b32", V(SCL), 23, V(MN))
C.v("v_lshlrev_b32", V(MX), 2, V(MX)); C.v("v_subrev_u32", "v3", 4 * 133 + 282, V(MX))
C.v("v_cvt_pkrtz_f16_f32", V(KAP), V(SCL), V(SCL))
C.v("v_pk_mul_f16", V(KAP2), V(KAP), V(KAP)); C.v("v_and_b32", V(KAP2), "0xffff", V(KAP2))
def conv_ops(kk, T0, nt):
    L = []
    for r in range(13):
        a, b = Fr(2 * kk, r), Fr(2 * kk + 1, r)
        t = T0 + 4 * (r % nt)
        lo, hi = a, b; rp = (r - 1) % 13
        L += [("v_lshlrev_b32", V(t), 16, V(a), ""), ("v_lshlrev_b32", V(t + 1), 16, V(b), ""),
              ("v_mul_f32", V(t + 2), V(SCL), V(a), ""), ("v_mul_f32", V(t + 3), V(SCL), V(b), ""),
              ("v_mul_f32", V(t), V(SCL), V(t), ""), ("v_mul_f32", V(t + 1), V(SCL), V(t + 1), ""),
              ("v_cvt_pkrtz_f16_f32", V(hi), V(t + 2), V(t + 3), ""), ("v_cvt_pkrtz_f16_f32", V(lo), V(t), V(t + 1), ""),
              ("v_and_b32", V(hi), V(MSK), V(hi), ""),
              ("v_cvt_pkrtz_f16_f32", V(Fr(4 + 2 * kk, rp)), V(t + 1), V(t), ""),
              ("v_alignbit_b32", V(Fr(5 + 2 * kk, rp)), V(hi), V(hi), 16, "")]
        if r >= 2:
            for k in range(2): L.append(("v_permlane32_swap_b32", V(Fr(2 * kk + k, r - 2)), V(Fr(4 + 2 * kk + k, r - 2)), ""))
    for r in (12, 11):
        for k in range(2): L.append(("v_permlane32_swap_b32", V(Fr(2 * kk + k, r)), V(Fr(4 + 2 * kk + k, r)), ""))
    return L
FLG = 188
ops = conv_ops(0, 192, 3) + conv_ops(1, 168, 2)
C.v("v_lshlrev_b32", V(187), 4, "v1")
def a_load(tag):
    C.raw("s_call_b64 s[92:93], L_aload", 'salu')
AS = Stream()
AS.label("L_aload")
AS.s("s_setprio", 3)
AS.s("s_lshr_b32", "s8", "s2", 3); AS.s("s_mul_i32", "s8", "s8", 11); AS.s("s_lshr_b32", "s8", "s8", 5); AS.s("s_lshl_b32", "s11", "s8", 12)
for n in range(11):
    AS.s("s_add_u32", "m0", "s11", AIMG)
    AS.s("s_mov_b32", "s13", "s11")
    for e in range(4):
        AS.raw(f"buffer_load_dwordx4 v187, s[{R_WS}:{R_WS+3}], s13 offen offset:{1024*e} sc1 lds", 'misc')
        if e == 0: AS.s("s_add_u32", "s11", "s11", 4096)
        if e == 1: AS.s("s_cmp_eq_u32", "s11", 11 * 4096)
        if e == 2: AS.s("s_cselect_b32", "s11", 0, "s11")
AS.s("s_setprio", 0)
AS.raw("s_setpc_b64 s[92:93]", 'salu')
assert 11 * 4096 <= 4 * 11264
C.s("s_mov_b32", "s38", 0)
C.s("s_cmp_eq_u32", "s3", 0); C.s("s_cselect_b32", "s39", 1, 0)
NDEF = OPT.get("ndef", 110)
ops1 = ops[len(ops) - NDEF:]; ops = ops[:len(ops) - NDEF]
CHECKS = [len(ops) * (k + 1) // 3 for k in range(2)]
def poll_issue(tag):
    C.s("s_cmp_eq_u32", "s39", 0); C.s("s_cbranch_scc1", "L_C_np" + tag)
    C.raw(f"buffer_load_dword v{FLG}, v5, s[{R_DBG}:{R_DBG+3}], 0 offen offset:128 sc1", 'misc')
    C.label("L_C_np" + tag)
poll_issue("0")
for i, o in enumerate(ops):
    if i in CHECKS:
        t = str(CHECKS.index(i) + 1)
        C.s("s_cmp_eq_u32", "s39", 0); C.s("s_cbranch_scc1", "L_C_nc" + t)
        C.raw("s_waitcnt vmcnt(0)", 'wait')
        C.v("v_readfirstlane_b32", "s5", V(FLG))
        C.s("s_getpc_b64", "s[90:91]") if False else None
        C.s("s_cmp_eq_u32", "s5", 0); C.s("s_cbranch_scc1", "L_C_rp" + t)
        a_load(t)
        C.s("s_mov_b32", "s39", 0); C.s("s_mov_b32", "s38", 1)
        C.s("s_branch", "L_C_nc" + t)
        C.label("L_C_rp" + t)
        C.raw(f"buffer_load_dword v{FLG}, v5, s[{R_DBG}:{R_DBG+3}], 0 offen offset:128 sc1", 'misc')
        C.label("L_C_nc" + t)
    emitv(C, o)
stamp(C, 6)
C.v("v_and_b32", V(186), 31, "v1"); C.v("v_lshrrev_b32", V(185), 5, "v1")
C.v("v_cmp_eq_u32", "vcc", 28, V(186)); C.v("v_cmp_gt_u32", "s[14:15]", 25, V(186)); C.v("v_mov_b32", V(184), 26)
C.v("v_cndmask_b32", V(184), V(184), 25, "vcc") if False else None
C.v("v_subb_co_u32", V(184), "s[10:11]", V(184), 0, "vcc") if False else None
C.v("v_mov_b32", V(183), 25); C.v("v_cndmask_b32", V(184), V(184), V(183), "vcc"); C.v("v_cndmask_b32", V(186), V(184), V(186), "s[14:15]")
C.v("v_mul_u32_u24", V(186), RS, V(186)); C.v("v_mul_u32_u24", V(185), 384, V(185)); C.v("v_add3_u32", "v7", V(186), V(185), "v5")
C.v("v_add_u32", "v7", AIMG, "v7")
C.s("s_cmp_eq_u32", "s39", 0); C.s("s_cbranch_scc1", "L_C_have")
C.s("s_mov_b32", "s14", 1 << 17)
C.label("L_C_poll")
C.raw("s_waitcnt vmcnt(0)", 'wait')
C.v("v_readfirstlane_b32", "s5", V(FLG))
C.s("s_cmp_lg_u32", "s5", 0)
C.s("s_cbranch_scc1", "L_C_got")
C.s("s_sub_u32", "s14", "s14", 1); C.s("s_cmp_eq_u32", "s14", 0); C.s("s_cbranch_scc1", "L_C_got")
C.raw(f"buffer_load_dword v{FLG}, v5, s[{R_DBG}:{R_DBG+3}], 0 offen offset:128 sc1", 'misc')
C.s("s_branch", "L_C_poll")
C.label("L_C_got")
stamp(C, 7)
a_load("f")
C.s("s_mov_b32", "s38", 1)
C.label("L_C_have")
for k in range(13): C.v("v_mov_b32", V(SACC + k), 0)

order = list(range(22, 24)) + list(range(22))
steps = [(n, ks) for n in range(8) for ks in order]
slots = []
for si, (n, ks) in enumerate(steps):
    if ks < 22: slots.append((si, 0))
    slots.append((si, 1))
def zops(si):
    n, ks = steps[si]; u = UORD[n]; q = ZR + 4 * (si % 3); L = []
    for j in range(4):
        ins = sm.dwords[4 * ks + j]; d = V(q + j)
        if ins[0] == 'A': L.append(("v_pk_mul_f16", d, V(Fr(u, ins[1])), V(Fr(u, ins[2])), "op_sel:[0,0] op_sel_hi:[0,1]"))
        elif ins[0] == 'D': L.append(("v_pk_mul_f16", d, V(Fr(u, ins[1])), V(Fr(u, ins[1])), "op_sel:[0,0] op_sel_hi:[0,1]"))
        elif ins[0] == 'E':
            L.append(("v_perm_b32", d, V(Fr(u, ins[2])), V(Fr(u, ins[1])), "s12", ""))
            L.append(("v_pk_mul_f16", d, d, d, ""))
        elif ins[0] == 'L': L.append(("v_pk_mul_f16", d, V(Fr(u, ins[1])), V(KAP), ""))
        else: L.append(("v_mov_b32", d, V(KAP2), ""))
    return L
for si in (0, 1):
    for o in zops(si): emitv(C, o)
C.s("s_cmp_eq_u32", "s38", 0); C.s("s_cbranch_scc1", "L_C_w2_in")
C.raw("s_waitcnt vmcnt(0)", 'wait')
C.dsw("ds_write_b32", "v2", "v6", CNT2)
C.s("s_branch", "L_C_go")
C.label("L_C_w2")
C.s("s_sleep", 1)
C.label("L_C_w2_in")
C.dsr("ds_read_b32", V(255), "v2", CNT2); C.waitcnt(None, 0)
C.v("v_readfirstlane_b32", "s5", V(255)); C.s("s_cmp_eq_u32", "s5", 0); C.s("s_cbranch_scc1", "L_C_w2")
C.label("L_C_go")
C.s("s_setprio", 1)
stamp(C, 8)
resident = {}
free_quads = list(range(RES0, 253, 4))
LOOK = NSTG - 1
stg_next = [0]; slot_reg = {}
def plan_read(i):
    si, blk = slots[i]; n, ks = steps[si]; fid = frag_id(blk, ks)
    if fid in resident: slot_reg[i] = resident[fid]; return
    if free_quads and n < 7:
        reg = free_quads.pop(0); resident[fid] = reg
    else:
        reg = STGR + 4 * stg_next[0]; stg_next[0] = (stg_next[0] + 1) % NSTG
    slot_reg[i] = reg
    C.dsr("ds_read_b128", V(reg, 4), "v7", blk * BS + ks * 16)
for i in range(LOOK): plan_read(i)
pend = []; freed_upto = FB; first_of = {}; epi = []
EXR, EXU = 60, 73
T1, T2 = 97, 98
tail_pre = []
for i, (si, blk) in enumerate(slots):
    n, ks = steps[si]
    newstep = i == 0 or slots[i - 1][0] != si
    if newstep:
        assert not pend
        if si + 2 < len(steps): pend = zops(si + 2)
        if ks == order[0] and n > 0:
            a = ACC + 32 * ((n - 1) & 1)
            epi = [("v_fmac_f32", V(SACC + k), V(a + k), V(a + 16 + k), "") for k in range(13)]
            epi_at = i + 3
            lim = FREE_AFTER[n]
            while freed_upto + 4 <= lim and n < 7:
                free_quads.append(freed_upto); freed_upto += 4
            if n == 1: assert not ops1, len(ops1)
            if n == 6:
                assert freed_upto <= EXR
                tail_pre = [("v", "v_lshrrev_b32", V(MSK), 5, "v1", ""), ("v", "v_mul_u32_u24", V(SCL), RS, V(MSK), ""), ("v", "v_lshlrev_b32", V(MSK), 2, V(SCL), ""),
                            ("v", "v_add_u32", V(MSK), AIMG + 768, V(MSK), ""), ("v", "v_add_u32", V(SCL), AIMG + 768, V(SCL), "")]
                for k in range(13):
                    row = 8 * (k // 4) + k % 4; ar = V(SCL) if k == 12 else V(MSK)
                    tail_pre += [("r", "ds_read_b32", V(EXR + k), ar, row * RS), ("r", "ds_read_b32", V(EXU + k), ar, BS + row * RS)]
                tail_pre += [("g",)]
                tail_pre += [("v", "v_add3_u32", V(EXR + k), V(EXR + k), V(EXU + k), "v3", "") for k in range(13)]
            if n == 7:
                assert not tail_pre
                tail_pre = [
                  ("v", "v_lshrrev_b32", V(T1), 4, "v1", ""), ("v", "v_mul_u32_u24", V(T1), RSZ, V(T1), ""), ("v", "v_and_b32", "v5", 15, "v1", ""),
                  ("v", "v_lshl_add_u32", V(T1), "v5", 2, V(T1), ""), ("s", "s_lshl_b32", "s5", "s3", 6), ("s", "s_add_u32", "s5", "s5", RING),
                  ("v", "v_add_u32", V(T1), "s5", V(T1), ""),
                  ("s", "s_mul_i32", "s5", "s3", RSZ), ("s", "s_add_u32", "s5", "s5", RING + 256), ("v", "v_lshl_add_u32", V(T2), "v1", 2, "s5", ""),
                  ("v", "v_lshlrev_b32", "v5", 1, "v5", ""),
                  ("s", "s_lshl_b32", "s13", "s2", 2), ("s", "s_add_u32", "s13", "s13", "s3"), ("s", "s_lshl_b32", "s13", "s13", 5),
                  ("v", "v_lshlrev_b32", "v6", 16, "v6", "")]
    last_in_step = i + 1 == len(slots) or slots[i + 1][0] != si
    if i + LOOK < len(slots): plan_read(i + LOOK)
    acc = ACC + 32 * (n & 1) + 16 * blk
    first = (n, blk) not in first_of; first_of[(n, blk)] = 1
    C.mfma("v_mfma_f32_32x32x16_f16", V(acc, 16), V(slot_reg[i], 4), V(ZR + 4 * (si % 3), 4), 0 if first else V(acc, 16))
    cnt = len(pend) if last_in_step else (len(pend) + 1) // 2
    for o in pend[:cnt]: emitv(C, o)
    pend = pend[cnt:]
    if epi and i >= epi_at:
        for _ in range(2):
            if epi: emitv(C, epi.pop(0))
    elif ops1 and cnt <= 2:
        for _ in range(3):
            if ops1: emitv(C, ops1.pop(0))
    elif tail_pre and not epi and cnt <= 2:
        for _ in range(2):
            if not tail_pre: break
            o = tail_pre.pop(0)
            if o[0] == "v": emitv(C, o[1:])
            elif o[0] == "r": C.dsr(*o[1:])
            elif o[0] == "s": C.s(*o[1:])
            else: C.gload("global_load_ushort", "v6", "v5", "s[30:31]")
    if i == len(slots) - 4:
        assert not tail_pre
        C.dsr("ds_read_b32", V(KAP), "v2", CNT3); C.dsr("ds_read_b32", V(KAP2), V(T1)); C.dsr("ds_read_b32", V(MSK), V(T2))
stamp(C, 9)
a = ACC + 32
C.v("v_readfirstlane_b32", "s5", V(KAP))
C.s("s_cmp_ge_u32", "s5", 4)
C.s("s_cbranch_scc1", "L_C_fin")
C.s("s_setprio", 0)
lds_wait(C, 2, KAP, CNT3, 4, "L_C_w3", sleep=1)
C.dsr("ds_read_b32", V(KAP2), V(T1)); C.dsr("ds_read_b32", V(MSK), V(T2))
C.label("L_C_fin")
C.waitcnt(None, 0)
C.v("v_add_f32", V(KAP2), V(KAP2), V(MSK))
C.raw("s_nop 7", 'nop'); C.out[-1].states = 8
for k in range(13): C.v("v_fmac_f32", V(SACC + k), V(a + k), V(a + 16 + k))
for k in range(13): C.v("v_ldexp_f32", V(SACC + k), V(SACC + k), V(EXR + k))
C.v("v_add_f32", V(SACC + 12), V(SACC + 12), V(KAP2))
for st_ in (1, 2, 4, 8):
    for k in range(0, 13, 2 * st_):
        if k + st_ < 13: C.v("v_add_f32", V(SACC + k), V(SACC + k), V(SACC + k + st_))
C.v("v_mov_b32", V(SACC + 1), V(SACC)); C.v("v_permlane32_swap_b32", V(SACC), V(SACC + 1)); C.v("v_add_f32", V(SACC), V(SACC), V(SACC + 1))
C.v("v_mov_b32", V(SACC + 1), V(SACC)); C.v("v_permlane16_swap_b32", V(SACC), V(SACC + 1))
C.v("v_add_f32", V(SACC), V(SACC), V(SACC + 1))
C.v("v_add_f32", V(SACC), V(SACC), "v6")
C.v("v_cvt_pk_bf16_f32", V(SACC), V(SACC), V(SACC))
C.s("s_mov_b64", "exec", "0xffff")
C.bstore("buffer_store_short", V(SACC), "v5", S(R_OUT, 4), "s13")
if STAMPS:
    C.s("s_mov_b64", "exec", -1)
    stamp(C, 10)
    dump_stamps(C, 250, 251)
C.s("s_endpgm")

WOF, BF, MD, MA, NF, LUT, IDN, MF, TD, TF, SD, FAC, LA = 44, 48, 92, 236, 140, 148, 164, 172, 180, 196, 204, 156, 220
lut = [[None] * 16 for _ in range(64)]
for l in range(64):
    j, hfc = l & 31, l >> 5
    for k in range(14):
        q = 8 * (k // 4) + 4 * hfc + k % 4
        if q < 26 and j <= 26 and q <= j:
            hf, di, half = sm.target[(q, j)]
            lut[l][k] = hf * 384 + di * 4 + half * 2
hf, di, half = sm.target[(26, 26)]
lut[0][14] = hf * 384 + di * 4 + half * 2
def emask(k): return sum(1 << l for l in range(64) if lut[l][k] is not None)
fac = [[0x3c003c00] * 4 for _ in range(64)]
for a_ in range(26):
    hf, di, half = sm.target[(a_, a_)]
    l = hf * 24 + di // 4
    fac[l][di % 4] = (fac[l][di % 4] & ~(0xffff << (16 * half))) | (0x3800 << (16 * half))
def producer(Q, typ):
    tag = "u" if typ == 1 else "x"
    Q.s("s_setprio", 3)
    if typ == 1:
        Q.s("s_mul_i32", "s90", "s3", 11264); Q.s("s_add_u32", "s90", "s90", W3S)
        Q.s("s_mul_i32", "s91", "s3", 352); Q.s("s_add_u32", "s91", "s91", 70304)
        for m in range(9):
            t = 28 + (m & 1)
            src = "v1"
            if m: Q.v("v_add_u32", "v30", 64 * m, "v1"); src = "v30"
            Q.v("v_mul_u32_u24", "v31", 2979, src); Q.s("s_add_u32", "m0", "s90", 1024 * m); Q.v("v_lshrrev_b32", "v31", 16, "v31")
            Q.v("v_mul_u32_u24", "v31", 1000, "v31"); Q.v("v_lshl_add_u32", V(t), src, 4, "v31")
            w3t = Q.dma(V(t), S(R_CIN, 4), "s91")
            if m == 0:
                Q.s("s_mov_b32", S(R_WO + 2), 156); srd(Q, R_WO, 22)
                Q.v("v_and_b32", "v34", 48, "v1")
                Q.bload("buffer_load_dwordx4", V(WOF, 4), "v34", S(R_WO, 4), 0, 104)
        Q.s("s_lshl_b32", "s39", "s2", 2)
    else:
        Q.s("s_sub_u32", "s39", "s2", 7); Q.s("s_lshl_b32", "s39", "s39", 2)
    Q.s("s_add_u32", "s39", "s39", "s3")
    Q.s("s_mul_i32", "s93", "s39", 52 if typ == 1 else 1352)
    if typ == 1: Q.s("s_add_u32", "s93", "s93", 35152)
    Q.v("v_and_b32", "v29", 31, "v1"); Q.v("v_lshrrev_b32", "v30", 5, "v1")
    Q.v("v_mul_u32_u24", "v31", 1352 if typ == 1 else 52, "v29"); Q.v("v_lshl_add_u32", "v31", "v30", 4, "v31")
    if typ == 1:
        Q.v("v_lshlrev_b32", "v34", 1, "v29")
        Q.bload("buffer_load_ushort", "v34", "v34", S(R_WO, 4), 0, 52)
    Q.bload("buffer_load_dwordx4", V(NF, 4), "v31", S(R_CIN, 4), "s93")
    Q.bload("buffer_load_dwordx4", V(NF + 4, 4), "v31", S(R_CIN, 4), "s93", 32)
    Q.raw("s_add_u32 s94, s94, L_lut-L_pc", 'salu'); Q.raw("s_addc_u32 s95, s95, 0", 'salu')
    if typ == 1:
        Q.s("s_lshl_b32", "s5", "s39", 1); Q.v("v_mov_b32", "v35", 0)
        Q.bload("buffer_load_ushort", "v35", "v35", S(R_WO, 4), "s5")
    for c in range(3): Q.gload("global_load_dwordx4", V(LUT + 4 * c, 4), "v32", "s[94:95]", c * 1024)
    Q.s("s_branch", "L_P2" + tag)
    Q.label("L_P2" + tag)
    stamp(Q, 2)
    c_setup2(Q)
    Q.s("s_lshl_b32", "s5", "s3", 10); Q.s("s_add_u32", "s92", "s5", STG)
    Q.v("v_add_u32", "v41", "s92", "v32")
    Q.dsw("ds_write_b128", "v41", "v[24:27]")
    Q.v("v_and_b32", "v36", 1, "v29"); Q.v("v_lshlrev_b32", "v36", 4, "v36")
    Q.v("v_mov_b32", "v37", "0x3f80"); Q.v("v_lshlrev_b32", "v37", "v36", "v37")
    Q.v("v_cmp_gt_u32", "vcc", 26, "v29"); Q.v("v_lshrrev_b32", "v38", 1, "v29")
    Q.v("v_lshlrev_b32", "v39", 2, "v30"); Q.v("v_cndmask_b32", "v37", 0, "v37", "vcc")
    Q.v("v_sub_u32", "v39", "v38", "v39")
    Q.v("v_lshlrev_b32", "v40", 1, "v30"); Q.v("v_sub_u32", "v40", "v38", "v40")
    def ident(dst, vsel, key):
        for s_ in range(2):
            for m in range(0, 4, 2):
                Q.v("v_cmp_eq_u32", "vcc", key(s_, m), vsel); Q.v("v_cmp_eq_u32", "s[96:97]", key(s_, m + 1), vsel)
                Q.v("v_cndmask_b32", V(dst + 4 * s_ + m), 0, "v37", "vcc"); Q.v("v_cndmask_b32", V(dst + 4 * s_ + m + 1), 0, "v37", "s[96:97]")
    ident(IDN, "v39", lambda s_, m: 8 * s_ + m)
    if typ == 2: ident(MF, "v40", lambda s_, m: 8 * s_ + 4 * (m >> 1) + (m & 1))
    def t_part():
        Q.mfma("v_mfma_f32_32x32x16_bf16", V(TD, 16), V(NF, 4), V(IDN, 4), 0)
        Q.mfma("v_mfma_f32_32x32x16_bf16", V(TD, 16), V(NF + 4, 4), V(IDN + 4, 4), V(TD, 16))
    def t_part2():
        Q.v("v_mov_b32", "v36", "s92")
        for k in range(15):
            Q.v("v_add_u32_sdwa", V(LA + k), "v36", V(LUT + k // 2), mods=f"dst_sel:DWORD dst_unused:UNUSED_PAD src0_sel:DWORD src1_sel:WORD_{k&1}")
        for m in range(8): Q.v("v_cvt_pk_bf16_f32", V(TF + m), V(TD + 2 * m), V(TD + 2 * m + 1))
    if typ == 1:
        Q.v("v_add_u32", "v42", "s90", "v32"); Q.dsw("ds_write_b128", "v42", "v[24:27]", 9216); Q.dsw("ds_write_b128", "v42", "v[24:27]", 10240)
        Q.s("s_mov_b64", "exec", "0xffffff")
        Q.v("v_add_u32", "v42", M3B + 26 * 64, "v32"); Q.dsw("ds_write_b128", "v42", "v[24:27]")
        Q.s("s_mov_b64", "exec", -1)
        Q.v("v_lshrrev_b32", "v38", 4, "v1"); Q.v("v_bfe_u32", "v39", "v1", 2, 2); Q.v("v_lshl_add_u32", "v38", "v38", 3, "v39"); Q.v("v_mul_u32_u24", "v38", 352, "v38")
        Q.v("v_and_b32", "v40", 3, "v1"); Q.v("v_lshl_add_u32", "v38", "v40", 3, "v38"); Q.v("v_add_u32", "v28", "s90", "v38")
        Q.v("v_lshl_add_u32", "v39", "v30", 2, "v39"); Q.v("v_lshlrev_b32", "v39", 6, "v39"); Q.v("v_lshl_add_u32", "v39", "v40", 3, "v39")
        Q.v("v_and_b32", "v40", 16, "v1"); Q.v("v_lshl_add_u32", "v39", "v40", 1, "v39"); Q.v("v_add_u32", "v42", M3B, "v39")
        Q.s("s_mul_i32", "s5", "s3", 176); Q.v("v_and_b32", "v38", 15, "v1"); Q.v("v_add_u32", "v38", "s5", "v38")
        Q.v("v_mov_b32", "v43", M3B)
        for T in range(11):
            if T: Q.v("v_add_u32", "v38", 16, "v38")
            Q.v("v_mul_u32_u24", "v39", 2521, "v38"); Q.v("v_lshrrev_b32", "v39", 16, "v39")
            Q.v("v_mad_u32_u24", "v39", "v39", 12, "v43"); Q.v("v_lshl_add_u32", V(MA + T), "v38", 1, "v39")
            if T >= 9:
                Q.v("v_cmp_gt_u32", "vcc", 676, "v38"); Q.v("v_mov_b32", "v39", M3B + 2048); Q.v("v_cndmask_b32", V(MA + T), "v39", V(MA + T), "vcc")
        Q.v("v_lshl_add_u32", "v43", "v29", 6, "v43")
        stamp(Q, "pa")
        Q.wait(w3t)
        for T in range(11):
            for h in range(2): Q.dsr("ds_read_b64_tr_b16", V(BF + 4 * T + 2 * h, 2), "v28", 32 * T + 4 * 352 * h)
        for T in range(11):
            Q.mfma("v_mfma_f32_16x16x32_bf16", V(MD + 4 * T, 4), V(WOF, 4), V(BF + 4 * T, 4), 0)
        Q.s("s_mov_b64", "exec", "0xffff")
        for T in range(11):
            Q.v("v_cvt_pk_bf16_f32", V(MD + 4 * T), V(MD + 4 * T), V(MD + 4 * T)); Q.dsw("ds_write_b16", V(MA + T), V(MD + 4 * T))
        Q.s("s_mov_b64", "exec", "0x3ffffff")
        Q.dsw("ds_write_b32", "v43", "v34", 52); Q.dsw("ds_write_b64", "v43", "v[24:25]", 56)
        Q.s("s_mov_b64", "exec", -1)
        t_part()
        stamp(Q, "pb")
        Q.waitcnt(None, 0)
        Q.s("s_barrier")
        for s_ in range(2):
            for jj in range(2): Q.dsr("ds_read_b64_tr_b16", V(MF + 4 * s_ + 2 * jj, 2), "v42", (16 * s_ + 8 * jj) * 64)
        t_part2()
    else:
        t_part(); t_part2()
    Q.wait(idxt)
    for r in range(13): Q.dsr("ds_read_b64", V(GA + 2 * r, 2), "v7", 8 * r)
    aops = []
    for f in range(26): aops += gaddr_ops(GA + f, GA + f, 4, 8 + (f & 1))
    for mm in ((TF, MF, 0), (TF + 4, MF + 4, V(SD, 16)), (MF, TF, V(SD, 16)), (MF + 4, TF + 4, V(SD, 16))):
        Q.mfma("v_mfma_f32_32x32x16_bf16", V(SD, 16), V(mm[0], 4), V(mm[1], 4), mm[2])
        for o in aops[:6]: emitv(Q, o)
        aops = aops[6:]
    for o in aops[:9]: emitv(Q, o)
    aops = aops[9:]
    ne = 15 if typ == 1 else 14
    Q.s("s_mul_i32", "s93", "s39", RS)
    if typ == 1: Q.s("s_add_u32", "s93", "s93", BS)
    if typ == 1: Q.v("v_lshlrev_b32", V(SD + 14), 16, "v35")
    Q.v("v_max3_f32", "v44", f"|{V(SD)}|", f"|{V(SD+1)}|", f"|{V(SD+ne-1)}|")
    Q.v("v_max3_f32", "v45", f"|{V(SD+2)}|", f"|{V(SD+3)}|", f"|{V(SD+4)}|")
    for k in range(5, 13, 4):
        Q.v("v_max3_f32", "v44", f"|{V(SD+k)}|", f"|{V(SD+k+1)}|", "v44"); Q.v("v_max3_f32", "v45", f"|{V(SD+k+2)}|", f"|{V(SD+k+3)}|", "v45")
    Q.v("v_max3_f32", "v44", f"|{V(SD+13)}|", "v45", "v44")
    for sh in (8, 4, 2, 1):
        for o in aops[:2]: emitv(Q, o)
        aops = aops[2:]
        Q.v("v_max_f32_dpp", "v44", "v44", "v44", mods=f"row_ror:{sh} row_mask:0xf bank_mask:0xf")
    for q in range(4): Q.v("v_readlane_b32", S(8 + q), "v44", 16 * q)
    stamp(Q, "pc")
    Q.s("s_max_u32", "s8", "s8", "s9"); Q.s("s_max_u32", "s10", "s10", "s11"); Q.s("s_max_u32", "s8", "s8", "s10")
    Q.s("s_lshr_b32", "s8", "s8", 23); Q.s("s_max_u32", "s8", "s8", 67); Q.s("s_min_u32", "s8", "s8", 187)
    Q.s("s_sub_u32", "s9", 268, "s8"); Q.s("s_lshl_b32", "s9", "s9", 23)
    Q.s("s_cmp_ge_u32", "s39", 26); Q.s("s_cselect_b32", "s9", 0, "s9")
    for k in range(ne): Q.v("v_mul_f32", V(SD + k), "s9", V(SD + k))
    for k in range(0, ne, 2): Q.v("v_cvt_pk_f16_f32", V(SD + k), V(SD + k), V(SD + min(k + 1, ne - 1)))
    for k in range(ne):
        m = emask(k)
        Q.s("s_mov_b32", "exec_lo", "0x%x" % (m & 0xffffffff)); Q.s("s_mov_b32", "exec_hi", "0x%x" % (m >> 32))
        Q.dsw("ds_write_b16_d16_hi" if k & 1 else "ds_write_b16", V(LA + k), V(SD + (k & ~1)))
    Q.s("s_mov_b64", "exec", -1)
    Q.dsr("ds_read_b128", "v[240:243]", "v41")
    for o in aops[:12]: emitv(Q, o)
    aops = aops[12:]
    for e in range(4): Q.v("v_pk_mul_f16", V(240 + e), V(240 + e), V(FAC + e))
    Q.s("s_cmp_ge_u32", "s39", 27)
    Q.v("v_writelane_b32", "v240", "s8", 48)
    Q.s("s_cbranch_scc1", "L_P_skip" + tag)
    Q.cond = True
    Q.s("s_mov_b32", "exec_hi", "0x1ffff")
    Q.bstore("buffer_store_dwordx4", "v[240:243]", "v32", S(R_WS, 4), "s93", mods=SC1)
    Q.s("s_mov_b32", "exec_hi", -1)
    Q.cond = False
    Q.label("L_P_skip" + tag)
    stamp(Q, "pd")
    for o in aops: emitv(Q, o)
    Q.s("s_mov_b32", "s38", 1)
    Q.waitcnt(None, 0)
    Q.s("s_barrier")
    stamp(Q, 3)
    Q.s("s_setprio", 0)
    Q.s("s_branch", "L_C_join")
CP.s("s_cmp_ge_u32", "s2", 7)
CP.s("s_cbranch_scc1", "L_CX")
CX = CP.fork()
producer(CP, 1)
CX.label("L_CX")
producer(CX, 2)

D.label("L_D2")
D.v("v_lshrrev_b32", "v12", 5, "v1")
D.v("v_bfe_u32", "v13", "v1", 2, 2); D.v("v_lshl_add_u32", "v13", "v12", 3, "v13"); D.v("v_mul_u32_u24", "v13", 192, "v13")
D.v("v_and_b32", "v14", 1, "v1"); D.v("v_lshl_add_u32", "v13", "v14", 5, "v13")
D.v("v_bfe_u32", "v14", "v1", 1, 1); D.v("v_lshl_add_u32", "v13", "v14", 3, "v13")
D.v("v_bfe_u32", "v14", "v1", 4, 1); D.v("v_lshl_add_u32", "v13", "v14", 4, "v13")
D.v("v_add_u32", "v5", "s7", "v13")
D.v("v_and_b32", "v13", 31, "v1"); D.v("v_mul_u32_u24", "v6", 104, "v13")
D.s("s_lshl_b32", "s10", "s4", 3)
D.v("v_add_u32", "v7", "s10", "v6")
D.s("s_lshl_b32", "s5", "s6", 10); D.s("s_add_u32", "s5", "s5", DSC)
D.v("v_lshl_add_u32", "v13", "v1", 3, "s5")
D.v("v_lshl_add_u32", "v14", "v12", 6, "s5")
D.v("v_lshrrev_b32", "v15", 4, "v1"); D.v("v_lshl_add_u32", "v15", "v15", 4, "s5")
D.v("v_lshlrev_b32", "v12", 4, "v12")
D.v("v_mov_b32", "v8", MISC); D.v("v_mov_b32", "v9", 1)
def i_reads(p): return [("ds_read_b64", V(GI + 4 * (p & 1) + 2 * cb, 2), "v7", IDXS + cb * 32 * 104) for cb in (1, 0)]
def i_adv():
    D.s("s_add_u32", "s10", "s10", 8); D.s("s_cmp_eq_u32", "s10", 104); D.s("s_cselect_b32", "s10", 0, "s10")
    D.v("v_add_u32", "v7", "s10", "v6")
def i_addr(p):
    L = []
    for k in range(4): L += gaddr_ops(GI + 4 * (p & 1) + k, GI + 4 * (p & 1) + k, 12, 248 + k)
    return L
D.v("v_lshlrev_b32", V(DT), 16, "v10"); D.v("v_and_b32", V(DT + 1), "0xffff0000", "v10")
D.dsw("ds_write_b64", "v13", V(DT, 2))
for b in range(3):
    for g in range(4): D.dsr("ds_read_b128", V(DACC + 32 * b + 4 * g, 4), "v14", 128 * b + 16 * g)
for T in range(2): D.dsr("ds_read_b128", V(B12 + 4 * T, 4), "v15", 384 + 64 * T)
def w_reads(t):
    return [("ds_read_b64_tr_b16", V(WF + 12 * (t & 1) + 4 * b + 2 * h, 2), "v5", (t % NS) * 3072 + 64 * b + 768 * h) for b in range(3) for h in range(2)]
def x_reads(t): return [("ds_read_b128", V(XF + 8 * (t & 1) + 4 * cb, 4), V(GI + 4 * ((t >> 1) & 1) + 2 * cb + (t & 1)), TAB) for cb in (1, 0)]
D.wait(dmat[0])
stamp(D, 7)
wtok = {}
for o in w_reads(0): wtok[0] = D.dsr(*o)
D.wait(tabt)
stamp(D, 8)
D.s("s_barrier")
stamp(D, 3)
D.s("s_setprio", 2)
for o in i_reads(0): D.dsr(*o)
i_adv()
for o in i_reads(1): D.dsr(*o)
i_adv()
a0 = i_addr(0)
for o in a0[6:9] + a0[0:3]: emitv(D, o)
for o in x_reads(0): D.dsr(*o)
for o in a0[9:12] + a0[3:6]: emitv(D, o)
for t in range(OPT["early"], NS):
    for m in range(3): w_m0(t, m); w_piece(t, m)
    w_adv(t)
b12_groups = [list(range(0, 7)), list(range(7, 13))] if NS >= 5 else [list(range(0, 5)), list(range(5, 9)), list(range(9, 13))]
for t in range(26):
    nxt = t + 1 < 26
    wr = w_reads(t + 1) if nxt else []
    xr = x_reads(t + 1) if nxt else []
    dm = t + NS < 26
    p = t >> 1
    av = i_addr(p + 1) if (t % 2 == 0 and p + 1 < 13) else []
    k = 0
    if t in (1, 4, 10, 18): stamp(D, {1: "mx", 4: "pf", 10: 6, 18: 9}[t])
    for b in range(3):
        for cb in (1, 0):
            acc = DACC + 32 * b + 16 * cb
            srcc = V(DACC + 32 * b, 16) if t == 0 else V(acc, 16)
            D.mfma("v_mfma_f32_32x32x16_bf16", V(acc, 16), V(WF + 12 * (t & 1) + 4 * b, 4), V(XF + 8 * (t & 1) + 4 * cb, 4), srcc)
            if k == 1 and nxt:
                for o in xr: D.dsr(*o)
                D.wait(dmat[t + 1])
                for o in wr[:3]: D.dsr(*o)
            if k == 2 and nxt:
                if dm: w_m0(t + NS, 0)
                for o in wr[3:]: wtok[t + 1] = D.dsr(*o)
                if t % 2 == 0 and p + 2 < 13:
                    for o in i_reads(p + 2): D.dsr(*o)
                    i_adv()
            if k >= 3:
                if dm:
                    if k == 3: D.wait(wtok[t])
                    w_piece(t + NS, k - 3)
                    if k < 5: w_m0(t + NS, k - 2)
                    else: w_adv(t + NS)
                for o in av[4 * (k - 3):4 * (k - 2)]: emitv(D, o)
            k += 1
stamp(D, 4)
D.s("s_setprio", 0)
D.v("v_mov_b32", V(DT + 4), f32(2.0 ** 100))
D.v("v_lshlrev_b32", V(DT + 2), 16, "v11"); D.v("v_and_b32", V(DT + 3), "0xffff0000", "v11")
D.v("v_rcp_f32", V(DT + 2), V(DT + 2)); D.v("v_rcp_f32", V(DT + 3), V(DT + 3))
D.v("v_med3_f32", V(DT + 2), V(DT + 2), V(DT + 4), "-" + V(DT + 4)); D.v("v_med3_f32", V(DT + 3), V(DT + 3), V(DT + 4), "-" + V(DT + 4))
D.dsw("ds_write_b64", "v13", V(DT + 2, 2), 512)
for b in range(3):
    for g in range(4): D.dsr("ds_read_b128", V(IW + 16 * b + 4 * g, 4), "v14", 512 + 128 * b + 16 * g)
for T in range(2): D.dsr("ds_read_b128", V(IW12 + 4 * T, 4), "v15", 512 + 384 + 64 * T)
D.v("v_lshrrev_b32", "v10", 2, "v1"); D.v("v_mul_u32_u24", "v10", 832, "v10")
D.v("v_lshrrev_b32", "v11", 4, "v1"); D.v("v_and_b32", "v11", 2, "v11"); D.v("v_xor_b32", "v11", "v11", "v1"); D.v("v_and_b32", "v11", 3, "v11")
D.v("v_lshl_add_u32", "v2", "v11", 4, "v10"); D.v("v_add_u32", "v2", 768, "v2")
D.v("v_lshrrev_b32", "v10", 4, "v1"); D.v("v_bfe_u32", "v11", "v1", 2, 2); D.v("v_lshl_add_u32", "v11", "v10", 3, "v11"); D.v("v_lshlrev_b32", "v11", 6, "v11")
D.v("v_and_b32", "v12", 1, "v10"); D.v("v_lshl_add_u32", "v11", "v12", 5, "v11"); D.v("v_and_b32", "v13", 3, "v1"); D.v("v_lshl_add_u32", "v11", "v13", 3, "v11")
D.v("v_xor_b32", "v13", 32, "v11"); D.v("v_add_u32", "v3", "s7", "v11"); D.v("v_add_u32", "v4", "s7", "v13")
D.v("v_lshlrev_b32", "v12", 4, "v12")
D.v("v_and_b32", "v13", 15, "v1"); D.v("v_mul_u32_u24", "v13", 104, "v13"); D.v("v_lshrrev_b32", "v10", 1, "v10"); D.v("v_lshl_add_u32", "v13", "v10", 2, "v13")
D.s("s_mul_i32", "s5", "s6", 1664); D.v("v_add_u32", "v7", "s5", "v13")
G12 = 232
for t in range(13): D.dsr("ds_read_b32", V(G12 + t), "v7", IDXS + 8 * t)
for t in range(13):
    for o in gaddr_ops(G12 + t, G12 + t, 12, 248 + (t & 1)): emitv(D, o)
def b12_dma(grp):
    tk = None
    for n, t in enumerate(grp):
        for h in range(2):
            D.s("s_add_u32", "m0", "s7", n * 2048 + 1024 * h)
            D.s("s_mov_b32", "s12", (32 * t + 16 * h) * 832)
            tk = D.dma("v2", S(R_W1, 4), "s12")
    return tk
def b12_rd(n, t):
    o = 12 * (n % 3)
    D.dsr("ds_read_b128", V(WF + o + 8, 4), V(G12 + t), TAB)
    for T in range(2):
        for h in range(2): D.dsr("ds_read_b64_tr_b16", V(WF + o + 4 * T + 2 * h, 2), V(3 + T), n * 2048 + 256 * h)
def b12_mm(grp, tk):
    D.wait(tk)
    for n in range(min(2, len(grp))): b12_rd(n, grp[n])
    for n, t in enumerate(grp):
        if n + 2 < len(grp): b12_rd(n + 2, grp[n + 2])
        o = 12 * (n % 3)
        for T in range(2):
            D.mfma("v_mfma_f32_16x16x32_bf16", V(B12 + 4 * T, 4), V(WF + o + 4 * T, 4), V(WF + o + 8, 4), V(B12 + 4 * T, 4))
VK1, VK2, S0, S1, S2 = DT, DT + 1, DT + 2, DT + 3, DT + 4
D.v("v_mov_b32", V(VK1), f32(K1)); D.v("v_mov_b32", V(VK2), f32(K2))
for r in (S0, S1, S2): D.v("v_mov_b32", V(r), 0)
GT = DT + 8
def gelu(items):
    for g0 in range(0, len(items), 4):
        grp = items[g0:g0 + 4]
        t = [GT + 4 * ((g0 // 4) & 1) + i for i in range(len(grp))]
        for (x, w, s), r in zip(grp, t): D.v("v_mul_f32", V(r), V(x), V(x))
        for (x, w, s), r in zip(grp, t): D.v("v_fma_f32", V(r), V(r), V(VK2), V(VK1))
        for (x, w, s), r in zip(grp, t): D.v("v_mul_f32", V(r), V(x), V(r))
        for (x, w, s), r in zip(grp, t): D.v("v_exp_f32", V(r), V(r))
        for (x, w, s), r in zip(grp, t): D.v("v_fma_f32", V(r), V(r), V(w), V(w))
        for (x, w, s), r in zip(grp, t): D.v("v_rcp_f32", V(r), V(r))
        for (x, w, s), r in zip(grp, t): D.v("v_fmac_f32", V(s), V(x), V(r))
for b in range(3):
    tk = None
    if b < len(b12_groups):
        D.waitcnt(None, 0)
        tk = b12_dma(b12_groups[b])
    its = []
    for k in range(16):
        its.append((DACC + 32 * b + k, IW + 16 * b + k, S0)); its.append((DACC + 32 * b + 16 + k, IW + 16 * b + k, S1))
    gelu(its)
    if tk:
        D.s("s_setprio", 2); b12_mm(b12_groups[b], tk); D.s("s_setprio", 0)
gelu([(B12 + k, IW12 + k, S2) for k in range(8)])
D.v("v_permlane32_swap_b32", V(S0), V(S1)); D.v("v_add_f32", V(S0), V(S0), V(S1))
D.v("v_lshl_add_u32", "v10", "v1", 2, "s7")
D.dsw("ds_write_b32", "v10", V(S0)); D.dsw("ds_write_b32", "v10", V(S2), 256)
lds_signal(D, 8, 9, CNT3)
stamp(D, 10)
dump_stamps(D, 10, 11)
D.label("L_end")
D.s("s_endpgm")

lt = ".p2align 6\n.type L_lut,@object\nL_lut:\n"
for c in range(2):
    for l in range(64):
        w = [((lut[l][8 * c + 2 * e] or 0) | ((lut[l][8 * c + 2 * e + 1] or 0) << 16)) for e in range(4)]
        lt += "  .long " + ", ".join("0x%08x" % x for x in w) + "\n"
for l in range(64): lt += "  .long " + ", ".join("0x%08x" % x for x in fac[l]) + "\n"
lt += ".size L_lut, 3072\nL_lut_end:\n"

ctext = C.text()
cut = ctext.index("L_CN:")
pt, xt = CP.text(), CX.text()
pc_, xc_ = pt.index("L_P2u:"), xt.index("L_P2x:")
body = D1.text() + ctext[:cut] + pt[:pc_] + xt[:xc_] + ctext[cut:] + AS.text() + pt[pc_:] + xt[xc_:] + D.text()
hdr = open("standalone__deep_cross_xdeepfm__recsys.s.ref").read().split("; @launch")[0]
src = hdr + f"; @launch grid=(256,1,1) block=(512,1,1) lds={LDS_TOTAL}\n"
src += f""".amdgcn_target "amdgcn-amd-amdhsa--gfx950"
.text
.globl {NAME}
.p2align 8
.type {NAME},@function
{NAME}:
""" + body + lt + f""".section .rodata,"a"
.p2align 6
.amdhsa_kernel {NAME}
  .amdhsa_next_free_vgpr 256
  .amdhsa_next_free_sgpr 102
  .amdhsa_accum_offset 256
  .amdhsa_group_segment_fixed_size 0
  .amdhsa_kernarg_size 88
  .amdhsa_user_sgpr_count 2
  .amdhsa_user_sgpr_kernarg_segment_ptr 1
  .amdhsa_system_sgpr_workgroup_id_x 1
.end_amdhsa_kernel
"""
open(sys.argv[1], "w").write(src)
for n_, s_ in (("D1", D1), ("C", C), ("CP", CP), ("CX", CX), ("D", D)): print(n_, s_.stats(), "nops", s_.nops)
print("LDS", LDS_TOTAL)
```

```python
import sys, struct
from asmlib import *
import slotmap as sm

NAME = "standalone__deep_cross_xdeepfm__recsys_kernel"
OPT = dict(stamps=0, ns=4, nstg=6, early=2)
for a in sys.argv[2:]:
    k, v = a.split("="); OPT[k] = int(v) if v.lstrip("-").isdigit() else v
STAMPS = OPT["stamps"]

TAB = 0
IDXS = 32768
AIMG = IDXS + 6656 + 512
RS = 784
BS = 27 * RS
NS = OPT["ns"]
W3S = AIMG
RING = W3S + 4 * 11264
assert 2 * BS <= 4 * 11264
RSZ = NS * 3072
MISC = RING + 4 * RSZ
CNT2, CNT3, RDY, PCNT = 0, 4, 8, 12
M3B = MISC + 64
STG = M3B + 2048 + 64
DSC = STG + 4096
LDS_TOTAL = DSC + 4096
assert LDS_TOTAL <= 163840 and AIMG % 16 == 0
def f32(x): return "0x%08x" % struct.unpack("<I", struct.pack("<f", x))[0]
K1 = -2.0 * 0.7978845608028654 * 1.4426950408889634
K2 = K1 * 0.044715
SC1 = "sc1"
def frag_id(blk, ks): return (blk, ks)

SEL = str(OPT.get("sel", "")).split(",")
def stamp(st, name):
    if name == 0 or name == 10: idx = name
    else:
        if "R" + str(name) in SEL and STAMPS:
            j = 1 + SEL.index("R" + str(name))
            st.raw(f"s_memrealtime s[{64+2*j}:{65+2*j}]", 'misc')
            st.lg.append(Tok('lg', [], True, True))
        if str(name) in SEL: idx = 1 + SEL.index(str(name)); assert idx <= 9
        else: return
    if STAMPS:
        st.raw(f"s_memtime s[{64+2*idx}:{65+2*idx}]", 'misc')
        st.lg.append(Tok('lg', [], True, True))
def dump_stamps(st, vt, va):
    if not STAMPS: return
    if OPT.get("dbgdump"):
        if st is not C: return
        st.raw("s_memrealtime s[84:85]", 'misc')
        st.waitcnt(None, 0)
        st.s("s_cmp_eq_u32", "s2", 100); st.s("s_cbranch_scc0", "L_dd"); st.s("s_cmp_eq_u32", "s3", 0); st.s("s_cbranch_scc0", "L_dd")
        st.s("s_mov_b64", "exec", 1)
        st.v("v_mov_b32", V(va), 0)
        for i in range(1, 11):
            st.s("s_sub_u32", "s5", f"s{64+2*i}", "s100")
            st.v("v_mov_b32", V(vt), "s5")
            st.bstore("buffer_store_dword", V(vt), V(va), S(R_DBG, 4), 0, 12 + 4 * i)
        st.label("L_dd")
        return
    st.raw("s_memrealtime s[98:99]", 'misc')
    st.waitcnt(None, 0)
    st.s("s_mov_b32", "s86", "s100"); st.s("s_mov_b32", "s88", "s98"); n = 13
    st.s("s_lshl_b32", "s5", "s2", 3); st.s("s_add_u32", "s5", "s5", "s3"); st.s("s_lshl_b32", "s5", "s5", 6)
    st.s("s_add_u32", "s5", "s5", 0x100000)
    st.v("v_mov_b32", V(va), "s5")
    for i in range(n):
        st.v("v_mov_b32", V(vt), f"s{64+2*i}")
        st.gstore("global_store_dword", V(va), V(vt), "s[36:37]", off=4 * i)
    st.waitcnt(0, None)
def srd(st, r, base): st.s("s_mov_b64", S(r, 2), S(base, 2))
def srd_const(st, r, size):
    st.s("s_mov_b32", S(r + 2), size); st.s("s_mov_b32", S(r + 3), "0x20000")
def lds_signal(st, vaddr, vone, off):
    st.s("s_mov_b64", "exec", 1)
    st.dsw("ds_add_u32", V(vaddr), V(vone), off)
    st.s("s_mov_b64", "exec", -1)
def lds_wait(st, vaddr, vtmp, off, target, name, sleep=None):
    st.s("s_branch", name + "_in") if sleep is not None else None
    st.label(name)
    if sleep is not None:
        st.s("s_sleep", sleep); st.label(name + "_in")
    st.dsr("ds_read_b32", V(vtmp), V(vaddr), off)
    st.waitcnt(None, 0)
    st.v("v_readfirstlane_b32", "s5", V(vtmp))
    st.s("s_cmp_lt_u32", "s5", target)
    st.s("s_cbranch_scc1", name)
def gaddr_ops(dst, idx, vbase, tmp):
    return [("v_lshlrev_b32", V(tmp), 1, V(idx), ""), ("v_lshl_add_u32", V(dst), V(idx), 5, V(vbase), ""),
            ("v_bitop3_b32", V(dst), V(dst), V(tmp), 16, "bitop3:0x78")]
def emitv(st, o): st.v(o[0], o[1], *o[2:-1], mods=o[-1])

P = Stream()
stamp(P, 0)
if STAMPS: P.raw("s_memrealtime s[100:101]", 'misc')
ka = P.sload("s_load_dwordx16", "s[16:31]", "s[0:1]", 0)
P.v("v_lshrrev_b32", "v2", 6, "v0")
P.v("v_and_b32", "v1", 63, "v0")
P.s("s_cmp_ge_u32", "s2", 256)
P.v("v_readfirstlane_b32", "s3", "v2")
P.s("s_cbranch_scc1", "L_end")
P.raw("s_getpc_b64 s[94:95]", 'salu')
P.label("L_pc")
P.s("s_lshr_b32", "s15", "s2", 3)
R_TAB = 44
P.s("s_cmp_lt_u32", "s3", 4)
P.s("s_cbranch_scc1", "L_C")
C = P.fork()
D = P
R_W1 = 40
DACC, WF, XF, IW, B12, IW12, DT = 16, 112, 136, 152, 200, 208, 216
GI = 240
D.s("s_sub_u32", "s6", "s3", 4)
D.s("s_and_b32", "s5", "s15", 7); D.s("s_lshl_b32", "s5", "s5", 2); D.s("s_add_u32", "s5", "s5", "s6"); D.s("s_mul_i32", "s5", "s5", 10 * 128)
D.v("v_lshl_add_u32", "v8", "v1", 7, "s5")
D.raw("v_min_u32 v8, L_lut_end-L_pc-4, v8", 'misc')
D.s("s_mov_b64", "exec", "0x3ff")
D.gload("global_load_dword", "v255", "v8", "s[94:95]")
D.s("s_mov_b64", "exec", -1)
if STAMPS: D.sload("s_load_dwordx2", "s[36:37]", "s[0:1]", 80)
srd_const(D, R_W1, 416 * 832); srd_const(D, R_TAB, 32000)
D.v("v_bfe_u32", "v33", "v1", 4, 1); D.v("v_xor_b32", "v33", "v33", "v1"); D.v("v_lshlrev_b32", "v33", 4, "v33")
D.s("s_lshl_b32", "s13", "s6", 13)
for n in range(4):
    D.s("s_add_u32", "s5", "s15", n); D.s("s_and_b32", "s5", "s5", 3); D.s("s_lshl_b32", "s5", "s5", 11); D.s("s_add_u32", S(8 + n), "s5", "s13")
D.s("s_mul_i32", "s5", "s15", 79); D.s("s_lshr_b32", "s5", "s5", 10); D.s("s_mul_i32", "s5", "s5", 13); D.s("s_sub_u32", "s4", "s15", "s5")
D.s("s_mul_i32", "s12", "s4", 2 * 13312)
D.s("s_mul_i32", "s7", "s6", RSZ); D.s("s_add_u32", "s7", "s7", RING)
D.s("s_mul_i32", "s5", "s6", 192)
for m in range(3):
    D.v("v_add_u32", "v8", 64 * m, "v1") if m else None
    src = "v8" if m else "v1"
    D.v("v_mul_u32_u24", "v9", 43691, src); D.v("v_lshrrev_b32", "v9", 19, "v9")
    D.v("v_mul_u32_u24", "v10", 832 - 192, "v9"); D.v("v_lshl_add_u32", V(2 + m), src, 4, "v10"); D.v("v_add_u32", V(2 + m), "s5", V(2 + m))
D.v("v_lshlrev_b32", "v8", 2, "v1"); D.v("v_add_u32", "v9", "s5", "v8"); D.v("v_add_u32", "v10", 768 - 192, "v8")
D.v("v_cmp_gt_u32", "vcc", 48, "v1")
D.s("s_mov_b32", "m0", "s7")
D.v("v_cndmask_b32", "v9", "v10", "v9", "vcc")
D.s("s_cmp_ge_u32", "s2", 7)
D.s("s_cbranch_scc1", "L_D_nb0")
D.s("s_barrier")
D.label("L_D_nb0")
D.wait(ka)
srd(D, R_W1, 24)
dmat = {}
def w_m0(t, m): D.s("s_add_u32", "m0", "s7", (t % NS) * 3072 + 1024 * m)
def w_piece(t, m): dmat[t] = D.dma(V(2 + m), S(R_W1, 4), "s12")
def w_adv(t):
    D.s("s_add_u32", "s12", "s12", 13312)
    if t % 2 == 1:
        D.s("s_cmp_eq_u32", "s12", 26 * 13312); D.s("s_cselect_b32", "s12", 0, "s12")
w_piece(0, 0); w_m0(0, 1)
bt = D.gload("global_load_dword", "v10", "v9", "s[26:27]")
w_piece(0, 1); w_m0(0, 2)
srd(D, R_TAB, 18)
w_piece(0, 2); w_adv(0)
for n in range(4):
    D.s("s_mov_b32", "m0", S(8 + n))
    D.dma("v33", S(R_TAB, 4), S(8 + n)); tabt = D.dma("v33", S(R_TAB, 4), S(8 + n), 1024)
for t in range(1, OPT["early"]):
    for m in range(3): w_m0(t, m); w_piece(t, m)
    w_adv(t)
wt = D.gload("global_load_dword", "v11", "v9", "s[28:29]")
stamp(D, 1)
D.s("s_branch", "L_D2")
D1 = D
D = D1.fork()

R_IDX, R_CIN, R_WS, R_OUT, R_DBG, R_WO = 48, 40, 52, 56, 60, 48
C.label("L_C")
k2 = C.sload("s_load_dwordx4", "s[32:35]", "s[0:1]", 64)
C.sload("s_load_dwordx2", "s[36:37]", "s[0:1]", 80)
srd_const(C, R_IDX, 16384 * 104)
C.v("v_lshlrev_b32", "v32", 4, "v1")
C.s("s_and_b32", "s7", "s3", 1)
C.s("s_lshl_b32", "s12", "s2", 2); C.s("s_add_u32", "s12", "s12", "s3"); C.s("s_mul_i32", "s12", "s12", 1664)
C.s("s_mul_i32", "s13", "s3", 1664); C.s("s_add_u32", "s13", "s13", IDXS)
C.s("s_mov_b32", "m0", "s13")
srd_const(C, R_CIN, 105456)
C.s("s_lshl_b32", "s14", "s15", 2); C.s("s_add_u32", "s14", "s14", "s3"); C.s("s_mul_i32", "s14", "s14", 3 * 128); C.s("s_add_u32", "s14", "s14", 70272)
C.v("v_lshlrev_b32", "v7", 7, "v1")
C.wait(ka)
srd(C, R_IDX, 16)
C.dma("v32", S(R_IDX, 4), "s12")
C.s("s_mov_b32", "exec_hi", "0xff")
idxt = C.dma("v32", S(R_IDX, 4), "s12", 1024)
srd(C, R_CIN, 20)
C.s("s_mov_b64", "exec", 7)
C.bload("buffer_load_dword", "v23", "v7", S(R_CIN, 4), "s14")
C.s("s_mov_b64", "exec", -1)
stamp(C, 1)
C.s("s_cmp_ge_u32", "s2", 14)
C.s("s_cbranch_scc1", "L_CN")
CP = C.fork()
C.label("L_CN")
GA = 112
def c_setup2(C):
    srd_const(C, R_WS, 2 * BS); srd_const(C, R_OUT, 32768); srd_const(C, R_DBG, 256)
    for r, b in ((R_WS, 36), (R_OUT, 32), (R_DBG, 34)): srd(C, r, b)
    C.v("v_mov_b32", "v2", MISC)
    for r in range(24, 28): C.v("v_mov_b32", V(r), 0)
    C.dsw("ds_write_b128", "v2", "v[24:27]")
    C.v("v_mov_b32", "v5", 0); C.v("v_mov_b32", "v6", 1)
    C.v("v_and_b32", "v8", 15, "v1"); C.v("v_mul_u32_u24", "v7", 104, "v8"); C.v("v_add_u32", "v7", "s13", "v7")
    C.v("v_lshrrev_b32", "v9", 2, "v1"); C.v("v_xor_b32", "v9", "v9", "v1"); C.v("v_and_b32", "v9", 8, "v9")
    C.v("v_and_b32", "v10", 16, "v1"); C.v("v_add_u32", "v4", "v9", "v10")
def c_addr(C):
    C.wait(idxt)
    for r in range(13): C.dsr("ds_read_b64", V(GA + 2 * r, 2), "v7", 8 * r)
    for f in range(26):
        for o in gaddr_ops(GA + f, GA + f, 4, 8 + (f & 1)): emitv(C, o)

C.s("s_mov_b32", "s38", 0)
c_setup2(C)
c_addr(C)
stamp(C, 2)
C.waitcnt(0, 0)
C.s("s_barrier")
stamp(C, 3)
C.label("L_C_join")

FB = 8
UORD = [4, 5, 0, 1, 2, 3, 6, 7]
FREE_AFTER = {1: 21, 2: 34, 3: 34, 4: 34, 5: 60, 6: 60, 7: 99}
ACC = 112
SACC = 176
KAP, KAP2, MSK = 189, 190, 191
ZR = 192
NSTG = OPT["nstg"]
STGR = 204
RES0 = STGR + 4 * NSTG
def Fr(u, r):
    if u < 4: return 34 + 26 * (u & 1) + 2 * r + (u >> 1)
    return {4: 8, 5: 21, 6: 86, 7: 99}[u] + r
def Rw(f): return Fr(f & 1, f >> 1)
MX, MN = 176, 177
LEAD = 12
def sig1():
    C.s("s_cmp_eq_u32", "s38", 0); C.s("s_cbranch_scc1", "L_C_s1")
    C.s("s_mov_b64", "exec", 1)
    C.raw("s_waitcnt vmcnt(0)", 'wait')
    stamp(C, "pe")
    C.raw(f"ds_add_rtn_u32 v192, v2, v6 offset:{PCNT}", 'misc')
    C.v("v_mov_b32", "v193", 1)
    C.s("s_mov_b32", "s38", 0)
    C.raw("s_waitcnt lgkmcnt(0)", 'wait')
    C.v("v_readfirstlane_b32", "s5", "v192")
    C.s("s_cmp_lg_u32", "s5", 3); C.s("s_cbranch_scc1", "L_C_s1b")
    C.raw(f"buffer_atomic_add v193, v5, s[{R_DBG}:{R_DBG+3}], 0 offen sc0 sc1", 'misc')
    C.s("s_mov_b32", "s38", 2)
    C.label("L_C_s1b")
    C.s("s_mov_b64", "exec", -1)
    C.label("L_C_s1")
def sig2():
    C.s("s_cmp_eq_u32", "s38", 0); C.s("s_cbranch_scc1", "L_C_s2")
    C.raw("s_waitcnt vmcnt(0)", 'wait')
    C.v("v_readfirstlane_b32", "s5", "v193")
    C.s("s_cmp_lg_u32", "s5", 13); C.s("s_cbranch_scc1", "L_C_s2")
    C.s("s_mov_b64", "exec", 1)
    C.raw(f"buffer_store_dword v6, v5, s[{R_DBG}:{R_DBG+3}], 0 offen offset:128 sc1", 'misc')
    C.s("s_mov_b64", "exec", -1)
    stamp(C, "pf")
    C.label("L_C_s2")
for f in range(LEAD): C.dsr("ds_read_b64", V(Rw(f), 2), V(GA + f), TAB)
for f in range(26):
    if f == OPT.get("sig1", 6): sig1()
    if f == OPT.get("sig2", 20): sig2()
    if f + LEAD < 26: C.dsr("ds_read_b64", V(Rw(f + LEAD), 2), V(GA + f + LEAD), TAB)
    C.v("v_pk_maximum3_f16", V(MX), V(Rw(f)), V(Rw(f) + 1), V(MX) if f else V(Rw(f)))
    C.v("v_pk_minimum3_f16", V(MN), V(Rw(f)), V(Rw(f) + 1), V(MN) if f else V(Rw(f)))
stamp(C, "mx")
C.v("v_and_b32", V(MX), "0x7fff7fff", V(MX)); C.v("v_and_b32", V(MN), "0x7fff7fff", V(MN))
C.v("v_pk_max_u16", V(MX), V(MX), V(MN))
C.v("v_lshrrev_b32", V(MN), 16, V(MX)); C.v("v_and_b32", V(MX), "0xffff", V(MX)); C.v("v_max_u32", V(MX), V(MX), V(MN))
C.v("v_mov_b32", V(MN), V(MX))
C.v("v_mov_b32", V(MSK), "0xfff8fff8")
C.s("s_mov_b32", "s12", "0x05040100")
C.v("v_permlane32_swap_b32", V(MX), V(MN))
C.v("v_max_u32", V(MX), V(MX), V(MN))
C.v("v_lshrrev_b32", V(MX), 7, V(MX)); C.v("v_max_u32", V(MX), 127, V(MX)); C.v("v_min_u32", V(MX), 254, V(MX))
SCL = 4
C.v("v_sub_u32", V(MN), 260, V(MX)); C.v("v_lshlrev_b32", V(SCL), 23, V(MN))
C.v("v_lshlrev_b32", V(MX), 2, V(MX)); C.v("v_subrev_u32", "v3", 4 * 133 + 282, V(MX))
C.v("v_cvt_pkrtz_f16_f32", V(KAP), V(SCL), V(SCL))
C.v("v_pk_mul_f16", V(KAP2), V(KAP), V(KAP)); C.v("v_and_b32", V(KAP2), "0xffff", V(KAP2))
def conv_ops(kk, T0, nt):
    L = []
    for r in range(13):
        a, b = Fr(2 * kk, r), Fr(2 * kk + 1, r)
        t = T0 + 4 * (r % nt)
        lo, hi = a, b; rp = (r - 1) % 13
        L += [("v_lshlrev_b32", V(t), 16, V(a), ""), ("v_lshlrev_b32", V(t + 1), 16, V(b), ""),
              ("v_mul_f32", V(t + 2), V(SCL), V(a), ""), ("v_mul_f32", V(t + 3), V(SCL), V(b), ""),
              ("v_mul_f32", V(t), V(SCL), V(t), ""), ("v_mul_f32", V(t + 1), V(SCL), V(t + 1), ""),
              ("v_cvt_pkrtz_f16_f32", V(hi), V(t + 2), V(t + 3), ""), ("v_cvt_pkrtz_f16_f32", V(lo), V(t), V(t + 1), ""),
              ("v_and_b32", V(hi), V(MSK), V(hi), ""),
              ("v_cvt_pkrtz_f16_f32", V(Fr(4 + 2 * kk, rp)), V(t + 1), V(t), ""),
              ("v_alignbit_b32", V(Fr(5 + 2 * kk, rp)), V(hi), V(hi), 16, "")]
        if r >= 2:
            for k in range(2): L.append(("v_permlane32_swap_b32", V(Fr(2 * kk + k, r - 2)), V(Fr(4 + 2 * kk + k, r - 2)), ""))
    for r in (12, 11):
        for k in range(2): L.append(("v_permlane32_swap_b32", V(Fr(2 * kk + k, r)), V(Fr(4 + 2 * kk + k, r)), ""))
    return L
FLG = 188
ops = conv_ops(0, 192, 3) + conv_ops(1, 168, 2)
C.v("v_lshlrev_b32", V(187), 4, "v1")
def a_load(tag):
    C.raw("s_call_b64 s[92:93], L_aload", 'salu')
AS = Stream()
AS.label("L_aload")
AS.s("s_setprio", 3)
AS.s("s_lshr_b32", "s8", "s2", 3); AS.s("s_mul_i32", "s8", "s8", 11); AS.s("s_lshr_b32", "s8", "s8", 5); AS.s("s_lshl_b32", "s11", "s8", 12)
for n in range(11):
    AS.s("s_add_u32", "m0", "s11", AIMG)
    AS.s("s_mov_b32", "s13", "s11")
    for e in range(4):
        AS.raw(f"buffer_load_dwordx4 v187, s[{R_WS}:{R_WS+3}], s13 offen offset:{1024*e} sc1 lds", 'misc')
        if e == 0: AS.s("s_add_u32", "s11", "s11", 4096)
        if e == 1: AS.s("s_cmp_eq_u32", "s11", 11 * 4096)
        if e == 2: AS.s("s_cselect_b32", "s11", 0, "s11")
AS.s("s_setprio", 0)
AS.raw("s_setpc_b64 s[92:93]", 'salu')
assert 11 * 4096 <= 4 * 11264
C.s("s_mov_b32", "s38", 0)
C.s("s_cmp_eq_u32", "s3", 0); C.s("s_cselect_b32", "s39", 1, 0)
NDEF = OPT.get("ndef", 110)
ops1 = ops[len(ops) - NDEF:]; ops = ops[:len(ops) - NDEF]
CHECKS = [len(ops) * (k + 1) // 3 for k in range(2)]
def poll_issue(tag):
    C.s("s_cmp_eq_u32", "s39", 0); C.s("s_cbranch_scc1", "L_C_np" + tag)
    C.raw(f"buffer_load_dword v{FLG}, v5, s[{R_DBG}:{R_DBG+3}], 0 offen offset:128 sc1", 'misc')
    C.label("L_C_np" + tag)
poll_issue("0")
for i, o in enumerate(ops):
    if i in CHECKS:
        t = str(CHECKS.index(i) + 1)
        C.s("s_cmp_eq_u32", "s39", 0); C.s("s_cbranch_scc1", "L_C_nc" + t)
        C.raw("s_waitcnt vmcnt(0)", 'wait')
        C.v("v_readfirstlane_b32", "s5", V(FLG))
        C.s("s_getpc_b64", "s[90:91]") if False else None
        C.s("s_cmp_eq_u32", "s5", 0); C.s("s_cbranch_scc1", "L_C_rp" + t)
        a_load(t)
        C.s("s_mov_b32", "s39", 0); C.s("s_mov_b32", "s38", 1)
        C.s("s_branch", "L_C_nc" + t)
        C.label("L_C_rp" + t)
        C.raw(f"buffer_load_dword v{FLG}, v5, s[{R_DBG}:{R_DBG+3}], 0 offen offset:128 sc1", 'misc')
        C.label("L_C_nc" + t)
    emitv(C, o)
stamp(C, 6)
C.v("v_and_b32", V(186), 31, "v1"); C.v("v_lshrrev_b32", V(185), 5, "v1")
C.v("v_cmp_eq_u32", "vcc", 28, V(186)); C.v("v_cmp_gt_u32", "s[14:15]", 25, V(186)); C.v("v_mov_b32", V(184), 26)
C.v("v_cndmask_b32", V(184), V(184), 25, "vcc") if False else None
C.v("v_subb_co_u32", V(184), "s[10:11]", V(184), 0, "vcc") if False else None
C.v("v_mov_b32", V(183), 25); C.v("v_cndmask_b32", V(184), V(184), V(183), "vcc"); C.v("v_cndmask_b32", V(186), V(184), V(186), "s[14:15]")
C.v("v_mul_u32_u24", V(186), RS, V(186)); C.v("v_mul_u32_u24", V(185), 384, V(185)); C.v("v_add3_u32", "v7", V(186), V(185), "v5")
C.v("v_add_u32", "v7", AIMG, "v7")
C.s("s_cmp_eq_u32", "s39", 0); C.s("s_cbranch_scc1", "L_C_have")
C.s("s_mov_b32", "s14", 1 << 17)
C.label("L_C_poll")
C.raw("s_waitcnt vmcnt(0)", 'wait')
C.v("v_readfirstlane_b32", "s5", V(FLG))
C.s("s_cmp_lg_u32", "s5", 0)
C.s("s_cbranch_scc1", "L_C_got")
C.s("s_sub_u32", "s14", "s14", 1); C.s("s_cmp_eq_u32", "s14", 0); C.s("s_cbranch_scc1", "L_C_got")
C.raw(f"buffer_load_dword v{FLG}, v5, s[{R_DBG}:{R_DBG+3}], 0 offen offset:128 sc1", 'misc')
C.s("s_branch", "L_C_poll")
C.label("L_C_got")
stamp(C, 7)
a_load("f")
C.s("s_mov_b32", "s38", 1)
C.label("L_C_have")
for k in range(13): C.v("v_mov_b32", V(SACC + k), 0)

order = list(range(22, 24)) + list(range(22))
steps = [(n, ks) for n in range(8) for ks in order]
slots = []
for si, (n, ks) in enumerate(steps):
    if ks < 22: slots.append((si, 0))
    slots.append((si, 1))
def zops(si):
    n, ks = steps[si]; u = UORD[n]; q = ZR + 4 * (si % 3); L = []
    for j in range(4):
        ins = sm.dwords[4 * ks + j]; d = V(q + j)
        if ins[0] == 'A': L.append(("v_pk_mul_f16", d, V(Fr(u, ins[1])), V(Fr(u, ins[2])), "op_sel:[0,0] op_sel_hi:[0,1]"))
        elif ins[0] == 'D': L.append(("v_pk_mul_f16", d, V(Fr(u, ins[1])), V(Fr(u, ins[1])), "op_sel:[0,0] op_sel_hi:[0,1]"))
        elif ins[0] == 'E':
            L.append(("v_perm_b32", d, V(Fr(u, ins[2])), V(Fr(u, ins[1])), "s12", ""))
            L.append(("v_pk_mul_f16", d, d, d, ""))
        elif ins[0] == 'L': L.append(("v_pk_mul_f16", d, V(Fr(u, ins[1])), V(KAP), ""))
        else: L.append(("v_mov_b32", d, V(KAP2), ""))
    return L
for si in (0, 1):
    for o in zops(si): emitv(C, o)
C.s("s_cmp_eq_u32", "s38", 0); C.s("s_cbranch_scc1", "L_C_w2_in")
C.raw("s_waitcnt vmcnt(0)", 'wait')
C.dsw("ds_write_b32", "v2", "v6", CNT2)
C.s("s_branch", "L_C_go")
C.label("L_C_w2")
C.s("s_sleep", 1)
C.label("L_C_w2_in")
C.dsr("ds_read_b32", V(255), "v2", CNT2); C.waitcnt(None, 0)
C.v("v_readfirstlane_b32", "s5", V(255)); C.s("s_cmp_eq_u32", "s5", 0); C.s("s_cbranch_scc1", "L_C_w2")
C.label("L_C_go")
C.s("s_setprio", 1)
stamp(C, 8)
resident = {}
free_quads = list(range(RES0, 253, 4))
LOOK = NSTG - 1
stg_next = [0]; slot_reg = {}
def plan_read(i):
    si, blk = slots[i]; n, ks = steps[si]; fid = frag_id(blk, ks)
    if fid in resident: slot_reg[i] = resident[fid]; return
    if free_quads and n < 7:
        reg = free_quads.pop(0); resident[fid] = reg
    else:
        reg = STGR + 4 * stg_next[0]; stg_next[0] = (stg_next[0] + 1) % NSTG
    slot_reg[i] = reg
    C.dsr("ds_read_b128", V(reg, 4), "v7", blk * BS + ks * 16)
for i in range(LOOK): plan_read(i)
pend = []; freed_upto = FB; first_of = {}; epi = []
EXR, EXU = 60, 73
T1, T2 = 97, 98
tail_pre = []
for i, (si, blk) in enumerate(slots):
    n, ks = steps[si]
    newstep = i == 0 or slots[i - 1][0] != si
    if newstep:
        assert not pend
        if si + 2 < len(steps): pend = zops(si + 2)
        if ks == order[0] and n > 0:
            a = ACC + 32 * ((n - 1) & 1)
            epi = [("v_fmac_f32", V(SACC + k), V(a + k), V(a + 16 + k), "") for k in range(13)]
            epi_at = i + 3
            lim = FREE_AFTER[n]
            while freed_upto + 4 <= lim and n < 7:
                free_quads.append(freed_upto); freed_upto += 4
            if n == 1: assert not ops1, len(ops1)
            if n == 6:
                assert freed_upto <= EXR
                tail_pre = [("v", "v_lshrrev_b32", V(MSK), 5, "v1", ""), ("v", "v_mul_u32_u24", V(SCL), RS, V(MSK), ""), ("v", "v_lshlrev_b32", V(MSK), 2, V(SCL), ""),
                            ("v", "v_add_u32", V(MSK), AIMG + 768, V(MSK), ""), ("v", "v_add_u32", V(SCL), AIMG + 768, V(SCL), "")]
                for k in range(13):
                    row = 8 * (k // 4) + k % 4; ar = V(SCL) if k == 12 else V(MSK)
                    tail_pre += [("r", "ds_read_b32", V(EXR + k), ar, row * RS), ("r", "ds_read_b32", V(EXU + k), ar, BS + row * RS)]
                tail_pre += [("g",)]
                tail_pre += [("v", "v_add3_u32", V(EXR + k), V(EXR + k), V(EXU + k), "v3", "") for k in range(13)]
            if n == 7:
                assert not tail_pre
                tail_pre = [
                  ("v", "v_lshrrev_b32", V(T1), 4, "v1", ""), ("v", "v_mul_u32_u24", V(T1), RSZ, V(T1), ""), ("v", "v_and_b32", "v5", 15, "v1", ""),
                  ("v", "v_lshl_add_u32", V(T1), "v5", 2, V(T1), ""), ("s", "s_lshl_b32", "s5", "s3", 6), ("s", "s_add_u32", "s5", "s5", RING),
                  ("v", "v_add_u32", V(T1), "s5", V(T1), ""),
                  ("s", "s_mul_i32", "s5", "s3", RSZ), ("s", "s_add_u32", "s5", "s5", RING + 256), ("v", "v_lshl_add_u32", V(T2), "v1", 2, "s5", ""),
                  ("v", "v_lshlrev_b32", "v5", 1, "v5", ""),
                  ("s", "s_lshl_b32", "s13", "s2", 2), ("s", "s_add_u32", "s13", "s13", "s3"), ("s", "s_lshl_b32", "s13", "s13", 5),
                  ("v", "v_lshlrev_b32", "v6", 16, "v6", "")]
    last_in_step = i + 1 == len(slots) or slots[i + 1][0] != si
    if i + LOOK < len(slots): plan_read(i + LOOK)
    acc = ACC + 32 * (n & 1) + 16 * blk
    first = (n, blk) not in first_of; first_of[(n, blk)] = 1
    C.mfma("v_mfma_f32_32x32x16_f16", V(acc, 16), V(slot_reg[i], 4), V(ZR + 4 * (si % 3), 4), 0 if first else V(acc, 16))
    cnt = len(pend) if last_in_step else (len(pend) + 1) // 2
    for o in pend[:cnt]: emitv(C, o)
    pend = pend[cnt:]
    if epi and i >= epi_at:
        for _ in range(2):
            if epi: emitv(C, epi.pop(0))
    elif ops1 and cnt <= 2:
        for _ in range(3):
            if ops1: emitv(C, ops1.pop(0))
    elif tail_pre and not epi and cnt <= 2:
        for _ in range(2):
            if not tail_pre: break
            o = tail_pre.pop(0)
            if o[0] == "v": emitv(C, o[1:])
            elif o[0] == "r": C.dsr(*o[1:])
            elif o[0] == "s": C.s(*o[1:])
            else: C.gload("global_load_ushort", "v6", "v5", "s[30:31]")
    if i == len(slots) - 4:
        assert not tail_pre
        C.dsr("ds_read_b32", V(KAP), "v2", CNT3); C.dsr("ds_read_b32", V(KAP2), V(T1)); C.dsr("ds_read_b32", V(MSK), V(T2))
stamp(C, 9)
a = ACC + 32
C.v("v_readfirstlane_b32", "s5", V(KAP))
C.s("s_cmp_ge_u32", "s5", 4)
C.s("s_cbranch_scc1", "L_C_fin")
C.s("s_setprio", 0)
lds_wait(C, 2, KAP, CNT3, 4, "L_C_w3", sleep=1)
C.dsr("ds_read_b32", V(KAP2), V(T1)); C.dsr("ds_read_b32", V(MSK), V(T2))
C.label("L_C_fin")
C.waitcnt(None, 0)
C.v("v_add_f32", V(KAP2), V(KAP2), V(MSK))
C.raw("s_nop 7", 'nop'); C.out[-1].states = 8
for k in range(13): C.v("v_fmac_f32", V(SACC + k), V(a + k), V(a + 16 + k))
for k in range(13): C.v("v_ldexp_f32", V(SACC + k), V(SACC + k), V(EXR + k))
C.v("v_add_f32", V(SACC + 12), V(SACC + 12), V(KAP2))
for st_ in (1, 2, 4, 8):
    for k in range(0, 13, 2 * st_):
        if k + st_ < 13: C.v("v_add_f32", V(SACC + k), V(SACC + k), V(SACC + k + st_))
C.v("v_mov_b32", V(SACC + 1), V(SACC)); C.v("v_permlane32_swap_b32", V(SACC), V(SACC + 1)); C.v("v_add_f32", V(SACC), V(SACC), V(SACC + 1))
C.v("v_mov_b32", V(SACC + 1), V(SACC)); C.v("v_permlane16_swap_b32", V(SACC), V(SACC + 1))
C.v("v_add_f32", V(SACC), V(SACC), V(SACC + 1))
C.v("v_add_f32", V(SACC), V(SACC), "v6")
C.v("v_cvt_pk_bf16_f32", V(SACC), V(SACC), V(SACC))
C.s("s_mov_b64", "exec", "0xffff")
C.bstore("buffer_store_short", V(SACC), "v5", S(R_OUT, 4), "s13")
if STAMPS:
    C.s("s_mov_b64", "exec", -1)
    stamp(C, 10)
    dump_stamps(C, 250, 251)
C.s("s_endpgm")

WOF, BF, MD, MA, NF, LUT, IDN, MF, TD, TF, SD, FAC, LA = 44, 48, 92, 236, 140, 148, 164, 172, 180, 196, 204, 156, 220
lut = [[None] * 16 for _ in range(64)]
for l in range(64):
    j, hfc = l & 31, l >> 5
    for k in range(14):
        q = 8 * (k // 4) + 4 * hfc + k % 4
        if q < 26 and j <= 26 and q <= j:
            hf, di, half = sm.target[(q, j)]
            lut[l][k] = hf * 384 + di * 4 + half * 2
hf, di, half = sm.target[(26, 26)]
lut[0][14] = hf * 384 + di * 4 + half * 2
def emask(k): return sum(1 << l for l in range(64) if lut[l][k] is not None)
fac = [[0x3c003c00] * 4 for _ in range(64)]
for a_ in range(26):
    hf, di, half = sm.target[(a_, a_)]
    l = hf * 24 + di // 4
    fac[l][di % 4] = (fac[l][di % 4] & ~(0xffff << (16 * half))) | (0x3800 << (16 * half))
def producer(Q, typ):
    tag = "u" if typ == 1 else "x"
    Q.s("s_setprio", 3)
    if typ == 1:
        Q.s("s_mul_i32", "s90", "s3", 11264); Q.s("s_add_u32", "s90", "s90", W3S)
        Q.s("s_mul_i32", "s91", "s3", 352); Q.s("s_add_u32", "s91", "s91", 70304)
        for m in range(9):
            t = 28 + (m & 1)
            src = "v1"
            if m: Q.v("v_add_u32", "v30", 64 * m, "v1"); src = "v30"
            Q.v("v_mul_u32_u24", "v31", 2979, src); Q.s("s_add_u32", "m0", "s90", 1024 * m); Q.v("v_lshrrev_b32", "v31", 16, "v31")
            Q.v("v_mul_u32_u24", "v31", 1000, "v31"); Q.v("v_lshl_add_u32", V(t), src, 4, "v31")
            w3t = Q.dma(V(t), S(R_CIN, 4), "s91")
            if m == 0:
                Q.s("s_mov_b32", S(R_WO + 2), 156); srd(Q, R_WO, 22)
                Q.v("v_and_b32", "v34", 48, "v1")
                Q.bload("buffer_load_dwordx4", V(WOF, 4), "v34", S(R_WO, 4), 0, 104)
        Q.s("s_lshl_b32", "s39", "s2", 2)
    else:
        Q.s("s_sub_u32", "s39", "s2", 7); Q.s("s_lshl_b32", "s39", "s39", 2)
    Q.s("s_add_u32", "s39", "s39", "s3")
    Q.s("s_mul_i32", "s93", "s39", 52 if typ == 1 else 1352)
    if typ == 1: Q.s("s_add_u32", "s93", "s93", 35152)
    Q.v("v_and_b32", "v29", 31, "v1"); Q.v("v_lshrrev_b32", "v30", 5, "v1")
    Q.v("v_mul_u32_u24", "v31", 1352 if typ == 1 else 52, "v29"); Q.v("v_lshl_add_u32", "v31", "v30", 4, "v31")
    if typ == 1:
        Q.v("v_lshlrev_b32", "v34", 1, "v29")
        Q.bload("buffer_load_ushort", "v34", "v34", S(R_WO, 4), 0, 52)
    Q.bload("buffer_load_dwordx4", V(NF, 4), "v31", S(R_CIN, 4), "s93")
    Q.bload("buffer_load_dwordx4", V(NF + 4, 4), "v31", S(R_CIN, 4), "s93", 32)
    Q.raw("s_add_u32 s94, s94, L_lut-L_pc", 'salu'); Q.raw("s_addc_u32 s95, s95, 0", 'salu')
    if typ == 1:
        Q.s("s_lshl_b32", "s5", "s39", 1); Q.v("v_mov_b32", "v35", 0)
        Q.bload("buffer_load_ushort", "v35", "v35", S(R_WO, 4), "s5")
    for c in range(3): Q.gload("global_load_dwordx4", V(LUT + 4 * c, 4), "v32", "s[94:95]", c * 1024)
    Q.s("s_branch", "L_P2" + tag)
    Q.label("L_P2" + tag)
    stamp(Q, 2)
    c_setup2(Q)
    Q.s("s_lshl_b32", "s5", "s3", 10); Q.s("s_add_u32", "s92", "s5", STG)
    Q.v("v_add_u32", "v41", "s92", "v32")
    Q.dsw("ds_write_b128", "v41", "v[24:27]")
    Q.v("v_and_b32", "v36", 1, "v29"); Q.v("v_lshlrev_b32", "v36", 4, "v36")
    Q.v("v_mov_b32", "v37", "0x3f80"); Q.v("v_lshlrev_b32", "v37", "v36", "v37")
    Q.v("v_cmp_gt_u32", "vcc", 26, "v29"); Q.v("v_lshrrev_b32", "v38", 1, "v29")
    Q.v("v_lshlrev_b32", "v39", 2, "v30"); Q.v("v_cndmask_b32", "v37", 0, "v37", "vcc")
    Q.v("v_sub_u32", "v39", "v38", "v39")
    Q.v("v_lshlrev_b32", "v40", 1, "v30"); Q.v("v_sub_u32", "v40", "v38", "v40")
    def ident(dst, vsel, key):
        for s_ in range(2):
            for m in range(0, 4, 2):
                Q.v("v_cmp_eq_u32", "vcc", key(s_, m), vsel); Q.v("v_cmp_eq_u32", "s[96:97]", key(s_, m + 1), vsel)
                Q.v("v_cndmask_b32", V(dst + 4 * s_ + m), 0, "v37", "vcc"); Q.v("v_cndmask_b32", V(dst + 4 * s_ + m + 1), 0, "v37", "s[96:97]")
    ident(IDN, "v39", lambda s_, m: 8 * s_ + m)
    if typ == 2: ident(MF, "v40", lambda s_, m: 8 * s_ + 4 * (m >> 1) + (m & 1))
    def t_part():
        Q.mfma("v_mfma_f32_32x32x16_bf16", V(TD, 16), V(NF, 4), V(IDN, 4), 0)
        Q.mfma("v_mfma_f32_32x32x16_bf16", V(TD, 16), V(NF + 4, 4), V(IDN + 4, 4), V(TD, 16))
    def t_part2():
        Q.v("v_mov_b32", "v36", "s92")
        for k in range(15):
            Q.v("v_add_u32_sdwa", V(LA + k), "v36", V(LUT + k // 2), mods=f"dst_sel:DWORD dst_unused:UNUSED_PAD src0_sel:DWORD src1_sel:WORD_{k&1}")
        for m in range(8): Q.v("v_cvt_pk_bf16_f32", V(TF + m), V(TD + 2 * m), V(TD + 2 * m + 1))
    if typ == 1:
        Q.v("v_add_u32", "v42", "s90", "v32"); Q.dsw("ds_write_b128", "v42", "v[24:27]", 9216); Q.dsw("ds_write_b128", "v42", "v[24:27]", 10240)
        Q.s("s_mov_b64", "exec", "0xffffff")
        Q.v("v_add_u32", "v42", M3B + 26 * 64, "v32"); Q.dsw("ds_write_b128", "v42", "v[24:27]")
        Q.s("s_mov_b64", "exec", -1)
        Q.v("v_lshrrev_b32", "v38", 4, "v1"); Q.v("v_bfe_u32", "v39", "v1", 2, 2); Q.v("v_lshl_add_u32", "v38", "v38", 3, "v39"); Q.v("v_mul_u32_u24", "v38", 352, "v38")
        Q.v("v_and_b32", "v40", 3, "v1"); Q.v("v_lshl_add_u32", "v38", "v40", 3, "v38"); Q.v("v_add_u32", "v28", "s90", "v38")
        Q.v("v_lshl_add_u32", "v39", "v30", 2, "v39"); Q.v("v_lshlrev_b32", "v39", 6, "v39"); Q.v("v_lshl_add_u32", "v39", "v40", 3, "v39")
        Q.v("v_and_b32", "v40", 16, "v1"); Q.v("v_lshl_add_u32", "v39", "v40", 1, "v39"); Q.v("v_add_u32", "v42", M3B, "v39")
        Q.s("s_mul_i32", "s5", "s3", 176); Q.v("v_and_b32", "v38", 15, "v1"); Q.v("v_add_u32", "v38", "s5", "v38")
        Q.v("v_mov_b32", "v43", M3B)
        for T in range(11):
            if T: Q.v("v_add_u32", "v38", 16, "v38")
            Q.v("v_mul_u32_u24", "v39", 2521, "v38"); Q.v("v_lshrrev_b32", "v39", 16, "v39")
            Q.v("v_mad_u32_u24", "v39", "v39", 12, "v43"); Q.v("v_lshl_add_u32", V(MA + T), "v38", 1, "v39")
            if T >= 9:
                Q.v("v_cmp_gt_u32", "vcc", 676, "v38"); Q.v("v_mov_b32", "v39", M3B + 2048); Q.v("v_cndmask_b32", V(MA + T), "v39", V(MA + T), "vcc")
        Q.v("v_lshl_add_u32", "v43", "v29", 6, "v43")
        stamp(Q, "pa")
        Q.wait(w3t)
        for T in range(11):
            for h in range(2): Q.dsr("ds_read_b64_tr_b16", V(BF + 4 * T + 2 * h, 2), "v28", 32 * T + 4 * 352 * h)
        for T in range(11):
            Q.mfma("v_mfma_f32_16x16x32_bf16", V(MD + 4 * T, 4), V(WOF, 4), V(BF + 4 * T, 4), 0)
        Q.s("s_mov_b64", "exec", "0xffff")
        for T in range(11):
            Q.v("v_cvt_pk_bf16_f32", V(MD + 4 * T), V(MD + 4 * T), V(MD + 4 * T)); Q.dsw("ds_write_b16", V(MA + T), V(MD + 4 * T))
        Q.s("s_mov_b64", "exec", "0x3ffffff")
        Q.dsw("ds_write_b32", "v43", "v34", 52); Q.dsw("ds_write_b64", "v43", "v[24:25]", 56)
        Q.s("s_mov_b64", "exec", -1)
        t_part()
        stamp(Q, "pb")
        Q.waitcnt(None, 0)
        Q.s("s_barrier")
        for s_ in range(2):
            for jj in range(2): Q.dsr("ds_read_b64_tr_b16", V(MF + 4 * s_ + 2 * jj, 2), "v42", (16 * s_ + 8 * jj) * 64)
        t_part2()
    else:
        t_part(); t_part2()
    Q.wait(idxt)
    for r in range(13): Q.dsr("ds_read_b64", V(GA + 2 * r, 2), "v7", 8 * r)
    aops = []
    for f in range(26): aops += gaddr_ops(GA + f, GA + f, 4, 8 + (f & 1))
    for mm in ((TF, MF, 0), (TF + 4, MF + 4, V(SD, 16)), (MF, TF, V(SD, 16)), (MF + 4, TF + 4, V(SD, 16))):
        Q.mfma("v_mfma_f32_32x32x16_bf16", V(SD, 16), V(mm[0], 4), V(mm[1], 4), mm[2])
        for o in aops[:6]: emitv(Q, o)
        aops = aops[6:]
    for o in aops[:9]: emitv(Q, o)
    aops = aops[9:]
    ne = 15 if typ == 1 else 14
    Q.s("s_mul_i32", "s93", "s39", RS)
    if typ == 1: Q.s("s_add_u32", "s93", "s93", BS)
    if typ == 1: Q.v("v_lshlrev_b32", V(SD + 14), 16, "v35")
    Q.v("v_max3_f32", "v44", f"|{V(SD)}|", f"|{V(SD+1)}|", f"|{V(SD+ne-1)}|")
    Q.v("v_max3_f32", "v45", f"|{V(SD+2)}|", f"|{V(SD+3)}|", f"|{V(SD+4)}|")
    for k in range(5, 13, 4):
        Q.v("v_max3_f32", "v44", f"|{V(SD+k)}|", f"|{V(SD+k+1)}|", "v44"); Q.v("v_max3_f32", "v45", f"|{V(SD+k+2)}|", f"|{V(SD+k+3)}|", "v45")
    Q.v("v_max3_f32", "v44", f"|{V(SD+13)}|", "v45", "v44")
    for sh in (8, 4, 2, 1):
        for o in aops[:2]: emitv(Q, o)
        aops = aops[2:]
        Q.v("v_max_f32_dpp", "v44", "v44", "v44", mods=f"row_ror:{sh} row_mask:0xf bank_mask:0xf")
    for q in range(4): Q.v("v_readlane_b32", S(8 + q), "v44", 16 * q)
    stamp(Q, "pc")
    Q.s("s_max_u32", "s8", "s8", "s9"); Q.s("s_max_u32", "s10", "s10", "s11"); Q.s("s_max_u32", "s8", "s8", "s10")
    Q.s("s_lshr_b32", "s8", "s8", 23); Q.s("s_max_u32", "s8", "s8", 67); Q.s("s_min_u32", "s8", "s8", 187)
    Q.s("s_sub_u32", "s9", 268, "s8"); Q.s("s_lshl_b32", "s9", "s9", 23)
    Q.s("s_cmp_ge_u32", "s39", 26); Q.s("s_cselect_b32", "s9", 0, "s9")
    for k in range(ne): Q.v("v_mul_f32", V(SD + k), "s9", V(SD + k))
    for k in range(0, ne, 2): Q.v("v_cvt_pk_f16_f32", V(SD + k), V(SD + k), V(SD + min(k + 1, ne - 1)))
    for k in range(ne):
        m = emask(k)
        Q.s("s_mov_b32", "exec_lo", "0x%x" % (m & 0xffffffff)); Q.s("s_mov_b32", "exec_hi", "0x%x" % (m >> 32))
        Q.dsw("ds_write_b16_d16_hi" if k & 1 else "ds_write_b16", V(LA + k), V(SD + (k & ~1)))
    Q.s("s_mov_b64", "exec", -1)
    Q.dsr("ds_read_b128", "v[240:243]", "v41")
    for o in aops[:12]: emitv(Q, o)
    aops = aops[12:]
    for e in range(4): Q.v("v_pk_mul_f16", V(240 + e), V(240 + e), V(FAC + e))
    Q.s("s_cmp_ge_u32", "s39", 27)
    Q.v("v_writelane_b32", "v240", "s8", 48)
    Q.s("s_cbranch_scc1", "L_P_skip" + tag)
    Q.cond = True
    Q.s("s_mov_b32", "exec_hi", "0x1ffff")
    Q.bstore("buffer_store_dwordx4", "v[240:243]", "v32", S(R_WS, 4), "s93", mods=SC1)
    Q.s("s_mov_b32", "exec_hi", -1)
    Q.cond = False
    Q.label("L_P_skip" + tag)
    stamp(Q, "pd")
    for o in aops: emitv(Q, o)
    Q.s("s_mov_b32", "s38", 1)
    Q.waitcnt(None, 0)
    Q.s("s_barrier")
    stamp(Q, 3)
    Q.s("s_setprio", 0)
    Q.s("s_branch", "L_C_join")
CP.s("s_cmp_ge_u32", "s2", 7)
CP.s("s_cbranch_scc1", "L_CX")
CX = CP.fork()
producer(CP, 1)
CX.label("L_CX")
producer(CX, 2)

D.label("L_D2")
D.v("v_lshrrev_b32", "v12", 5, "v1")
D.v("v_bfe_u32", "v13", "v1", 2, 2); D.v("v_lshl_add_u32", "v13", "v12", 3, "v13"); D.v("v_mul_u32_u24", "v13", 192, "v13")
D.v("v_and_b32", "v14", 1, "v1"); D.v("v_lshl_add_u32", "v13", "v14", 5, "v13")
D.v("v_bfe_u32", "v14", "v1", 1, 1); D.v("v_lshl_add_u32", "v13", "v14", 3, "v13")
D.v("v_bfe_u32", "v14", "v1", 4, 1); D.v("v_lshl_add_u32", "v13", "v14", 4, "v13")
D.v("v_add_u32", "v5", "s7", "v13")
D.v("v_and_b32", "v13", 31, "v1"); D.v("v_mul_u32_u24", "v6", 104, "v13")
D.s("s_lshl_b32", "s10", "s4", 3)
D.v("v_add_u32", "v7", "s10", "v6")
D.s("s_lshl_b32", "s5", "s6", 10); D.s("s_add_u32", "s5", "s5", DSC)
D.v("v_lshl_add_u32", "v13", "v1", 3, "s5")
D.v("v_lshl_add_u32", "v14", "v12", 6, "s5")
D.v("v_lshrrev_b32", "v15", 4, "v1"); D.v("v_lshl_add_u32", "v15", "v15", 4, "s5")
D.v("v_lshlrev_b32", "v12", 4, "v12")
D.v("v_mov_b32", "v8", MISC); D.v("v_mov_b32", "v9", 1)
def i_reads(p): return [("ds_read_b64", V(GI + 4 * (p & 1) + 2 * cb, 2), "v7", IDXS + cb * 32 * 104) for cb in (1, 0)]
def i_adv():
    D.s("s_add_u32", "s10", "s10", 8); D.s("s_cmp_eq_u32", "s10", 104); D.s("s_cselect_b32", "s10", 0, "s10")
    D.v("v_add_u32", "v7", "s10", "v6")
def i_addr(p):
    L = []
    for k in range(4): L += gaddr_ops(GI + 4 * (p & 1) + k, GI + 4 * (p & 1) + k, 12, 248 + k)
    return L
D.v("v_lshlrev_b32", V(DT), 16, "v10"); D.v("v_and_b32", V(DT + 1), "0xffff0000", "v10")
D.dsw("ds_write_b64", "v13", V(DT, 2))
for b in range(3):
    for g in range(4): D.dsr("ds_read_b128", V(DACC + 32 * b + 4 * g, 4), "v14", 128 * b + 16 * g)
for T in range(2): D.dsr("ds_read_b128", V(B12 + 4 * T, 4), "v15", 384 + 64 * T)
def w_reads(t):
    return [("ds_read_b64_tr_b16", V(WF + 12 * (t & 1) + 4 * b + 2 * h, 2), "v5", (t % NS) * 3072 + 64 * b + 768 * h) for b in range(3) for h in range(2)]
def x_reads(t): return [("ds_read_b128", V(XF + 8 * (t & 1) + 4 * cb, 4), V(GI + 4 * ((t >> 1) & 1) + 2 * cb + (t & 1)), TAB) for cb in (1, 0)]
D.wait(dmat[0])
stamp(D, 7)
wtok = {}
for o in w_reads(0): wtok[0] = D.dsr(*o)
D.wait(tabt)
stamp(D, 8)
D.s("s_barrier")
stamp(D, 3)
D.s("s_setprio", 2)
for o in i_reads(0): D.dsr(*o)
i_adv()
for o in i_reads(1): D.dsr(*o)
i_adv()
a0 = i_addr(0)
for o in a0[6:9] + a0[0:3]: emitv(D, o)
for o in x_reads(0): D.dsr(*o)
for o in a0[9:12] + a0[3:6]: emitv(D, o)
for t in range(OPT["early"], NS):
    for m in range(3): w_m0(t, m); w_piece(t, m)
    w_adv(t)
b12_groups = [list(range(0, 7)), list(range(7, 13))] if NS >= 5 else [list(range(0, 5)), list(range(5, 9)), list(range(9, 13))]
for t in range(26):
    nxt = t + 1 < 26
    wr = w_reads(t + 1) if nxt else []
    xr = x_reads(t + 1) if nxt else []
    dm = t + NS < 26
    p = t >> 1
    av = i_addr(p + 1) if (t % 2 == 0 and p + 1 < 13) else []
    k = 0
    if t in (1, 4, 10, 18): stamp(D, {1: "mx", 4: "pf", 10: 6, 18: 9}[t])
    for b in range(3):
        for cb in (1, 0):
            acc = DACC + 32 * b + 16 * cb
            srcc = V(DACC + 32 * b, 16) if t == 0 else V(acc, 16)
            D.mfma("v_mfma_f32_32x32x16_bf16", V(acc, 16), V(WF + 12 * (t & 1) + 4 * b, 4), V(XF + 8 * (t & 1) + 4 * cb, 4), srcc)
            if k == 1 and nxt:
                for o in xr: D.dsr(*o)
                D.wait(dmat[t + 1])
                for o in wr[:3]: D.dsr(*o)
            if k == 2 and nxt:
                if dm: w_m0(t + NS, 0)
                for o in wr[3:]: wtok[t + 1] = D.dsr(*o)
                if t % 2 == 0 and p + 2 < 13:
                    for o in i_reads(p + 2): D.dsr(*o)
                    i_adv()
            if k >= 3:
                if dm:
                    if k == 3: D.wait(wtok[t])
                    w_piece(t + NS, k - 3)
                    if k < 5: w_m0(t + NS, k - 2)
                    else: w_adv(t + NS)
                for o in av[4 * (k - 3):4 * (k - 2)]: emitv(D, o)
            k += 1
stamp(D, 4)
D.s("s_setprio", 0)
D.v("v_mov_b32", V(DT + 4), f32(2.0 ** 100))
D.v("v_lshlrev_b32", V(DT + 2), 16, "v11"); D.v("v_and_b32", V(DT + 3), "0xffff0000", "v11")
D.v("v_rcp_f32", V(DT + 2), V(DT + 2)); D.v("v_rcp_f32", V(DT + 3), V(DT + 3))
D.v("v_med3_f32", V(DT + 2), V(DT + 2), V(DT + 4), "-" + V(DT + 4)); D.v("v_med3_f32", V(DT + 3), V(DT + 3), V(DT + 4), "-" + V(DT + 4))
D.dsw("ds_write_b64", "v13", V(DT + 2, 2), 512)
for b in range(3):
    for g in range(4): D.dsr("ds_read_b128", V(IW + 16 * b + 4 * g, 4), "v14", 512 + 128 * b + 16 * g)
for T in range(2): D.dsr("ds_read_b128", V(IW12 + 4 * T, 4), "v15", 512 + 384 + 64 * T)
D.v("v_lshrrev_b32", "v10", 2, "v1"); D.v("v_mul_u32_u24", "v10", 832, "v10")
D.v("v_lshrrev_b32", "v11", 4, "v1"); D.v("v_and_b32", "v11", 2, "v11"); D.v("v_xor_b32", "v11", "v11", "v1"); D.v("v_and_b32", "v11", 3, "v11")
D.v("v_lshl_add_u32", "v2", "v11", 4, "v10"); D.v("v_add_u32", "v2", 768, "v2")
D.v("v_lshrrev_b32", "v10", 4, "v1"); D.v("v_bfe_u32", "v11", "v1", 2, 2); D.v("v_lshl_add_u32", "v11", "v10", 3, "v11"); D.v("v_lshlrev_b32", "v11", 6, "v11")
D.v("v_and_b32", "v12", 1, "v10"); D.v("v_lshl_add_u32", "v11", "v12", 5, "v11"); D.v("v_and_b32", "v13", 3, "v1"); D.v("v_lshl_add_u32", "v11", "v13", 3, "v11")
D.v("v_xor_b32", "v13", 32, "v11"); D.v("v_add_u32", "v3", "s7", "v11"); D.v("v_add_u32", "v4", "s7", "v13")
D.v("v_lshlrev_b32", "v12", 4, "v12")
D.v("v_and_b32", "v13", 15, "v1"); D.v("v_mul_u32_u24", "v13", 104, "v13"); D.v("v_lshrrev_b32", "v10", 1, "v10"); D.v("v_lshl_add_u32", "v13", "v10", 2, "v13")
D.s("s_mul_i32", "s5", "s6", 1664); D.v("v_add_u32", "v7", "s5", "v13")
G12 = 232
for t in range(13): D.dsr("ds_read_b32", V(G12 + t), "v7", IDXS + 8 * t)
for t in range(13):
    for o in gaddr_ops(G12 + t, G12 + t, 12, 248 + (t & 1)): emitv(D, o)
def b12_dma(grp):
    tk = None
    for n, t in enumerate(grp):
        for h in range(2):
            D.s("s_add_u32", "m0", "s7", n * 2048 + 1024 * h)
            D.s("s_mov_b32", "s12", (32 * t + 16 * h) * 832)
            tk = D.dma("v2", S(R_W1, 4), "s12")
    return tk
def b12_rd(n, t):
    o = 12 * (n % 3)
    D.dsr("ds_read_b128", V(WF + o + 8, 4), V(G12 + t), TAB)
    for T in range(2):
        for h in range(2): D.dsr("ds_read_b64_tr_b16", V(WF + o + 4 * T + 2 * h, 2), V(3 + T), n * 2048 + 256 * h)
def b12_mm(grp, tk):
    D.wait(tk)
    for n in range(min(2, len(grp))): b12_rd(n, grp[n])
    for n, t in enumerate(grp):
        if n + 2 < len(grp): b12_rd(n + 2, grp[n + 2])
        o = 12 * (n % 3)
        for T in range(2):
            D.mfma("v_mfma_f32_16x16x32_bf16", V(B12 + 4 * T, 4), V(WF + o + 4 * T, 4), V(WF + o + 8, 4), V(B12 + 4 * T, 4))
VK1, VK2, S0, S1, S2 = DT, DT + 1, DT + 2, DT + 3, DT + 4
D.v("v_mov_b32", V(VK1), f32(K1)); D.v("v_mov_b32", V(VK2), f32(K2))
for r in (S0, S1, S2): D.v("v_mov_b32", V(r), 0)
GT = DT + 8
def gelu(items):
    for g0 in range(0, len(items), 4):
        grp = items[g0:g0 + 4]
        t = [GT + 4 * ((g0 // 4) & 1) + i for i in range(len(grp))]
        for (x, w, s), r in zip(grp, t): D.v("v_mul_f32", V(r), V(x), V(x))
        for (x, w, s), r in zip(grp, t): D.v("v_fma_f32", V(r), V(r), V(VK2), V(VK1))
        for (x, w, s), r in zip(grp, t): D.v("v_mul_f32", V(r), V(x), V(r))
        for (x, w, s), r in zip(grp, t): D.v("v_exp_f32", V(r), V(r))
        for (x, w, s), r in zip(grp, t): D.v("v_fma_f32", V(r), V(r), V(w), V(w))
        for (x, w, s), r in zip(grp, t): D.v("v_rcp_f32", V(r), V(r))
        for (x, w, s), r in zip(grp, t): D.v("v_fmac_f32", V(s), V(x), V(r))
for b in range(3):
    tk = None
    if b < len(b12_groups):
        D.waitcnt(None, 0)
        tk = b12_dma(b12_groups[b])
    its = []
    for k in range(16):
        its.append((DACC + 32 * b + k, IW + 16 * b + k, S0)); its.append((DACC + 32 * b + 16 + k, IW + 16 * b + k, S1))
    gelu(its)
    if tk:
        D.s("s_setprio", 2); b12_mm(b12_groups[b], tk); D.s("s_setprio", 0)
gelu([(B12 + k, IW12 + k, S2) for k in range(8)])
D.v("v_permlane32_swap_b32", V(S0), V(S1)); D.v("v_add_f32", V(S0), V(S0), V(S1))
D.v("v_lshl_add_u32", "v10", "v1", 2, "s7")
D.dsw("ds_write_b32", "v10", V(S0)); D.dsw("ds_write_b32", "v10", V(S2), 256)
lds_signal(D, 8, 9, CNT3)
stamp(D, 10)
dump_stamps(D, 10, 11)
D.label("L_end")
D.s("s_endpgm")

lt = ".p2align 6\n.type L_lut,@object\nL_lut:\n"
for c in range(2):
    for l in range(64):
        w = [((lut[l][8 * c + 2 * e] or 0) | ((lut[l][8 * c + 2 * e + 1] or 0) << 16)) for e in range(4)]
        lt += "  .long " + ", ".join("0x%08x" % x for x in w) + "\n"
for l in range(64): lt += "  .long " + ", ".join("0x%08x" % x for x in fac[l]) + "\n"
lt += ".size L_lut, 3072\nL_lut_end:\n"

ctext = C.text()
cut = ctext.index("L_CN:")
pt, xt = CP.text(), CX.text()
pc_, xc_ = pt.index("L_P2u:"), xt.index("L_P2x:")
body = D1.text() + ctext[:cut] + pt[:pc_] + xt[:xc_] + ctext[cut:] + AS.text() + pt[pc_:] + xt[xc_:] + D.text()
hdr = open("standalone__deep_cross_xdeepfm__recsys.s.ref").read().split("; @launch")[0]
src = hdr + f"; @launch grid=(256,1,1) block=(512,1,1) lds={LDS_TOTAL}\n"
src += f""".amdgcn_target "amdgcn-amd-amdhsa--gfx950"
.text
.globl {NAME}
.p2align 8
.type {NAME},@function
{NAME}:
""" + body + lt + f""".section .rodata,"a"
.p2align 6
.amdhsa_kernel {NAME}
  .amdhsa_next_free_vgpr 256
  .amdhsa_next_free_sgpr 102
  .amdhsa_accum_offset 256
  .amdhsa_group_segment_fixed_size 0
  .amdhsa_kernarg_size 88
  .amdhsa_user_sgpr_count 2
  .amdhsa_user_sgpr_kernarg_segment_ptr 1
  .amdhsa_system_sgpr_workgroup_id_x 1
.end_amdhsa_kernel
"""
open(sys.argv[1], "w").write(src)
for n_, s_ in (("D1", D1), ("C", C), ("CP", CP), ("CX", CX), ("D", D)): print(n_, s_.stats(), "nops", s_.nops)
print("LDS", LDS_TOTAL)
```

```python
import sys, struct
from asmlib import *
import slotmap as sm

NAME = "standalone__deep_cross_xdeepfm__recsys_kernel"
OPT = dict(stamps=0, ns=4, nstg=6, early=2)
for a in sys.argv[2:]:
    k, v = a.split("="); OPT[k] = int(v) if v.lstrip("-").isdigit() else v
STAMPS = OPT["stamps"]

TAB = 0
IDXS = 32768
AIMG = IDXS + 6656 + 512
RS = 784
BS = 27 * RS
NS = OPT["ns"]
W3S = AIMG
RING = W3S + 4 * 11264
assert 2 * BS <= 4 * 11264
RSZ = NS * 3072
MISC = RING + 4 * RSZ
CNT2, CNT3, MCNT, PCNT, RDY, CLAIM = 0, 4, 8, 12, 16, 32
M3B = MISC + 64
STG = M3B + 2048 + 64
DSC = STG + 4096
LDS_TOTAL = DSC + 4096
assert LDS_TOTAL <= 163840 and AIMG % 16 == 0
def f32(x): return "0x%08x" % struct.unpack("<I", struct.pack("<f", x))[0]
K1 = -2.0 * 0.7978845608028654 * 1.4426950408889634
K2 = K1 * 0.044715
SC1 = "sc1"
def frag_id(blk, ks): return (blk, ks)

SEL = str(OPT.get("sel", "")).split(",")
def stamp(st, name):
    if name == 0 or name == 10: idx = name
    else:
        if "R" + str(name) in SEL and STAMPS:
            j = 1 + SEL.index("R" + str(name))
            st.raw(f"s_memrealtime s[{64+2*j}:{65+2*j}]", 'misc')
            st.lg.append(Tok('lg', [], True, True))
        if str(name) in SEL: idx = 1 + SEL.index(str(name)); assert idx <= 9
        else: return
    if STAMPS:
        st.raw(f"s_memtime s[{64+2*idx}:{65+2*idx}]", 'misc')
        st.lg.append(Tok('lg', [], True, True))
def dump_stamps(st, vt, va):
    if not STAMPS: return
    if OPT.get("dbgdump"):
        if st is not C: return
        st.raw("s_memrealtime s[84:85]", 'misc')
        st.waitcnt(None, 0)
        st.s("s_cmp_eq_u32", "s2", 100); st.s("s_cbranch_scc0", "L_dd"); st.s("s_cmp_eq_u32", "s3", 0); st.s("s_cbranch_scc0", "L_dd")
        st.s("s_mov_b64", "exec", 1)
        st.v("v_mov_b32", V(va), 0)
        for i in range(1, 11):
            st.s("s_sub_u32", "s5", f"s{64+2*i}", "s100")
            st.v("v_mov_b32", V(vt), "s5")
            st.bstore("buffer_store_dword", V(vt), V(va), S(R_DBG, 4), 0, 12 + 4 * i)
        st.label("L_dd")
        return
    st.raw("s_memrealtime s[98:99]", 'misc')
    st.waitcnt(None, 0)
    st.s("s_mov_b32", "s86", "s100"); st.s("s_mov_b32", "s88", "s98"); n = 13
    st.s("s_lshl_b32", "s5", "s2", 3); st.s("s_add_u32", "s5", "s5", "s3"); st.s("s_lshl_b32", "s5", "s5", 6)
    st.s("s_add_u32", "s5", "s5", 0x100000)
    st.v("v_mov_b32", V(va), "s5")
    for i in range(n):
        st.v("v_mov_b32", V(vt), f"s{64+2*i}")
        st.gstore("global_store_dword", V(va), V(vt), "s[36:37]", off=4 * i)
    st.waitcnt(0, None)
def srd(st, r, base): st.s("s_mov_b64", S(r, 2), S(base, 2))
def srd_const(st, r, size):
    st.s("s_mov_b32", S(r + 2), size); st.s("s_mov_b32", S(r + 3), "0x20000")
def lds_signal(st, vaddr, vone, off):
    st.s("s_mov_b64", "exec", 1)
    st.dsw("ds_add_u32", V(vaddr), V(vone), off)
    st.s("s_mov_b64", "exec", -1)
def lds_wait(st, vaddr, vtmp, off, target, name, sleep=None):
    st.s("s_branch", name + "_in") if sleep is not None else None
    st.label(name)
    if sleep is not None:
        st.s("s_sleep", sleep); st.label(name + "_in")
    st.dsr("ds_read_b32", V(vtmp), V(vaddr), off)
    st.waitcnt(None, 0)
    st.v("v_readfirstlane_b32", "s5", V(vtmp))
    st.s("s_cmp_lt_u32", "s5", target)
    st.s("s_cbranch_scc1", name)
def gaddr_ops(dst, idx, vbase, tmp):
    return [("v_lshlrev_b32", V(tmp), 1, V(idx), ""), ("v_lshl_add_u32", V(dst), V(idx), 5, V(vbase), ""),
            ("v_bitop3_b32", V(dst), V(dst), V(tmp), 16, "bitop3:0x78")]
def emitv(st, o): st.v(o[0], o[1], *o[2:-1], mods=o[-1])

P = Stream()
stamp(P, 0)
if STAMPS: P.raw("s_memrealtime s[100:101]", 'misc')
ka = P.sload("s_load_dwordx16", "s[16:31]", "s[0:1]", 0)
P.v("v_lshrrev_b32", "v2", 6, "v0")
P.v("v_and_b32", "v1", 63, "v0")
P.s("s_cmp_ge_u32", "s2", 256)
P.v("v_readfirstlane_b32", "s3", "v2")
P.s("s_cbranch_scc1", "L_end")
P.raw("s_getpc_b64 s[94:95]", 'salu')
P.label("L_pc")
P.s("s_lshr_b32", "s15", "s2", 3)
R_TAB = 44
P.s("s_cmp_lt_u32", "s3", 4)
P.s("s_cbranch_scc1", "L_C")
C = P.fork()
D = P
R_W1 = 40
DACC, WF, XF, IW, B12, IW12, DT = 16, 112, 136, 152, 200, 208, 216
GI = 240
D.s("s_sub_u32", "s6", "s3", 4)
D.s("s_and_b32", "s5", "s15", 7); D.s("s_lshl_b32", "s5", "s5", 2); D.s("s_add_u32", "s5", "s5", "s6"); D.s("s_mul_i32", "s5", "s5", 10 * 128)
D.v("v_lshl_add_u32", "v8", "v1", 7, "s5")
D.raw("v_min_u32 v8, L_lut_end-L_pc-4, v8", 'misc')
D.s("s_mov_b64", "exec", "0x3ff")
D.gload("global_load_dword", "v255", "v8", "s[94:95]")
D.s("s_mov_b64", "exec", -1)
if STAMPS: D.sload("s_load_dwordx2", "s[36:37]", "s[0:1]", 80)
srd_const(D, R_W1, 416 * 832); srd_const(D, R_TAB, 32000)
D.v("v_bfe_u32", "v33", "v1", 4, 1); D.v("v_xor_b32", "v33", "v33", "v1"); D.v("v_lshlrev_b32", "v33", 4, "v33")
D.s("s_lshl_b32", "s13", "s6", 13)
for n in range(4):
    D.s("s_add_u32", "s5", "s15", n); D.s("s_and_b32", "s5", "s5", 3); D.s("s_lshl_b32", "s5", "s5", 11); D.s("s_add_u32", S(8 + n), "s5", "s13")
D.s("s_mul_i32", "s5", "s15", 79); D.s("s_lshr_b32", "s5", "s5", 10); D.s("s_mul_i32", "s5", "s5", 13); D.s("s_sub_u32", "s4", "s15", "s5")
D.s("s_mul_i32", "s12", "s4", 2 * 13312)
D.s("s_mul_i32", "s7", "s6", RSZ); D.s("s_add_u32", "s7", "s7", RING)
D.s("s_mul_i32", "s5", "s6", 192)
for m in range(3):
    D.v("v_add_u32", "v8", 64 * m, "v1") if m else None
    src = "v8" if m else "v1"
    D.v("v_mul_u32_u24", "v9", 43691, src); D.v("v_lshrrev_b32", "v9", 19, "v9")
    D.v("v_mul_u32_u24", "v10", 832 - 192, "v9"); D.v("v_lshl_add_u32", V(2 + m), src, 4, "v10"); D.v("v_add_u32", V(2 + m), "s5", V(2 + m))
D.v("v_lshlrev_b32", "v8", 2, "v1"); D.v("v_add_u32", "v9", "s5", "v8"); D.v("v_add_u32", "v10", 768 - 192, "v8")
D.v("v_cmp_gt_u32", "vcc", 48, "v1")
D.s("s_mov_b32", "m0", "s7")
D.v("v_cndmask_b32", "v9", "v10", "v9", "vcc")
D.s("s_cmp_ge_u32", "s15", 14)
D.s("s_cbranch_scc1", "L_D_nb0")
D.s("s_barrier")
D.s("s_barrier")
D.label("L_D_nb0")
D.wait(ka)
srd(D, R_W1, 24)
dmat = {}
def w_m0(t, m): D.s("s_add_u32", "m0", "s7", (t % NS) * 3072 + 1024 * m)
def w_piece(t, m): dmat[t] = D.dma(V(2 + m), S(R_W1, 4), "s12")
def w_adv(t):
    D.s("s_add_u32", "s12", "s12", 13312)
    if t % 2 == 1:
        D.s("s_cmp_eq_u32", "s12", 26 * 13312); D.s("s_cselect_b32", "s12", 0, "s12")
w_piece(0, 0); w_m0(0, 1)
bt = D.gload("global_load_dword", "v10", "v9", "s[26:27]")
w_piece(0, 1); w_m0(0, 2)
srd(D, R_TAB, 18)
w_piece(0, 2); w_adv(0)
for n in range(4):
    D.s("s_mov_b32", "m0", S(8 + n))
    D.dma("v33", S(R_TAB, 4), S(8 + n)); tabt = D.dma("v33", S(R_TAB, 4), S(8 + n), 1024)
for t in range(1, OPT["early"]):
    for m in range(3): w_m0(t, m); w_piece(t, m)
    w_adv(t)
wt = D.gload("global_load_dword", "v11", "v9", "s[28:29]")
stamp(D, 1)
D.s("s_branch", "L_D2")
D1 = D
D = D1.fork()

R_IDX, R_CIN, R_WS, R_OUT, R_DBG, R_WO = 48, 40, 52, 56, 60, 48
C.label("L_C")
k2 = C.sload("s_load_dwordx4", "s[32:35]", "s[0:1]", 64)
C.sload("s_load_dwordx2", "s[36:37]", "s[0:1]", 80)
srd_const(C, R_IDX, 16384 * 104)
C.v("v_lshlrev_b32", "v32", 4, "v1")
C.s("s_and_b32", "s7", "s3", 1)
C.s("s_lshl_b32", "s12", "s2", 2); C.s("s_add_u32", "s12", "s12", "s3"); C.s("s_mul_i32", "s12", "s12", 1664)
C.s("s_mul_i32", "s13", "s3", 1664); C.s("s_add_u32", "s13", "s13", IDXS)
C.s("s_mov_b32", "m0", "s13")
srd_const(C, R_CIN, 105456)
C.s("s_lshl_b32", "s14", "s15", 2); C.s("s_add_u32", "s14", "s14", "s3"); C.s("s_mul_i32", "s14", "s14", 7 * 128)
C.v("v_lshlrev_b32", "v7", 7, "v1")
srd_const(C, R_DBG, 256)
C.v("v_mov_b32", "v5", 0); C.v("v_mov_b32", "v21", 1)
C.s("s_lshl_b32", "s11", "s15", 2)
C.s("s_cmp_lt_u32", "s15", 14); C.s("s_cselect_b32", "s5", "s3", 1); C.s("s_cmp_lg_u32", "s5", 0)
C.wait(ka)
srd(C, R_DBG, 34)
srd(C, R_IDX, 16)
C.s("s_cbranch_scc1", "L_C_ncl")
C.s("s_mov_b64", "exec", 1)
C.raw(f"buffer_atomic_add v21, v5, s[{R_DBG}:{R_DBG+3}], s11 offen offset:4 sc0 sc1", 'misc')
C.s("s_mov_b64", "exec", -1)
C.label("L_C_ncl")
C.dma("v32", S(R_IDX, 4), "s12")
C.s("s_mov_b32", "exec_hi", "0xff")
idxt = C.dma("v32", S(R_IDX, 4), "s12", 1024)
srd(C, R_CIN, 20)
C.s("s_mov_b64", "exec", "0x7f")
C.bload("buffer_load_dword", "v23", "v7", S(R_CIN, 4), "s14")
C.s("s_mov_b64", "exec", -1)
stamp(C, 1)
C.s("s_cmp_ge_u32", "s15", 14)
C.s("s_cbranch_scc1", "L_CN")
CP = C.fork()
C.label("L_CN")
GA = 112
def c_setup2(C):
    srd_const(C, R_WS, 2 * BS); srd_const(C, R_OUT, 32768)
    for r, b in ((R_WS, 36), (R_OUT, 32)): srd(C, r, b)
    C.v("v_mov_b32", "v2", MISC)
    for r in range(24, 28): C.v("v_mov_b32", V(r), 0)
    C.dsw("ds_write_b128", "v2", "v[24:27]"); C.dsw("ds_write_b32", "v2", "v24", RDY)
    C.v("v_mov_b32", "v5", 0); C.v("v_mov_b32", "v6", 1)
    C.v("v_and_b32", "v8", 15, "v1"); C.v("v_mul_u32_u24", "v7", 104, "v8"); C.v("v_add_u32", "v7", "s13", "v7")
    C.v("v_lshrrev_b32", "v9", 2, "v1"); C.v("v_xor_b32", "v9", "v9", "v1"); C.v("v_and_b32", "v9", 8, "v9")
    C.v("v_and_b32", "v10", 16, "v1"); C.v("v_add_u32", "v4", "v9", "v10")
def c_addr(C):
    C.wait(idxt)
    for r in range(13): C.dsr("ds_read_b64", V(GA + 2 * r, 2), "v7", 8 * r)
    for f in range(26):
        for o in gaddr_ops(GA + f, GA + f, 4, 8 + (f & 1)): emitv(C, o)

c_setup2(C)
C.label("L_C_lose")
C.s("s_mov_b32", "s38", 0)
c_addr(C)
stamp(C, 2)
C.waitcnt(0, 0)
C.s("s_barrier")
stamp(C, 3)
C.label("L_C_join")

FB = 8
UORD = [4, 5, 0, 1, 2, 3, 6, 7]
FREE_AFTER = {1: 21, 2: 34, 3: 34, 4: 34, 5: 60, 6: 60, 7: 99}
ACC = 112
SACC = 176
KAP, KAP2, MSK = 189, 190, 191
ZR = 192
NSTG = OPT["nstg"]
STGR = 204
RES0 = STGR + 4 * NSTG
def Fr(u, r):
    if u < 4: return 34 + 26 * (u & 1) + 2 * r + (u >> 1)
    return {4: 8, 5: 21, 6: 86, 7: 99}[u] + r
def Rw(f): return Fr(f & 1, f >> 1)
MX, MN = 176, 177
LEAD = 12
def sig1():
    C.s("s_cmp_eq_u32", "s38", 0); C.s("s_cbranch_scc1", "L_C_s1")
    C.s("s_mov_b64", "exec", 1)
    C.raw("s_waitcnt vmcnt(0)", 'wait')
    stamp(C, "pe")
    C.raw(f"ds_add_rtn_u32 v180, v2, v6 offset:{PCNT}", 'misc')
    C.v("v_mov_b32", "v181", "s90")
    C.s("s_mov_b32", "s38", 0)
    C.raw("s_waitcnt lgkmcnt(0)", 'wait')
    C.v("v_readfirstlane_b32", "s5", "v180")
    C.s("s_cmp_lg_u32", "s5", 3); C.s("s_cbranch_scc1", "L_C_s1b")
    C.raw(f"buffer_atomic_or v181, v5, s[{R_DBG}:{R_DBG+3}], 0 offen sc0 sc1", 'misc')
    C.s("s_mov_b32", "s38", 2)
    C.label("L_C_s1b")
    C.s("s_mov_b64", "exec", -1)
    C.label("L_C_s1")
def sig2():
    C.s("s_cmp_eq_u32", "s38", 0); C.s("s_cbranch_scc1", "L_C_s2")
    C.raw("s_waitcnt vmcnt(0)", 'wait')
    C.v("v_readfirstlane_b32", "s5", "v181")
    C.s("s_or_b32", "s5", "s5", "s90"); C.s("s_cmp_lg_u32", "s5", "0x3fff"); C.s("s_cbranch_scc1", "L_C_s2")
    C.s("s_mov_b64", "exec", 1)
    C.raw(f"buffer_store_dword v6, v5, s[{R_DBG}:{R_DBG+3}], 0 offen offset:128 sc1", 'misc')
    C.s("s_mov_b64", "exec", -1)
    stamp(C, "pf")
    C.label("L_C_s2")
for f in range(LEAD): C.dsr("ds_read_b64", V(Rw(f), 2), V(GA + f), TAB)
for f in range(26):
    if f == OPT.get("sig1", 6): sig1()
    if f + LEAD < 26: C.dsr("ds_read_b64", V(Rw(f + LEAD), 2), V(GA + f + LEAD), TAB)
    C.v("v_pk_maximum3_f16", V(MX), V(Rw(f)), V(Rw(f) + 1), V(MX) if f else V(Rw(f)))
    C.v("v_pk_minimum3_f16", V(MN), V(Rw(f)), V(Rw(f) + 1), V(MN) if f else V(Rw(f)))
stamp(C, "mx")
C.v("v_and_b32", V(MX), "0x7fff7fff", V(MX)); C.v("v_and_b32", V(MN), "0x7fff7fff", V(MN))
C.v("v_pk_max_u16", V(MX), V(MX), V(MN))
C.v("v_lshrrev_b32", V(MN), 16, V(MX)); C.v("v_and_b32", V(MX), "0xffff", V(MX)); C.v("v_max_u32", V(MX), V(MX), V(MN))
C.v("v_mov_b32", V(MN), V(MX))
C.v("v_mov_b32", V(MSK), "0xfff8fff8")
C.s("s_mov_b32", "s12", "0x05040100")
C.v("v_permlane32_swap_b32", V(MX), V(MN))
C.v("v_max_u32", V(MX), V(MX), V(MN))
C.v("v_lshrrev_b32", V(MX), 7, V(MX)); C.v("v_max_u32", V(MX), 127, V(MX)); C.v("v_min_u32", V(MX), 254, V(MX))
SCL = 4
C.v("v_sub_u32", V(MN), 260, V(MX)); C.v("v_lshlrev_b32", V(SCL), 23, V(MN))
C.v("v_lshlrev_b32", V(MX), 2, V(MX)); C.v("v_subrev_u32", "v3", 4 * 133 + 282, V(MX))
C.v("v_cvt_pkrtz_f16_f32", V(KAP), V(SCL), V(SCL))
C.v("v_pk_mul_f16", V(KAP2), V(KAP), V(KAP)); C.v("v_and_b32", V(KAP2), "0xffff", V(KAP2))
def conv_ops(kk, T0, nt):
    L = []
    for r in range(13):
        a, b = Fr(2 * kk, r), Fr(2 * kk + 1, r)
        t = T0 + 4 * (r % nt)
        lo, hi = a, b; rp = (r - 1) % 13
        L += [("v_lshlrev_b32", V(t), 16, V(a), ""), ("v_lshlrev_b32", V(t + 1), 16, V(b), ""),
              ("v_mul_f32", V(t + 2), V(SCL), V(a), ""), ("v_mul_f32", V(t + 3), V(SCL), V(b), ""),
              ("v_mul_f32", V(t), V(SCL), V(t), ""), ("v_mul_f32", V(t + 1), V(SCL), V(t + 1), ""),
              ("v_cvt_pkrtz_f16_f32", V(hi), V(t + 2), V(t + 3), ""), ("v_cvt_pkrtz_f16_f32", V(lo), V(t), V(t + 1), ""),
              ("v_and_b32", V(hi), V(MSK), V(hi), ""),
              ("v_cvt_pkrtz_f16_f32", V(Fr(4 + 2 * kk, rp)), V(t + 1), V(t), ""),
              ("v_alignbit_b32", V(Fr(5 + 2 * kk, rp)), V(hi), V(hi), 16, "")]
        if r >= 2:
            for k in range(2): L.append(("v_permlane32_swap_b32", V(Fr(2 * kk + k, r - 2)), V(Fr(4 + 2 * kk + k, r - 2)), ""))
    for r in (12, 11):
        for k in range(2): L.append(("v_permlane32_swap_b32", V(Fr(2 * kk + k, r)), V(Fr(4 + 2 * kk + k, r)), ""))
    return L
FLG = 188
ops = conv_ops(0, 192, 3) + conv_ops(1, 168, 2)
C.v("v_lshlrev_b32", V(187), 4, "v1")
def a_load(tag):
    C.raw("s_call_b64 s[92:93], L_aload", 'salu')
AS = Stream()
AS.label("L_aload")
AS.s("s_setprio", 3)
AS.s("s_lshr_b32", "s8", "s2", 3); AS.s("s_and_b32", "s9", "s8", 3)
AS.s("s_mul_i32", "s13", "s3", 11264)
AS.s("s_cmp_eq_u32", "s9", 3); AS.s("s_cselect_b32", "s9", 0, "s9"); AS.s("s_lshl_b32", "s9", "s9", 12)
for n in range(3):
    AS.s("s_add_u32", "s11", "s13", "s9")
    AS.s("s_add_u32", "m0", "s11", AIMG)
    AS.s("s_cmp_eq_u32", "s9", 8192)
    for e in range(3):
        AS.raw(f"buffer_load_dwordx4 v187, s[{R_WS}:{R_WS+3}], s11 offen offset:{1024*e} sc1 lds", 'misc')
    AS.s("s_cbranch_scc1", f"L_al{n}")
    AS.raw(f"buffer_load_dwordx4 v187, s[{R_WS}:{R_WS+3}], s11 offen offset:3072 sc1 lds", 'misc')
    AS.label(f"L_al{n}")
    if n < 2: AS.s("s_cselect_b32", "s9", -4096, "s9"); AS.s("s_add_u32", "s9", "s9", 4096)
AS.s("s_setprio", 0)
AS.raw("s_setpc_b64 s[92:93]", 'salu')
NDEF = OPT.get("ndef", 0)
ops1 = ops[len(ops) - NDEF:]; ops = ops[:len(ops) - NDEF]
POLL = f"buffer_load_dword v{FLG}, v5, s[{R_DBG}:{R_DBG+3}], 0 offen offset:128 sc1"
for i, o in enumerate(ops):
    if i == OPT.get("sig2c", 10): sig2()
    if i == len(ops) - OPT.get("pollb", 40):
        C.s("s_cmp_lg_u32", "s3", 0); C.s("s_cbranch_scc1", "L_C_np0")
        C.raw(POLL, 'misc')
        C.label("L_C_np0")
    emitv(C, o)
stamp(C, 6)
C.v("v_and_b32", V(186), 31, "v1"); C.v("v_lshrrev_b32", V(185), 5, "v1")
C.v("v_cmp_eq_u32", "vcc", 28, V(186)); C.v("v_cmp_gt_u32", "s[14:15]", 25, V(186)); C.v("v_mov_b32", V(184), 26)
C.v("v_cndmask_b32", V(184), V(184), 25, "vcc") if False else None
C.v("v_subb_co_u32", V(184), "s[10:11]", V(184), 0, "vcc") if False else None
C.v("v_mov_b32", V(183), 25); C.v("v_cndmask_b32", V(184), V(184), V(183), "vcc"); C.v("v_cndmask_b32", V(186), V(184), V(186), "s[14:15]")
C.v("v_mul_u32_u24", V(186), RS, V(186)); C.v("v_mul_u32_u24", V(185), 384, V(185)); C.v("v_add3_u32", "v7", V(186), V(185), "v5")
C.v("v_add_u32", "v7", AIMG, "v7")
C.s("s_cmp_lg_u32", "s3", 0); C.s("s_cbranch_scc1", "L_C_w0")
C.s("s_mov_b32", "s14", 1 << 17)
C.label("L_C_poll")
C.raw("s_waitcnt vmcnt(0)", 'wait')
C.v("v_readfirstlane_b32", "s5", V(FLG))
C.s("s_cmp_lg_u32", "s5", 0)
C.s("s_cbranch_scc1", "L_C_got")
C.s("s_sub_u32", "s14", "s14", 1); C.s("s_cmp_eq_u32", "s14", 0); C.s("s_cbranch_scc1", "L_C_got")
C.s("s_sleep", 2)
C.raw(POLL, 'misc')
C.s("s_branch", "L_C_poll")
C.label("L_C_got")
C.dsw("ds_write_b32", "v2", "v6", RDY)
C.s("s_branch", "L_C_ready")
C.label("L_C_w0s")
C.s("s_sleep", 2)
C.label("L_C_w0")
C.dsr("ds_read_b32", V(184), "v2", RDY); C.waitcnt(None, 0)
C.v("v_readfirstlane_b32", "s5", V(184)); C.s("s_cmp_eq_u32", "s5", 0); C.s("s_cbranch_scc1", "L_C_w0s")
C.label("L_C_ready")
stamp(C, 7)
a_load("f")
for k in range(13): C.v("v_mov_b32", V(SACC + k), 0)

order = list(range(22, 24)) + list(range(22))
steps = [(n, ks) for n in range(8) for ks in order]
slots = []
for si, (n, ks) in enumerate(steps):
    if ks < 22: slots.append((si, 0))
    slots.append((si, 1))
def zops(si):
    n, ks = steps[si]; u = UORD[n]; q = ZR + 4 * (si % 3); L = []
    for j in range(4):
        ins = sm.dwords[4 * ks + j]; d = V(q + j)
        if ins[0] == 'A': L.append(("v_pk_mul_f16", d, V(Fr(u, ins[1])), V(Fr(u, ins[2])), "op_sel:[0,0] op_sel_hi:[0,1]"))
        elif ins[0] == 'D': L.append(("v_pk_mul_f16", d, V(Fr(u, ins[1])), V(Fr(u, ins[1])), "op_sel:[0,0] op_sel_hi:[0,1]"))
        elif ins[0] == 'E':
            L.append(("v_perm_b32", d, V(Fr(u, ins[2])), V(Fr(u, ins[1])), "s12", ""))
            L.append(("v_pk_mul_f16", d, d, d, ""))
        elif ins[0] == 'L': L.append(("v_pk_mul_f16", d, V(Fr(u, ins[1])), V(KAP), ""))
        else: L.append(("v_mov_b32", d, V(KAP2), ""))
    return L
for si in (0, 1):
    for o in zops(si): emitv(C, o)
C.raw("s_waitcnt vmcnt(0)", 'wait')
lds_signal(C, 2, 6, CNT2)
lds_wait(C, 2, 255, CNT2, 4, "L_C_w2", sleep=1)
C.label("L_C_go")
C.s("s_setprio", 1)
stamp(C, 8)
resident = {}
free_quads = list(range(RES0, 253, 4))
LOOK = NSTG - 1
stg_next = [0]; slot_reg = {}
def plan_read(i):
    si, blk = slots[i]; n, ks = steps[si]; fid = frag_id(blk, ks)
    if fid in resident: slot_reg[i] = resident[fid]; return
    if free_quads and n < 7:
        reg = free_quads.pop(0); resident[fid] = reg
    else:
        reg = STGR + 4 * stg_next[0]; stg_next[0] = (stg_next[0] + 1) % NSTG
    slot_reg[i] = reg
    C.dsr("ds_read_b128", V(reg, 4), "v7", blk * BS + ks * 16)
for i in range(LOOK): plan_read(i)
pend = []; freed_upto = FB; first_of = {}; epi = []
EXR, EXU = 60, 73
T1, T2 = 97, 98
tail_pre = []
for i, (si, blk) in enumerate(slots):
    n, ks = steps[si]
    newstep = i == 0 or slots[i - 1][0] != si
    if newstep:
        assert not pend
        if si + 2 < len(steps): pend = zops(si + 2)
        if ks == order[0] and n > 0:
            a = ACC + 32 * ((n - 1) & 1)
            epi = [("v_fmac_f32", V(SACC + k), V(a + k), V(a + 16 + k), "") for k in range(13)]
            epi_at = i + 3
            lim = FREE_AFTER[n]
            while freed_upto + 4 <= lim and n < 7:
                free_quads.append(freed_upto); freed_upto += 4
            if n == 1: assert not ops1, len(ops1)
            if n == 6:
                assert freed_upto <= EXR
                tail_pre = [("v", "v_lshrrev_b32", V(MSK), 5, "v1", ""), ("v", "v_mul_u32_u24", V(SCL), RS, V(MSK), ""), ("v", "v_lshlrev_b32", V(MSK), 2, V(SCL), ""),
                            ("v", "v_add_u32", V(MSK), AIMG + 768, V(MSK), ""), ("v", "v_add_u32", V(SCL), AIMG + 768, V(SCL), "")]
                for k in range(13):
                    row = 8 * (k // 4) + k % 4; ar = V(SCL) if k == 12 else V(MSK)
                    tail_pre += [("r", "ds_read_b32", V(EXR + k), ar, row * RS), ("r", "ds_read_b32", V(EXU + k), ar, BS + row * RS)]
                tail_pre += [("g",)]
                tail_pre += [("v", "v_add3_u32", V(EXR + k), V(EXR + k), V(EXU + k), "v3", "") for k in range(13)]
            if n == 7:
                assert not tail_pre
                tail_pre = [
                  ("v", "v_lshrrev_b32", V(T1), 4, "v1", ""), ("v", "v_mul_u32_u24", V(T1), RSZ, V(T1), ""), ("v", "v_and_b32", "v5", 15, "v1", ""),
                  ("v", "v_lshl_add_u32", V(T1), "v5", 2, V(T1), ""), ("s", "s_lshl_b32", "s5", "s3", 6), ("s", "s_add_u32", "s5", "s5", RING),
                  ("v", "v_add_u32", V(T1), "s5", V(T1), ""),
                  ("s", "s_mul_i32", "s5", "s3", RSZ), ("s", "s_add_u32", "s5", "s5", RING + 256), ("v", "v_lshl_add_u32", V(T2), "v1", 2, "s5", ""),
                  ("v", "v_lshlrev_b32", "v5", 1, "v5", ""),
                  ("s", "s_lshl_b32", "s13", "s2", 2), ("s", "s_add_u32", "s13", "s13", "s3"), ("s", "s_lshl_b32", "s13", "s13", 5),
                  ("v", "v_lshlrev_b32", "v6", 16, "v6", "")]
    last_in_step = i + 1 == len(slots) or slots[i + 1][0] != si
    if i + LOOK < len(slots): plan_read(i + LOOK)
    acc = ACC + 32 * (n & 1) + 16 * blk
    first = (n, blk) not in first_of; first_of[(n, blk)] = 1
    C.mfma("v_mfma_f32_32x32x16_f16", V(acc, 16), V(slot_reg[i], 4), V(ZR + 4 * (si % 3), 4), 0 if first else V(acc, 16))
    cnt = len(pend) if last_in_step else (len(pend) + 1) // 2
    for o in pend[:cnt]: emitv(C, o)
    pend = pend[cnt:]
    if epi and i >= epi_at:
        for _ in range(2):
            if epi: emitv(C, epi.pop(0))
    elif ops1 and cnt <= 2:
        for _ in range(3):
            if ops1: emitv(C, ops1.pop(0))
    elif tail_pre and not epi and cnt <= 2:
        for _ in range(2):
            if not tail_pre: break
            o = tail_pre.pop(0)
            if o[0] == "v": emitv(C, o[1:])
            elif o[0] == "r": C.dsr(*o[1:])
            elif o[0] == "s": C.s(*o[1:])
            else: C.gload("global_load_ushort", "v6", "v5", "s[30:31]")
    if i == len(slots) - 4:
        assert not tail_pre
        C.dsr("ds_read_b32", V(KAP), "v2", CNT3); C.dsr("ds_read_b32", V(KAP2), V(T1)); C.dsr("ds_read_b32", V(MSK), V(T2))
stamp(C, 9)
a = ACC + 32
C.v("v_readfirstlane_b32", "s5", V(KAP))
C.s("s_cmp_ge_u32", "s5", 4)
C.s("s_cbranch_scc1", "L_C_fin")
C.s("s_setprio", 0)
lds_wait(C, 2, KAP, CNT3, 4, "L_C_w3", sleep=1)
C.dsr("ds_read_b32", V(KAP2), V(T1)); C.dsr("ds_read_b32", V(MSK), V(T2))
C.label("L_C_fin")
C.waitcnt(None, 0)
C.v("v_add_f32", V(KAP2), V(KAP2), V(MSK))
C.raw("s_nop 7", 'nop'); C.out[-1].states = 8
for k in range(13): C.v("v_fmac_f32", V(SACC + k), V(a + k), V(a + 16 + k))
for k in range(13): C.v("v_ldexp_f32", V(SACC + k), V(SACC + k), V(EXR + k))
C.v("v_add_f32", V(SACC + 12), V(SACC + 12), V(KAP2))
for st_ in (1, 2, 4, 8):
    for k in range(0, 13, 2 * st_):
        if k + st_ < 13: C.v("v_add_f32", V(SACC + k), V(SACC + k), V(SACC + k + st_))
C.v("v_mov_b32", V(SACC + 1), V(SACC)); C.v("v_permlane32_swap_b32", V(SACC), V(SACC + 1)); C.v("v_add_f32", V(SACC), V(SACC), V(SACC + 1))
C.v("v_mov_b32", V(SACC + 1), V(SACC)); C.v("v_permlane16_swap_b32", V(SACC), V(SACC + 1))
C.v("v_add_f32", V(SACC), V(SACC), V(SACC + 1))
C.v("v_add_f32", V(SACC), V(SACC), "v6")
C.v("v_cvt_pk_bf16_f32", V(SACC), V(SACC), V(SACC))
C.s("s_mov_b64", "exec", "0xffff")
C.bstore("buffer_store_short", V(SACC), "v5", S(R_OUT, 4), "s13")
if STAMPS:
    C.s("s_mov_b64", "exec", -1)
    stamp(C, 10)
    dump_stamps(C, 250, 251)
C.s("s_endpgm")

WOF, BF, MD, MA, NF, LUT, IDN, MF, TD, TF, SD, FAC, LA = 44, 48, 92, 236, 140, 148, 164, 172, 180, 196, 204, 156, 220
lut = [[None] * 16 for _ in range(64)]
for l in range(64):
    j, hfc = l & 31, l >> 5
    for k in range(14):
        q = 8 * (k // 4) + 4 * hfc + k % 4
        if q < 26 and j <= 26 and q <= j:
            hf, di, half = sm.target[(q, j)]
            lut[l][k] = hf * 384 + di * 4 + half * 2
hf, di, half = sm.target[(26, 26)]
lut[0][14] = hf * 384 + di * 4 + half * 2
def emask(k): return sum(1 << l for l in range(64) if lut[l][k] is not None)
fac = [[0x3c003c00] * 4 for _ in range(64)]
for a_ in range(26):
    hf, di, half = sm.target[(a_, a_)]
    l = hf * 24 + di // 4
    fac[l][di % 4] = (fac[l][di % 4] & ~(0xffff << (16 * half))) | (0x3800 << (16 * half))
def producer(Q, typ):
    tag = "u" if typ == 1 else "x"
    Q.label("L_P2" + tag)
    if typ == 1: Q.s("s_lshl_b32", "s39", "s15", 2)
    else: Q.s("s_sub_u32", "s39", "s15", 7); Q.s("s_lshl_b32", "s39", "s39", 2)
    Q.s("s_add_u32", "s39", "s39", "s3")
    Q.s("s_mul_i32", "s93", "s39", 52 if typ == 1 else 1352)
    if typ == 1: Q.s("s_add_u32", "s93", "s93", 35152)
    Q.v("v_and_b32", "v29", 31, "v1"); Q.v("v_lshrrev_b32", "v30", 5, "v1")
    Q.v("v_mul_u32_u24", "v31", 1352 if typ == 1 else 52, "v29"); Q.v("v_lshl_add_u32", "v31", "v30", 4, "v31")
    stamp(Q, 2)
    W3A = 112
    if typ == 1:
        Q.s("s_mul_i32", "s90", "s3", 11264); Q.s("s_add_u32", "s90", "s90", W3S)
        Q.s("s_mul_i32", "s91", "s3", 352); Q.s("s_add_u32", "s91", "s91", 70304)
        for m in range(9):
            src = "v1"
            if m: Q.v("v_add_u32", "v22", 64 * m, "v1"); src = "v22"
            Q.v("v_mul_u32_u24", "v20", 2979, src); Q.v("v_lshrrev_b32", "v20", 16, "v20")
            Q.v("v_mul_u32_u24", "v20", 1000, "v20"); Q.v("v_lshl_add_u32", V(W3A + m), src, 4, "v20")
    c_setup2(Q)
    Q.s("s_lshl_b32", "s5", "s3", 10); Q.s("s_add_u32", "s92", "s5", STG)
    Q.v("v_add_u32", "v41", "s92", "v32")
    Q.dsw("ds_write_b128", "v41", "v[24:27]")
    if typ == 1:
        Q.v("v_add_u32", "v42", "s90", "v32"); Q.dsw("ds_write_b128", "v42", "v[24:27]", 9216); Q.dsw("ds_write_b128", "v42", "v[24:27]", 10240)
        Q.s("s_mov_b64", "exec", "0xffffff")
        Q.v("v_add_u32", "v42", M3B + 26 * 64, "v32"); Q.dsw("ds_write_b128", "v42", "v[24:27]")
        Q.s("s_mov_b64", "exec", -1)
        Q.v("v_lshlrev_b32", "v43", 6, "v29"); Q.v("v_add_u32", "v43", M3B, "v43"); Q.dsw("ds_write_b64", "v43", "v[24:25]", 56)
    Q.s("s_cmp_lg_u32", "s3", 0); Q.s("s_cbranch_scc1", "L_P_nw" + tag)
    Q.raw("s_waitcnt vmcnt(3)", 'wait')
    Q.s("s_mov_b64", "exec", 1)
    Q.dsw("ds_write_b32", "v2", "v21", CLAIM)
    Q.s("s_mov_b64", "exec", -1)
    Q.label("L_P_nw" + tag)
    Q.waitcnt(None, 0)
    Q.s("s_barrier")
    Q.dsr("ds_read_b32", "v21", "v2", CLAIM)
    Q.v("v_readfirstlane_b32", "s5", "v21")
    Q.s("s_cmp_eq_u32", "s5", 0); Q.s("s_cbranch_scc1", "L_P_win" + tag)
    Q.s("s_barrier")
    Q.s("s_branch", "L_C_lose")
    Q.label("L_P_win" + tag)
    stamp(Q, "pa")
    Q.s("s_setprio", 3)
    Q.bload("buffer_load_dwordx4", V(NF, 4), "v31", S(R_CIN, 4), "s93")
    Q.bload("buffer_load_dwordx4", V(NF + 4, 4), "v31", S(R_CIN, 4), "s93", 32)
    Q.raw("s_add_u32 s94, s94, L_lut-L_pc", 'salu'); Q.raw("s_addc_u32 s95, s95, 0", 'salu')
    for c in range(3): Q.gload("global_load_dwordx4", V(LUT + 4 * c, 4), "v32", "s[94:95]", c * 1024)
    if typ == 1:
        Q.s("s_mov_b32", S(R_WO + 2), 156); srd(Q, R_WO, 22)
        Q.v("v_and_b32", "v35", 48, "v1"); Q.v("v_lshlrev_b32", "v34", 1, "v29")
        Q.bload("buffer_load_dwordx4", V(WOF, 4), "v35", S(R_WO, 4), 0, 104)
        Q.bload("buffer_load_ushort", "v34", "v34", S(R_WO, 4), 0, 52)
        Q.s("s_lshl_b32", "s5", "s39", 1); Q.v("v_mov_b32", "v35", 0)
        Q.bload("buffer_load_ushort", "v35", "v35", S(R_WO, 4), "s5")
        for m in range(9):
            Q.s("s_add_u32", "m0", "s90", 1024 * m)
            w3t = Q.dma(V(W3A + m), S(R_CIN, 4), "s91")
    Q.s("s_barrier")
    Q.v("v_and_b32", "v36", 1, "v29"); Q.v("v_lshlrev_b32", "v36", 4, "v36")
    Q.v("v_mov_b32", "v37", "0x3f80"); Q.v("v_lshlrev_b32", "v37", "v36", "v37")
    Q.v("v_cmp_gt_u32", "vcc", 26, "v29"); Q.v("v_lshrrev_b32", "v38", 1, "v29")
    Q.v("v_lshlrev_b32", "v39", 2, "v30"); Q.v("v_cndmask_b32", "v37", 0, "v37", "vcc")
    Q.v("v_sub_u32", "v39", "v38", "v39")
    Q.v("v_lshlrev_b32", "v40", 1, "v30"); Q.v("v_sub_u32", "v40", "v38", "v40")
    def ident(dst, vsel, key):
        for s_ in range(2):
            for m in range(0, 4, 2):
                Q.v("v_cmp_eq_u32", "vcc", key(s_, m), vsel); Q.v("v_cmp_eq_u32", "s[96:97]", key(s_, m + 1), vsel)
                Q.v("v_cndmask_b32", V(dst + 4 * s_ + m), 0, "v37", "vcc"); Q.v("v_cndmask_b32", V(dst + 4 * s_ + m + 1), 0, "v37", "s[96:97]")
    ident(IDN, "v39", lambda s_, m: 8 * s_ + m)
    if typ == 2: ident(MF, "v40", lambda s_, m: 8 * s_ + 4 * (m >> 1) + (m & 1))
    Q.s("s_mul_i32", "s93", "s39", RS)
    if typ == 1: Q.s("s_add_u32", "s93", "s93", BS)
    Q.v("v_mov_b32", "v36", "s92")
    if typ == 1:
        Q.v("v_lshrrev_b32", "v38", 4, "v1"); Q.v("v_bfe_u32", "v39", "v1", 2, 2); Q.v("v_lshl_add_u32", "v38", "v38", 3, "v39"); Q.v("v_mul_u32_u24", "v38", 352, "v38")
        Q.v("v_and_b32", "v40", 3, "v1"); Q.v("v_lshl_add_u32", "v38", "v40", 3, "v38"); Q.v("v_add_u32", "v28", "s90", "v38")
        Q.v("v_lshl_add_u32", "v39", "v30", 2, "v39"); Q.v("v_lshlrev_b32", "v39", 6, "v39"); Q.v("v_lshl_add_u32", "v39", "v40", 3, "v39")
        Q.v("v_and_b32", "v40", 16, "v1"); Q.v("v_lshl_add_u32", "v39", "v40", 1, "v39"); Q.v("v_add_u32", "v42", M3B, "v39")
        Q.s("s_mul_i32", "s5", "s3", 176); Q.v("v_add_u32", "v38", "s5", "v1")
        Q.v("v_mov_b32", "v43", M3B)
        for i in range(3):
            if i: Q.v("v_add_u32", "v38", 64, "v38")
            Q.v("v_mul_u32_u24", "v39", 2521, "v38"); Q.v("v_lshrrev_b32", "v39", 16, "v39")
            Q.v("v_mad_u32_u24", "v39", "v39", 12, "v43"); Q.v("v_lshl_add_u32", V(MA + i), "v38", 1, "v39")
        Q.v("v_cmp_gt_u32", "vcc", 676, "v38")
        Q.s("s_and_b32", "s15", "vcc_hi", "0xffff"); Q.s("s_mov_b32", "s14", "vcc_lo")
        Q.v("v_lshl_add_u32", "v43", "v29", 6, "v43")
    Q.mfma("v_mfma_f32_32x32x16_bf16", V(TD, 16), V(NF, 4), V(IDN, 4), 0)
    Q.mfma("v_mfma_f32_32x32x16_bf16", V(TD, 16), V(NF + 4, 4), V(IDN + 4, 4), V(TD, 16))
    for k in range(15):
        Q.v("v_add_u32_sdwa", V(LA + k), "v36", V(LUT + k // 2), mods=f"dst_sel:DWORD dst_unused:UNUSED_PAD src0_sel:DWORD src1_sel:WORD_{k&1}")
    for m in range(8): Q.v("v_cvt_pk_bf16_f32", V(TF + m), V(TD + 2 * m), V(TD + 2 * m + 1))
    if typ == 1:
        Q.s("s_mov_b64", "exec", "0x3ffffff")
        Q.dsw("ds_write_b32", "v43", "v34", 52)
        Q.s("s_mov_b64", "exec", -1)
        Q.v("v_lshlrev_b32", "v35", 16, "v35")
        for q in range(4):
            Q.s("s_mov_b32", "s10", "0x%x" % (0x000f000f << (4 * q))); Q.s("s_mov_b32", "s11", "s10")
            for e in range(4): Q.v("v_cndmask_b32", V(MD + 16 + 4 * q + e), 0, V(WOF + e), "s[10:11]")
        Q.wait(w3t)
        stamp(Q, "pw")
        for T in range(11):
            for h in range(2): Q.dsr("ds_read_b64_tr_b16", V(BF + 4 * T + 2 * h, 2), "v28", 32 * T + 4 * 352 * h)
        for T in range(11):
            i = T // 4
            Q.mfma("v_mfma_f32_16x16x32_bf16", V(MD + 4 * i, 4), V(MD + 16 + 4 * (T % 4), 4), V(BF + 4 * T, 4), 0 if T % 4 == 0 else V(MD + 4 * i, 4))
        for i in range(3):
            Q.v("v_cvt_pk_bf16_f32", V(MD + 4 * i), V(MD + 4 * i), V(MD + 4 * i))
            if i == 2: Q.s("s_mov_b64", "exec", "s[14:15]")
            Q.dsw("ds_write_b16", V(MA + i), V(MD + 4 * i))
        lds_signal(Q, 2, 6, MCNT)
        stamp(Q, "pb")
        lds_wait(Q, 2, 44, MCNT, 4, "L_P_wm")
        for s_ in range(2):
            for jj in range(2): Q.dsr("ds_read_b64_tr_b16", V(MF + 4 * s_ + 2 * jj, 2), "v42", (16 * s_ + 8 * jj) * 64)
    Q.wait(idxt)
    for r in range(13): Q.dsr("ds_read_b64", V(GA + 2 * r, 2), "v7", 8 * r)
    aops = []
    for f in range(26): aops += gaddr_ops(GA + f, GA + f, 4, 8 + (f & 1))
    for n_, mm in enumerate(((TF, MF, 0), (TF + 4, MF + 4, V(SD, 16)), (MF, TF, V(SD, 16)), (MF + 4, TF + 4, V(SD, 16)))):
        Q.mfma("v_mfma_f32_32x32x16_bf16", V(SD, 16), V(mm[0], 4), V(mm[1], 4), mm[2])
        c_ = 0 if n_ == 0 else (5 if n_ < 3 else 12)
        for o in aops[:c_]: emitv(Q, o)
        aops = aops[c_:]
    ne = 15 if typ == 1 else 14
    if typ == 1: Q.v("v_mov_b32", V(SD + 14), "v35")
    Q.v("v_max3_f32", "v44", f"|{V(SD)}|", f"|{V(SD+1)}|", f"|{V(SD+ne-1)}|")
    Q.v("v_max3_f32", "v45", f"|{V(SD+2)}|", f"|{V(SD+3)}|", f"|{V(SD+4)}|")
    for k in range(5, 13, 4):
        Q.v("v_max3_f32", "v44", f"|{V(SD+k)}|", f"|{V(SD+k+1)}|", "v44"); Q.v("v_max3_f32", "v45", f"|{V(SD+k+2)}|", f"|{V(SD+k+3)}|", "v45")
    Q.v("v_max3_f32", "v44", f"|{V(SD+13)}|", "v45", "v44")
    for sh in (8, 4, 2, 1):
        for o in aops[:2]: emitv(Q, o)
        aops = aops[2:]
        Q.v("v_max_f32_dpp", "v44", "v44", "v44", mods=f"row_ror:{sh} row_mask:0xf bank_mask:0xf")
    for q in range(4): Q.v("v_readlane_b32", S(8 + q), "v44", 16 * q)
    stamp(Q, "pc")
    Q.s("s_max_u32", "s8", "s8", "s9"); Q.s("s_max_u32", "s10", "s10", "s11"); Q.s("s_max_u32", "s8", "s8", "s10")
    Q.s("s_lshr_b32", "s8", "s8", 23); Q.s("s_max_u32", "s8", "s8", 67); Q.s("s_min_u32", "s8", "s8", 187)
    Q.s("s_sub_u32", "s9", 268, "s8"); Q.s("s_lshl_b32", "s9", "s9", 23)
    Q.s("s_cmp_ge_u32", "s39", 26); Q.s("s_cselect_b32", "s9", 0, "s9")
    for k in range(ne): Q.v("v_mul_f32", V(SD + k), "s9", V(SD + k))
    for k in range(0, ne, 2): Q.v("v_cvt_pk_f16_f32", V(SD + k), V(SD + k), V(SD + min(k + 1, ne - 1)))
    for k in range(ne):
        Q.dsw("ds_write_b16_d16_hi" if k & 1 else "ds_write_b16", V(LA + k), V(SD + (k & ~1)))
    Q.dsr("ds_read_b128", "v[240:243]", "v41")
    for o in aops[:10]: emitv(Q, o)
    aops = aops[10:]
    for e in range(4): Q.v("v_pk_mul_f16", V(240 + e), V(240 + e), V(FAC + e))
    if OPT.get("a8", 1):
        Q.v("v_mov_b32", "v46", "0x00040004"); Q.v("v_mov_b32", "v47", "0xfff8fff8")
        for e in range(4): Q.v("v_pk_add_u16", V(240 + e), V(240 + e), "v46")
        for e in range(4): Q.v("v_and_b32", V(240 + e), "v47", V(240 + e))
    Q.s("s_cmp_ge_u32", "s39", 27)
    Q.v("v_writelane_b32", "v240", "s8", 48)
    Q.s("s_cbranch_scc1", "L_P_skip" + tag)
    Q.cond = True
    Q.s("s_mov_b32", "exec_hi", "0x1ffff")
    Q.bstore("buffer_store_dwordx4", "v[240:243]", "v32", S(R_WS, 4), "s93", mods=SC1)
    Q.s("s_mov_b32", "exec_hi", -1)
    Q.cond = False
    Q.label("L_P_skip" + tag)
    stamp(Q, "pd")
    for o in aops: emitv(Q, o)
    Q.s("s_mov_b32", "s38", 1)
    Q.s("s_lshr_b32", "s5", "s2", 3); Q.s("s_lshl_b32", "s90", 1, "s5")
    Q.waitcnt(None, 0)
    Q.s("s_barrier")
    stamp(Q, 3)
    Q.s("s_setprio", 0)
    Q.s("s_branch", "L_C_join")
CP.s("s_cmp_ge_u32", "s15", 7)
CP.s("s_cbranch_scc1", "L_P2x")
CP.s("s_branch", "L_P2u")
CX = CP.fork()
producer(CP, 1)
producer(CX, 2)

D.label("L_D2")
D.v("v_lshrrev_b32", "v12", 5, "v1")
D.v("v_bfe_u32", "v13", "v1", 2, 2); D.v("v_lshl_add_u32", "v13", "v12", 3, "v13"); D.v("v_mul_u32_u24", "v13", 192, "v13")
D.v("v_and_b32", "v14", 1, "v1"); D.v("v_lshl_add_u32", "v13", "v14", 5, "v13")
D.v("v_bfe_u32", "v14", "v1", 1, 1); D.v("v_lshl_add_u32", "v13", "v14", 3, "v13")
D.v("v_bfe_u32", "v14", "v1", 4, 1); D.v("v_lshl_add_u32", "v13", "v14", 4, "v13")
D.v("v_add_u32", "v5", "s7", "v13")
D.v("v_and_b32", "v13", 31, "v1"); D.v("v_mul_u32_u24", "v6", 104, "v13")
D.s("s_lshl_b32", "s10", "s4", 3)
D.v("v_add_u32", "v7", "s10", "v6")
D.s("s_lshl_b32", "s5", "s6", 10); D.s("s_add_u32", "s5", "s5", DSC)
D.v("v_lshl_add_u32", "v13", "v1", 3, "s5")
D.v("v_lshl_add_u32", "v14", "v12", 6, "s5")
D.v("v_lshrrev_b32", "v15", 4, "v1"); D.v("v_lshl_add_u32", "v15", "v15", 4, "s5")
D.v("v_lshlrev_b32", "v12", 4, "v12")
D.v("v_mov_b32", "v8", MISC); D.v("v_mov_b32", "v9", 1)
def i_reads(p): return [("ds_read_b64", V(GI + 4 * (p & 1) + 2 * cb, 2), "v7", IDXS + cb * 32 * 104) for cb in (1, 0)]
def i_adv():
    D.s("s_add_u32", "s10", "s10", 8); D.s("s_cmp_eq_u32", "s10", 104); D.s("s_cselect_b32", "s10", 0, "s10")
    D.v("v_add_u32", "v7", "s10", "v6")
def i_addr(p):
    L = []
    for k in range(4): L += gaddr_ops(GI + 4 * (p & 1) + k, GI + 4 * (p & 1) + k, 12, 248 + k)
    return L
D.v("v_lshlrev_b32", V(DT), 16, "v10"); D.v("v_and_b32", V(DT + 1), "0xffff0000", "v10")
D.dsw("ds_write_b64", "v13", V(DT, 2))
for b in range(3):
    for g in range(4): D.dsr("ds_read_b128", V(DACC + 32 * b + 4 * g, 4), "v14", 128 * b + 16 * g)
for T in range(2): D.dsr("ds_read_b128", V(B12 + 4 * T, 4), "v15", 384 + 64 * T)
def w_reads(t):
    return [("ds_read_b64_tr_b16", V(WF + 12 * (t & 1) + 4 * b + 2 * h, 2), "v5", (t % NS) * 3072 + 64 * b + 768 * h) for b in range(3) for h in range(2)]
def x_reads(t): return [("ds_read_b128", V(XF + 8 * (t & 1) + 4 * cb, 4), V(GI + 4 * ((t >> 1) & 1) + 2 * cb + (t & 1)), TAB) for cb in (1, 0)]
D.wait(dmat[0])
stamp(D, 7)
wtok = {}
for o in w_reads(0): wtok[0] = D.dsr(*o)
D.wait(tabt)
stamp(D, 8)
D.s("s_barrier")
stamp(D, 3)
D.s("s_setprio", 2)
for o in i_reads(0): D.dsr(*o)
i_adv()
for o in i_reads(1): D.dsr(*o)
i_adv()
a0 = i_addr(0)
for o in a0[6:9] + a0[0:3]: emitv(D, o)
for o in x_reads(0): D.dsr(*o)
for o in a0[9:12] + a0[3:6]: emitv(D, o)
for t in range(OPT["early"], NS):
    for m in range(3): w_m0(t, m); w_piece(t, m)
    w_adv(t)
b12_groups = [list(range(0, 7)), list(range(7, 13))] if NS >= 5 else [list(range(0, 5)), list(range(5, 9)), list(range(9, 13))]
for t in range(26):
    nxt = t + 1 < 26
    wr = w_reads(t + 1) if nxt else []
    xr = x_reads(t + 1) if nxt else []
    dm = t + NS < 26
    p = t >> 1
    av = i_addr(p + 1) if (t % 2 == 0 and p + 1 < 13) else []
    k = 0
    if t in (1, 4, 10, 18): stamp(D, {1: "mx", 4: "pf", 10: 6, 18: 9}[t])
    for b in range(3):
        for cb in (1, 0):
            acc = DACC + 32 * b + 16 * cb
            srcc = V(DACC + 32 * b, 16) if t == 0 else V(acc, 16)
            D.mfma("v_mfma_f32_32x32x16_bf16", V(acc, 16), V(WF + 12 * (t & 1) + 4 * b, 4), V(XF + 8 * (t & 1) + 4 * cb, 4), srcc)
            if k == 1 and nxt:
                for o in xr: D.dsr(*o)
                D.wait(dmat[t + 1])
                for o in wr[:3]: D.dsr(*o)
            if k == 2 and nxt:
                if dm: w_m0(t + NS, 0)
                for o in wr[3:]: wtok[t + 1] = D.dsr(*o)
                if t % 2 == 0 and p + 2 < 13:
                    for o in i_reads(p + 2): D.dsr(*o)
                    i_adv()
            if k >= 3:
                if dm:
                    if k == 3: D.wait(wtok[t])
                    w_piece(t + NS, k - 3)
                    if k < 5: w_m0(t + NS, k - 2)
                    else: w_adv(t + NS)
                for o in av[4 * (k - 3):4 * (k - 2)]: emitv(D, o)
            k += 1
stamp(D, 4)
D.s("s_setprio", 0)
D.v("v_mov_b32", V(DT + 4), f32(2.0 ** 100))
D.v("v_lshlrev_b32", V(DT + 2), 16, "v11"); D.v("v_and_b32", V(DT + 3), "0xffff0000", "v11")
D.v("v_rcp_f32", V(DT + 2), V(DT + 2)); D.v("v_rcp_f32", V(DT + 3), V(DT + 3))
D.v("v_med3_f32", V(DT + 2), V(DT + 2), V(DT + 4), "-" + V(DT + 4)); D.v("v_med3_f32", V(DT + 3), V(DT + 3), V(DT + 4), "-" + V(DT + 4))
D.dsw("ds_write_b64", "v13", V(DT + 2, 2), 512)
for b in range(3):
    for g in range(4): D.dsr("ds_read_b128", V(IW + 16 * b + 4 * g, 4), "v14", 512 + 128 * b + 16 * g)
for T in range(2): D.dsr("ds_read_b128", V(IW12 + 4 * T, 4), "v15", 512 + 384 + 64 * T)
D.v("v_lshrrev_b32", "v10", 2, "v1"); D.v("v_mul_u32_u24", "v10", 832, "v10")
D.v("v_lshrrev_b32", "v11", 4, "v1"); D.v("v_and_b32", "v11", 2, "v11"); D.v("v_xor_b32", "v11", "v11", "v1"); D.v("v_and_b32", "v11", 3, "v11")
D.v("v_lshl_add_u32", "v2", "v11", 4, "v10"); D.v("v_add_u32", "v2", 768, "v2")
D.v("v_lshrrev_b32", "v10", 4, "v1"); D.v("v_bfe_u32", "v11", "v1", 2, 2); D.v("v_lshl_add_u32", "v11", "v10", 3, "v11"); D.v("v_lshlrev_b32", "v11", 6, "v11")
D.v("v_and_b32", "v12", 1, "v10"); D.v("v_lshl_add_u32", "v11", "v12", 5, "v11"); D.v("v_and_b32", "v13", 3, "v1"); D.v("v_lshl_add_u32", "v11", "v13", 3, "v11")
D.v("v_xor_b32", "v13", 32, "v11"); D.v("v_add_u32", "v3", "s7", "v11"); D.v("v_add_u32", "v4", "s7", "v13")
D.v("v_lshlrev_b32", "v12", 4, "v12")
D.v("v_and_b32", "v13", 15, "v1"); D.v("v_mul_u32_u24", "v13", 104, "v13"); D.v("v_lshrrev_b32", "v10", 1, "v10"); D.v("v_lshl_add_u32", "v13", "v10", 2, "v13")
D.s("s_mul_i32", "s5", "s6", 1664); D.v("v_add_u32", "v7", "s5", "v13")
G12 = 232
for t in range(13): D.dsr("ds_read_b32", V(G12 + t), "v7", IDXS + 8 * t)
for t in range(13):
    for o in gaddr_ops(G12 + t, G12 + t, 12, 248 + (t & 1)): emitv(D, o)
def b12_dma(grp):
    tk = None
    for n, t in enumerate(grp):
        for h in range(2):
            D.s("s_add_u32", "m0", "s7", n * 2048 + 1024 * h)
            D.s("s_mov_b32", "s12", (32 * t + 16 * h) * 832)
            tk = D.dma("v2", S(R_W1, 4), "s12")
    return tk
def b12_rd(n, t):
    o = 12 * (n % 3)
    D.dsr("ds_read_b128", V(WF + o + 8, 4), V(G12 + t), TAB)
    for T in range(2):
        for h in range(2): D.dsr("ds_read_b64_tr_b16", V(WF + o + 4 * T + 2 * h, 2), V(3 + T), n * 2048 + 256 * h)
def b12_mm(grp, tk):
    D.wait(tk)
    for n in range(min(2, len(grp))): b12_rd(n, grp[n])
    for n, t in enumerate(grp):
        if n + 2 < len(grp): b12_rd(n + 2, grp[n + 2])
        o = 12 * (n % 3)
        for T in range(2):
            D.mfma("v_mfma_f32_16x16x32_bf16", V(B12 + 4 * T, 4), V(WF + o + 4 * T, 4), V(WF + o + 8, 4), V(B12 + 4 * T, 4))
VK1, VK2, S0, S1, S2 = DT, DT + 1, DT + 2, DT + 3, DT + 4
D.v("v_mov_b32", V(VK1), f32(K1)); D.v("v_mov_b32", V(VK2), f32(K2))
for r in (S0, S1, S2): D.v("v_mov_b32", V(r), 0)
GT = DT + 8
def gelu(items):
    for g0 in range(0, len(items), 4):
        grp = items[g0:g0 + 4]
        t = [GT + 4 * ((g0 // 4) & 1) + i for i in range(len(grp))]
        for (x, w, s), r in zip(grp, t): D.v("v_mul_f32", V(r), V(x), V(x))
        for (x, w, s), r in zip(grp, t): D.v("v_fma_f32", V(r), V(r), V(VK2), V(VK1))
        for (x, w, s), r in zip(grp, t): D.v("v_mul_f32", V(r), V(x), V(r))
        for (x, w, s), r in zip(grp, t): D.v("v_exp_f32", V(r), V(r))
        for (x, w, s), r in zip(grp, t): D.v("v_fma_f32", V(r), V(r), V(w), V(w))
        for (x, w, s), r in zip(grp, t): D.v("v_rcp_f32", V(r), V(r))
        for (x, w, s), r in zip(grp, t): D.v("v_fmac_f32", V(s), V(x), V(r))
for b in range(3):
    tk = None
    if b < len(b12_groups):
        D.waitcnt(None, 0)
        tk = b12_dma(b12_groups[b])
    its = []
    for k in range(16):
        its.append((DACC + 32 * b + k, IW + 16 * b + k, S0)); its.append((DACC + 32 * b + 16 + k, IW + 16 * b + k, S1))
    gelu(its)
    if tk:
        D.s("s_setprio", 2); b12_mm(b12_groups[b], tk); D.s("s_setprio", 0)
gelu([(B12 + k, IW12 + k, S2) for k in range(8)])
D.v("v_permlane32_swap_b32", V(S0), V(S1)); D.v("v_add_f32", V(S0), V(S0), V(S1))
D.v("v_lshl_add_u32", "v10", "v1", 2, "s7")
D.dsw("ds_write_b32", "v10", V(S0)); D.dsw("ds_write_b32", "v10", V(S2), 256)
lds_signal(D, 8, 9, CNT3)
stamp(D, 10)
dump_stamps(D, 10, 11)
D.label("L_end")
D.s("s_endpgm")

lt = ".p2align 6\n.type L_lut,@object\nL_lut:\n"
for c in range(2):
    for l in range(64):
        dm = 800 + 4 * (l & 31)
        g_ = lambda x: dm if x is None else x
        w = [(g_(lut[l][8 * c + 2 * e]) | (g_(lut[l][8 * c + 2 * e + 1]) << 16)) for e in range(4)]
        lt += "  .long " + ", ".join("0x%08x" % x for x in w) + "\n"
for l in range(64): lt += "  .long " + ", ".join("0x%08x" % x for x in fac[l]) + "\n"
lt += ".size L_lut, 3072\nL_lut_end:\n"

ctext = C.text()
cut = ctext.index("L_CN:")
pt, xt = CP.text(), CX.text()
pc_, xc_ = pt.index("L_P2u:"), xt.index("L_P2x:")
body = D1.text() + ctext[:cut] + pt[:pc_] + xt[:xc_] + ctext[cut:] + AS.text() + pt[pc_:] + xt[xc_:] + D.text()
hdr = open("standalone__deep_cross_xdeepfm__recsys.s.ref").read().split("; @launch")[0]
src = hdr + f"; @launch grid=(256,1,1) block=(512,1,1) lds={LDS_TOTAL}\n"
src += f""".amdgcn_target "amdgcn-amd-amdhsa--gfx950"
.text
.globl {NAME}
.p2align 8
.type {NAME},@function
{NAME}:
""" + body + lt + f""".section .rodata,"a"
.p2align 6
.amdhsa_kernel {NAME}
  .amdhsa_next_free_vgpr 256
  .amdhsa_next_free_sgpr 102
  .amdhsa_accum_offset 256
  .amdhsa_group_segment_fixed_size 0
  .amdhsa_kernarg_size 88
  .amdhsa_user_sgpr_count 2
  .amdhsa_user_sgpr_kernarg_segment_ptr 1
  .amdhsa_system_sgpr_workgroup_id_x 1
.end_amdhsa_kernel
"""
open(sys.argv[1], "w").write(src)
for n_, s_ in (("D1", D1), ("C", C), ("CP", CP), ("CX", CX), ("D", D)): print(n_, s_.stats(), "nops", s_.nops)
print("LDS", LDS_TOTAL)
```

```python
import sys, struct
from asmlib import *
import slotmap as sm

NAME = "standalone__deep_cross_xdeepfm__recsys_kernel"
OPT = dict(stamps=0, ns=4, nstg=6, early=2)
for a in sys.argv[2:]:
    k, v = a.split("="); OPT[k] = int(v) if v.lstrip("-").isdigit() else v
STAMPS = OPT["stamps"]

TAB = 0
IDXS = 32768
AIMG = IDXS + 6656 + 512
RS = 784
BS = 27 * RS
NS = OPT["ns"]
W3S = AIMG
RING = W3S + 4 * 11264
assert 2 * BS <= 4 * 11264
RSZ = NS * 3072
MISC = RING + 4 * RSZ
CNT2, CNT3, MCNT, PCNT, RDY, CLAIM = 0, 4, 8, 12, 16, 32
M3B = MISC + 64
STG = M3B + 2048 + 64
DSC = STG + 4096
LDS_TOTAL = DSC + 4096
assert LDS_TOTAL <= 163840 and AIMG % 16 == 0
def f32(x): return "0x%08x" % struct.unpack("<I", struct.pack("<f", x))[0]
K1 = -2.0 * 0.7978845608028654 * 1.4426950408889634
K2 = K1 * 0.044715
SC1 = "sc1"
def frag_id(blk, ks): return (blk, ks)

SEL = str(OPT.get("sel", "")).split(",")
def stamp(st, name):
    if name == 0 or name == 10: idx = name
    else:
        if "R" + str(name) in SEL and STAMPS:
            j = 1 + SEL.index("R" + str(name))
            st.raw(f"s_memrealtime s[{64+2*j}:{65+2*j}]", 'misc')
            st.lg.append(Tok('lg', [], True, True))
        if str(name) in SEL: idx = 1 + SEL.index(str(name)); assert idx <= 9
        else: return
    if STAMPS:
        st.raw(f"s_memtime s[{64+2*idx}:{65+2*idx}]", 'misc')
        st.lg.append(Tok('lg', [], True, True))
def dump_stamps(st, vt, va):
    if not STAMPS: return
    if OPT.get("dbgdump"):
        if st is not C: return
        st.raw("s_memrealtime s[84:85]", 'misc')
        st.waitcnt(None, 0)
        st.s("s_cmp_eq_u32", "s2", 100); st.s("s_cbranch_scc0", "L_dd"); st.s("s_cmp_eq_u32", "s3", 0); st.s("s_cbranch_scc0", "L_dd")
        st.s("s_mov_b64", "exec", 1)
        st.v("v_mov_b32", V(va), 0)
        for i in range(1, 11):
            st.s("s_sub_u32", "s5", f"s{64+2*i}", "s100")
            st.v("v_mov_b32", V(vt), "s5")
            st.bstore("buffer_store_dword", V(vt), V(va), S(R_DBG, 4), 0, 12 + 4 * i)
        st.label("L_dd")
        return
    st.raw("s_memrealtime s[98:99]", 'misc')
    st.waitcnt(None, 0)
    st.s("s_mov_b32", "s86", "s100"); st.s("s_mov_b32", "s88", "s98"); n = 13
    st.s("s_lshl_b32", "s5", "s2", 3); st.s("s_add_u32", "s5", "s5", "s3"); st.s("s_lshl_b32", "s5", "s5", 6)
    st.s("s_add_u32", "s5", "s5", 0x100000)
    st.v("v_mov_b32", V(va), "s5")
    for i in range(n):
        st.v("v_mov_b32", V(vt), f"s{64+2*i}")
        st.gstore("global_store_dword", V(va), V(vt), "s[36:37]", off=4 * i)
    st.waitcnt(0, None)
def srd(st, r, base): st.s("s_mov_b64", S(r, 2), S(base, 2))
def srd_const(st, r, size):
    st.s("s_mov_b32", S(r + 2), size); st.s("s_mov_b32", S(r + 3), "0x20000")
def lds_signal(st, vaddr, vone, off):
    st.s("s_mov_b64", "exec", 1)
    st.dsw("ds_add_u32", V(vaddr), V(vone), off)
    st.s("s_mov_b64", "exec", -1)
def lds_wait(st, vaddr, vtmp, off, target, name, sleep=None):
    st.s("s_branch", name + "_in") if sleep is not None else None
    st.label(name)
    if sleep is not None:
        st.s("s_sleep", sleep); st.label(name + "_in")
    st.dsr("ds_read_b32", V(vtmp), V(vaddr), off)
    st.waitcnt(None, 0)
    st.v("v_readfirstlane_b32", "s5", V(vtmp))
    st.s("s_cmp_lt_u32", "s5", target)
    st.s("s_cbranch_scc1", name)
def gaddr_ops(dst, idx, vbase, tmp):
    return [("v_lshlrev_b32", V(tmp), 1, V(idx), ""), ("v_lshl_add_u32", V(dst), V(idx), 5, V(vbase), ""),
            ("v_bitop3_b32", V(dst), V(dst), V(tmp), 16, "bitop3:0x78")]
def emitv(st, o): st.v(o[0], o[1], *o[2:-1], mods=o[-1])

P = Stream()
stamp(P, 0)
if STAMPS: P.raw("s_memrealtime s[100:101]", 'misc')
ka = P.sload("s_load_dwordx16", "s[16:31]", "s[0:1]", 0)
P.v("v_lshrrev_b32", "v2", 6, "v0")
P.v("v_and_b32", "v1", 63, "v0")
P.s("s_cmp_ge_u32", "s2", 256)
P.v("v_readfirstlane_b32", "s3", "v2")
P.s("s_cbranch_scc1", "L_end")
if OPT.get("coldhop", 0):
    P.sload("s_load_dwordx2", "s[36:37]", "s[0:1]", 80)
    P.v("v_mov_b32", "v3", 0x8000000)
    P.waitcnt(None, 0)
    P.gload("global_load_dword", "v3", "v3", "s[36:37]")
    P.waitcnt(0, None)
P.raw("s_getpc_b64 s[94:95]", 'salu')
P.label("L_pc")
P.s("s_lshr_b32", "s15", "s2", 3)
R_TAB = 44
P.s("s_cmp_lt_u32", "s3", 4)
P.s("s_cbranch_scc1", "L_C")
C = P.fork()
D = P
R_W1 = 40
DACC, WF, XF, IW, B12, IW12, DT = 16, 112, 136, 152, 200, 208, 216
GI = 240
D.s("s_sub_u32", "s6", "s3", 4)
D.s("s_and_b32", "s5", "s15", 7); D.s("s_lshl_b32", "s5", "s5", 2); D.s("s_add_u32", "s5", "s5", "s6"); D.s("s_mul_i32", "s5", "s5", 10 * 128)
D.v("v_lshl_add_u32", "v8", "v1", 7, "s5")
D.raw("v_min_u32 v8, L_lut_end-L_pc-4, v8", 'misc')
D.s("s_mov_b64", "exec", "0x3ff")
D.gload("global_load_dword", "v255", "v8", "s[94:95]")
D.s("s_mov_b64", "exec", -1)
if STAMPS: D.sload("s_load_dwordx2", "s[36:37]", "s[0:1]", 80)
srd_const(D, R_W1, 416 * 832); srd_const(D, R_TAB, 32000)
D.v("v_bfe_u32", "v33", "v1", 4, 1); D.v("v_xor_b32", "v33", "v33", "v1"); D.v("v_lshlrev_b32", "v33", 4, "v33")
D.s("s_lshl_b32", "s13", "s6", 13)
for n in range(4):
    D.s("s_add_u32", "s5", "s15", n); D.s("s_and_b32", "s5", "s5", 3); D.s("s_lshl_b32", "s5", "s5", 11); D.s("s_add_u32", S(8 + n), "s5", "s13")
D.s("s_mul_i32", "s5", "s15", 79); D.s("s_lshr_b32", "s5", "s5", 10); D.s("s_mul_i32", "s5", "s5", 13); D.s("s_sub_u32", "s4", "s15", "s5")
D.s("s_mul_i32", "s12", "s4", 2 * 13312)
D.s("s_mul_i32", "s7", "s6", RSZ); D.s("s_add_u32", "s7", "s7", RING)
D.s("s_mul_i32", "s5", "s6", 192)
for m in range(3):
    D.v("v_add_u32", "v8", 64 * m, "v1") if m else None
    src = "v8" if m else "v1"
    D.v("v_mul_u32_u24", "v9", 43691, src); D.v("v_lshrrev_b32", "v9", 19, "v9")
    D.v("v_mul_u32_u24", "v10", 832 - 192, "v9"); D.v("v_lshl_add_u32", V(2 + m), src, 4, "v10"); D.v("v_add_u32", V(2 + m), "s5", V(2 + m))
D.v("v_lshlrev_b32", "v8", 2, "v1"); D.v("v_add_u32", "v9", "s5", "v8"); D.v("v_add_u32", "v10", 768 - 192, "v8")
D.v("v_cmp_gt_u32", "vcc", 48, "v1")
D.s("s_mov_b32", "m0", "s7")
D.v("v_cndmask_b32", "v9", "v10", "v9", "vcc")
D.s("s_cmp_ge_u32", "s15", 14)
D.s("s_cbranch_scc1", "L_D_nb0")
D.s("s_barrier")
D.s("s_barrier")
D.label("L_D_nb0")
D.wait(ka)
srd(D, R_W1, 24)
dmat = {}
def w_m0(t, m): D.s("s_add_u32", "m0", "s7", (t % NS) * 3072 + 1024 * m)
def w_piece(t, m): dmat[t] = D.dma(V(2 + m), S(R_W1, 4), "s12")
def w_adv(t):
    D.s("s_add_u32", "s12", "s12", 13312)
    if t % 2 == 1:
        D.s("s_cmp_eq_u32", "s12", 26 * 13312); D.s("s_cselect_b32", "s12", 0, "s12")
w_piece(0, 0); w_m0(0, 1)
bt = D.gload("global_load_dword", "v10", "v9", "s[26:27]")
w_piece(0, 1); w_m0(0, 2)
srd(D, R_TAB, 18)
w_piece(0, 2); w_adv(0)
for n in range(4):
    D.s("s_mov_b32", "m0", S(8 + n))
    D.dma("v33", S(R_TAB, 4), S(8 + n)); tabt = D.dma("v33", S(R_TAB, 4), S(8 + n), 1024)
for t in range(1, OPT["early"]):
    for m in range(3): w_m0(t, m); w_piece(t, m)
    w_adv(t)
wt = D.gload("global_load_dword", "v11", "v9", "s[28:29]")
stamp(D, 1)
D.s("s_branch", "L_D2")
D1 = D
D = D1.fork()

R_IDX, R_CIN, R_WS, R_OUT, R_DBG, R_WO = 48, 40, 52, 56, 60, 48
C.label("L_C")
k2 = C.sload("s_load_dwordx4", "s[32:35]", "s[0:1]", 64)
C.sload("s_load_dwordx2", "s[36:37]", "s[0:1]", 80)
srd_const(C, R_IDX, 16384 * 104)
C.v("v_lshlrev_b32", "v32", 4, "v1")
C.s("s_and_b32", "s7", "s3", 1)
C.s("s_lshl_b32", "s12", "s2", 2); C.s("s_add_u32", "s12", "s12", "s3"); C.s("s_mul_i32", "s12", "s12", 1664)
C.s("s_mul_i32", "s13", "s3", 1664); C.s("s_add_u32", "s13", "s13", IDXS)
C.s("s_mov_b32", "m0", "s13")
srd_const(C, R_CIN, 105456)
C.s("s_lshl_b32", "s14", "s15", 2); C.s("s_add_u32", "s14", "s14", "s3"); C.s("s_mul_i32", "s14", "s14", 7 * 128)
C.v("v_lshlrev_b32", "v7", 7, "v1")
srd_const(C, R_DBG, 256)
C.v("v_mov_b32", "v5", 0); C.v("v_mov_b32", "v21", 1)
C.s("s_lshl_b32", "s11", "s15", 2)
C.s("s_cmp_lt_u32", "s15", 14); C.s("s_cselect_b32", "s5", "s3", 1); C.s("s_cmp_lg_u32", "s5", 0)
C.wait(ka)
srd(C, R_DBG, 34)
srd(C, R_IDX, 16)
C.s("s_cbranch_scc1", "L_C_ncl")
C.s("s_mov_b64", "exec", 1)
C.raw(f"buffer_atomic_add v21, v5, s[{R_DBG}:{R_DBG+3}], s11 offen offset:4 sc0 sc1", 'misc')
C.s("s_mov_b64", "exec", -1)
C.label("L_C_ncl")
C.dma("v32", S(R_IDX, 4), "s12")
C.s("s_mov_b32", "exec_hi", "0xff")
idxt = C.dma("v32", S(R_IDX, 4), "s12", 1024)
srd(C, R_CIN, 20)
C.s("s_mov_b64", "exec", "0x7f")
C.bload("buffer_load_dword", "v23", "v7", S(R_CIN, 4), "s14")
C.s("s_mov_b64", "exec", -1)
stamp(C, 1)
C.s("s_cmp_ge_u32", "s15", 14)
C.s("s_cbranch_scc1", "L_CN")
CP = C.fork()
C.label("L_CN")
GA = 112
def c_setup2(C):
    srd_const(C, R_WS, 2 * BS); srd_const(C, R_OUT, 32768)
    for r, b in ((R_WS, 36), (R_OUT, 32)): srd(C, r, b)
    C.v("v_mov_b32", "v2", MISC)
    for r in range(24, 28): C.v("v_mov_b32", V(r), 0)
    C.dsw("ds_write_b128", "v2", "v[24:27]"); C.dsw("ds_write_b32", "v2", "v24", RDY)
    C.v("v_mov_b32", "v5", 0); C.v("v_mov_b32", "v6", 1)
    if OPT.get("pretouch", 0):
        C.v("v_mov_b32", "v11", 0x10000)
        C.s("s_mov_b64", "exec", 1)
        C.cond = True
        C.gload("global_load_dword", "v12", "v11", "s[36:37]")
        C.gload("global_load_ushort", "v13", "v5", "s[32:33]")
        C.gload("global_load_ushort", "v14", "v5", "s[30:31]")
        C.cond = False
        C.s("s_mov_b64", "exec", -1)
    C.v("v_and_b32", "v8", 15, "v1"); C.v("v_mul_u32_u24", "v7", 104, "v8"); C.v("v_add_u32", "v7", "s13", "v7")
    C.v("v_lshrrev_b32", "v9", 2, "v1"); C.v("v_xor_b32", "v9", "v9", "v1"); C.v("v_and_b32", "v9", 8, "v9")
    C.v("v_and_b32", "v10", 16, "v1"); C.v("v_add_u32", "v4", "v9", "v10")
def c_addr(C):
    C.wait(idxt)
    for r in range(13): C.dsr("ds_read_b64", V(GA + 2 * r, 2), "v7", 8 * r)
    for f in range(26):
        for o in gaddr_ops(GA + f, GA + f, 4, 8 + (f & 1)): emitv(C, o)

c_setup2(C)
C.label("L_C_lose")
C.s("s_mov_b32", "s38", 0)
c_addr(C)
stamp(C, 2)
C.waitcnt(0, 0)
C.s("s_barrier")
stamp(C, 3)
C.label("L_C_join")

FB = 8
UORD = [4, 5, 0, 1, 2, 3, 6, 7]
FREE_AFTER = {1: 21, 2: 34, 3: 34, 4: 34, 5: 60, 6: 60, 7: 99}
ACC = 112
SACC = 176
KAP, KAP2, MSK = 189, 190, 191
ZR = 192
NSTG = OPT["nstg"]
STGR = 204
RES0 = STGR + 4 * NSTG
def Fr(u, r):
    if u < 4: return 34 + 26 * (u & 1) + 2 * r + (u >> 1)
    return {4: 8, 5: 21, 6: 86, 7: 99}[u] + r
def Rw(f): return Fr(f & 1, f >> 1)
MX, MN = 176, 177
LEAD = 12
def sig1():
    C.s("s_cmp_eq_u32", "s38", 0); C.s("s_cbranch_scc1", "L_C_s1")
    C.s("s_mov_b64", "exec", 1)
    C.raw("s_waitcnt vmcnt(0)", 'wait')
    stamp(C, "pe")
    C.raw(f"ds_add_rtn_u32 v180, v2, v6 offset:{PCNT}", 'misc')
    C.v("v_mov_b32", "v181", "s90")
    C.s("s_mov_b32", "s38", 0)
    C.raw("s_waitcnt lgkmcnt(0)", 'wait')
    C.v("v_readfirstlane_b32", "s5", "v180")
    C.s("s_cmp_lg_u32", "s5", 3); C.s("s_cbranch_scc1", "L_C_s1b")
    C.raw(f"buffer_atomic_or v181, v5, s[{R_DBG}:{R_DBG+3}], 0 offen sc0 sc1", 'misc')
    C.s("s_mov_b32", "s38", 2)
    C.label("L_C_s1b")
    C.s("s_mov_b64", "exec", -1)
    C.label("L_C_s1")
def sig2():
    C.s("s_cmp_eq_u32", "s38", 0); C.s("s_cbranch_scc1", "L_C_s2")
    C.raw("s_waitcnt vmcnt(0)", 'wait')
    C.v("v_readfirstlane_b32", "s5", "v181")
    C.s("s_or_b32", "s5", "s5", "s90"); C.s("s_cmp_lg_u32", "s5", "0x3fff"); C.s("s_cbranch_scc1", "L_C_s2")
    C.s("s_mov_b64", "exec", 1)
    C.raw(f"buffer_store_dword v6, v5, s[{R_DBG}:{R_DBG+3}], 0 offen offset:128 sc1", 'misc')
    C.s("s_mov_b64", "exec", -1)
    stamp(C, "pf")
    C.label("L_C_s2")
for f in range(LEAD): C.dsr("ds_read_b64", V(Rw(f), 2), V(GA + f), TAB)
for f in range(26):
    if f == OPT.get("sig1", 6): sig1()
    if f + LEAD < 26: C.dsr("ds_read_b64", V(Rw(f + LEAD), 2), V(GA + f + LEAD), TAB)
    C.v("v_pk_maximum3_f16", V(MX), V(Rw(f)), V(Rw(f) + 1), V(MX) if f else V(Rw(f)))
    C.v("v_pk_minimum3_f16", V(MN), V(Rw(f)), V(Rw(f) + 1), V(MN) if f else V(Rw(f)))
stamp(C, "mx")
C.v("v_and_b32", V(MX), "0x7fff7fff", V(MX)); C.v("v_and_b32", V(MN), "0x7fff7fff", V(MN))
C.v("v_pk_max_u16", V(MX), V(MX), V(MN))
C.v("v_lshrrev_b32", V(MN), 16, V(MX)); C.v("v_and_b32", V(MX), "0xffff", V(MX)); C.v("v_max_u32", V(MX), V(MX), V(MN))
C.v("v_mov_b32", V(MN), V(MX))
C.v("v_mov_b32", V(MSK), "0xfff8fff8")
C.s("s_mov_b32", "s12", "0x05040100")
C.v("v_permlane32_swap_b32", V(MX), V(MN))
C.v("v_max_u32", V(MX), V(MX), V(MN))
C.v("v_lshrrev_b32", V(MX), 7, V(MX)); C.v("v_max_u32", V(MX), 127, V(MX)); C.v("v_min_u32", V(MX), 254, V(MX))
SCL = 4
C.v("v_sub_u32", V(MN), 260, V(MX)); C.v("v_lshlrev_b32", V(SCL), 23, V(MN))
C.v("v_lshlrev_b32", V(MX), 2, V(MX)); C.v("v_subrev_u32", "v3", 4 * 133 + 282, V(MX))
C.v("v_cvt_pkrtz_f16_f32", V(KAP), V(SCL), V(SCL))
C.v("v_pk_mul_f16", V(KAP2), V(KAP), V(KAP)); C.v("v_and_b32", V(KAP2), "0xffff", V(KAP2))
def conv_ops(kk, T0, nt):
    L = []
    for r in range(13):
        a, b = Fr(2 * kk, r), Fr(2 * kk + 1, r)
        t = T0 + 4 * (r % nt)
        lo, hi = a, b; rp = (r - 1) % 13
        L += [("v_lshlrev_b32", V(t), 16, V(a), ""), ("v_lshlrev_b32", V(t + 1), 16, V(b), ""),
              ("v_mul_f32", V(t + 2), V(SCL), V(a), ""), ("v_mul_f32", V(t + 3), V(SCL), V(b), ""),
              ("v_mul_f32", V(t), V(SCL), V(t), ""), ("v_mul_f32", V(t + 1), V(SCL), V(t + 1), ""),
              ("v_cvt_pkrtz_f16_f32", V(hi), V(t + 2), V(t + 3), ""), ("v_cvt_pkrtz_f16_f32", V(lo), V(t), V(t + 1), ""),
              ("v_and_b32", V(hi), V(MSK), V(hi), ""),
              ("v_cvt_pkrtz_f16_f32", V(Fr(4 + 2 * kk, rp)), V(t + 1), V(t), ""),
              ("v_alignbit_b32", V(Fr(5 + 2 * kk, rp)), V(hi), V(hi), 16, "")]
        if r >= 2:
            for k in range(2): L.append(("v_permlane32_swap_b32", V(Fr(2 * kk + k, r - 2)), V(Fr(4 + 2 * kk + k, r - 2)), ""))
    for r in (12, 11):
        for k in range(2): L.append(("v_permlane32_swap_b32", V(Fr(2 * kk + k, r)), V(Fr(4 + 2 * kk + k, r)), ""))
    return L
FLG = 188
ops = conv_ops(0, 192, 3) + conv_ops(1, 168, 2)
C.v("v_lshlrev_b32", V(187), 4, "v1")
def a_load(tag):
    C.raw("s_call_b64 s[92:93], L_aload", 'salu')
AS = Stream()
AS.label("L_aload")
AS.s("s_setprio", 3)
AS.s("s_lshr_b32", "s8", "s2", 3); AS.s("s_and_b32", "s9", "s8", 3)
AS.s("s_mul_i32", "s13", "s3", 11264)
AS.s("s_cmp_eq_u32", "s9", 3); AS.s("s_cselect_b32", "s9", 0, "s9"); AS.s("s_lshl_b32", "s9", "s9", 12)
for n in range(3):
    AS.s("s_add_u32", "s11", "s13", "s9")
    AS.s("s_add_u32", "m0", "s11", AIMG)
    AS.s("s_cmp_eq_u32", "s9", 8192)
    for e in range(3):
        AS.raw(f"buffer_load_dwordx4 v187, s[{R_WS}:{R_WS+3}], s11 offen offset:{1024*e} sc1 lds", 'misc')
    AS.s("s_cbranch_scc1", f"L_al{n}")
    AS.raw(f"buffer_load_dwordx4 v187, s[{R_WS}:{R_WS+3}], s11 offen offset:3072 sc1 lds", 'misc')
    AS.label(f"L_al{n}")
    if n < 2: AS.s("s_cselect_b32", "s9", -4096, "s9"); AS.s("s_add_u32", "s9", "s9", 4096)
AS.s("s_setprio", 0)
AS.raw("s_setpc_b64 s[92:93]", 'salu')
NDEF = OPT.get("ndef", 0)
ops1 = ops[len(ops) - NDEF:]; ops = ops[:len(ops) - NDEF]
POLL = f"buffer_load_dword v{FLG}, v5, s[{R_DBG}:{R_DBG+3}], 0 offen offset:128 sc1"
for i, o in enumerate(ops):
    if i == OPT.get("sig2c", 10): sig2()
    if i == len(ops) - OPT.get("pollb", 40):
        C.s("s_cmp_lg_u32", "s3", 0); C.s("s_cbranch_scc1", "L_C_np0")
        C.raw(POLL, 'misc')
        C.label("L_C_np0")
    emitv(C, o)
stamp(C, 6)
C.v("v_and_b32", V(186), 31, "v1"); C.v("v_lshrrev_b32", V(185), 5, "v1")
C.v("v_cmp_eq_u32", "vcc", 28, V(186)); C.v("v_cmp_gt_u32", "s[14:15]", 25, V(186)); C.v("v_mov_b32", V(184), 26)
C.v("v_cndmask_b32", V(184), V(184), 25, "vcc") if False else None
C.v("v_subb_co_u32", V(184), "s[10:11]", V(184), 0, "vcc") if False else None
C.v("v_mov_b32", V(183), 25); C.v("v_cndmask_b32", V(184), V(184), V(183), "vcc"); C.v("v_cndmask_b32", V(186), V(184), V(186), "s[14:15]")
C.v("v_mul_u32_u24", V(186), RS, V(186)); C.v("v_mul_u32_u24", V(185), 384, V(185)); C.v("v_add3_u32", "v7", V(186), V(185), "v5")
C.v("v_add_u32", "v7", AIMG, "v7")
C.s("s_cmp_lg_u32", "s3", 0); C.s("s_cbranch_scc1", "L_C_w0")
C.s("s_mov_b32", "s14", 1 << 17)
C.label("L_C_poll")
C.raw("s_waitcnt vmcnt(0)", 'wait')
C.v("v_readfirstlane_b32", "s5", V(FLG))
C.s("s_cmp_lg_u32", "s5", 0)
C.s("s_cbranch_scc1", "L_C_got")
C.s("s_sub_u32", "s14", "s14", 1); C.s("s_cmp_eq_u32", "s14", 0); C.s("s_cbranch_scc1", "L_C_got")
C.s("s_sleep", 2)
C.raw(POLL, 'misc')
C.s("s_branch", "L_C_poll")
C.label("L_C_got")
C.dsw("ds_write_b32", "v2", "v6", RDY)
C.s("s_branch", "L_C_ready")
C.label("L_C_w0s")
C.s("s_sleep", 2)
C.label("L_C_w0")
C.dsr("ds_read_b32", V(184), "v2", RDY); C.waitcnt(None, 0)
C.v("v_readfirstlane_b32", "s5", V(184)); C.s("s_cmp_eq_u32", "s5", 0); C.s("s_cbranch_scc1", "L_C_w0s")
C.label("L_C_ready")
stamp(C, 7)
a_load("f")
for k in range(13): C.v("v_mov_b32", V(SACC + k), 0)

order = list(range(22, 24)) + list(range(22))
steps = [(n, ks) for n in range(8) for ks in order]
slots = []
for si, (n, ks) in enumerate(steps):
    if ks < 22: slots.append((si, 0))
    slots.append((si, 1))
def zops(si):
    n, ks = steps[si]; u = UORD[n]; q = ZR + 4 * (si % 3); L = []
    for j in range(4):
        ins = sm.dwords[4 * ks + j]; d = V(q + j)
        if ins[0] == 'A': L.append(("v_pk_mul_f16", d, V(Fr(u, ins[1])), V(Fr(u, ins[2])), "op_sel:[0,0] op_sel_hi:[0,1]"))
        elif ins[0] == 'D': L.append(("v_pk_mul_f16", d, V(Fr(u, ins[1])), V(Fr(u, ins[1])), "op_sel:[0,0] op_sel_hi:[0,1]"))
        elif ins[0] == 'E':
            L.append(("v_perm_b32", d, V(Fr(u, ins[2])), V(Fr(u, ins[1])), "s12", ""))
            L.append(("v_pk_mul_f16", d, d, d, ""))
        elif ins[0] == 'L': L.append(("v_pk_mul_f16", d, V(Fr(u, ins[1])), V(KAP), ""))
        else: L.append(("v_mov_b32", d, V(KAP2), ""))
    return L
for si in (0, 1):
    for o in zops(si): emitv(C, o)
C.raw("s_waitcnt vmcnt(0)", 'wait')
lds_signal(C, 2, 6, CNT2)
lds_wait(C, 2, 255, CNT2, 4, "L_C_w2", sleep=1)
C.label("L_C_go")
C.s("s_setprio", 1)
stamp(C, 8)
resident = {}
free_quads = list(range(RES0, 253, 4))
LOOK = NSTG - 1
stg_next = [0]; slot_reg = {}
def plan_read(i):
    si, blk = slots[i]; n, ks = steps[si]; fid = frag_id(blk, ks)
    if fid in resident: slot_reg[i] = resident[fid]; return
    if free_quads and n < 7:
        reg = free_quads.pop(0); resident[fid] = reg
    else:
        reg = STGR + 4 * stg_next[0]; stg_next[0] = (stg_next[0] + 1) % NSTG
    slot_reg[i] = reg
    C.dsr("ds_read_b128", V(reg, 4), "v7", blk * BS + ks * 16)
for i in range(LOOK): plan_read(i)
pend = []; freed_upto = FB; first_of = {}; epi = []
EXR, EXU = 60, 73
T1, T2 = 97, 98
tail_pre = []
for i, (si, blk) in enumerate(slots):
    n, ks = steps[si]
    newstep = i == 0 or slots[i - 1][0] != si
    if newstep:
        assert not pend
        if si + 2 < len(steps): pend = zops(si + 2)
        if ks == order[0] and n > 0:
            a = ACC + 32 * ((n - 1) & 1)
            epi = [("v_fmac_f32", V(SACC + k), V(a + k), V(a + 16 + k), "") for k in range(13)]
            epi_at = i + 3
            lim = FREE_AFTER[n]
            while freed_upto + 4 <= lim and n < 7:
                free_quads.append(freed_upto); freed_upto += 4
            if n == 1: assert not ops1, len(ops1)
            if n == 6:
                assert freed_upto <= EXR
                tail_pre = [("v", "v_lshrrev_b32", V(MSK), 5, "v1", ""), ("v", "v_mul_u32_u24", V(SCL), RS, V(MSK), ""), ("v", "v_lshlrev_b32", V(MSK), 2, V(SCL), ""),
                            ("v", "v_add_u32", V(MSK), AIMG + 768, V(MSK), ""), ("v", "v_add_u32", V(SCL), AIMG + 768, V(SCL), "")]
                for k in range(13):
                    row = 8 * (k // 4) + k % 4; ar = V(SCL) if k == 12 else V(MSK)
                    tail_pre += [("r", "ds_read_b32", V(EXR + k), ar, row * RS), ("r", "ds_read_b32", V(EXU + k), ar, BS + row * RS)]
                tail_pre += [("g",)]
                tail_pre += [("v", "v_add3_u32", V(EXR + k), V(EXR + k), V(EXU + k), "v3", "") for k in range(13)]
            if n == 7:
                assert not tail_pre
                tail_pre = [
                  ("v", "v_lshrrev_b32", V(T1), 4, "v1", ""), ("v", "v_mul_u32_u24", V(T1), RSZ, V(T1), ""), ("v", "v_and_b32", "v5", 15, "v1", ""),
                  ("v", "v_lshl_add_u32", V(T1), "v5", 2, V(T1), ""), ("s", "s_lshl_b32", "s5", "s3", 6), ("s", "s_add_u32", "s5", "s5", RING),
                  ("v", "v_add_u32", V(T1), "s5", V(T1), ""),
                  ("s", "s_mul_i32", "s5", "s3", RSZ), ("s", "s_add_u32", "s5", "s5", RING + 256), ("v", "v_lshl_add_u32", V(T2), "v1", 2, "s5", ""),
                  ("v", "v_lshlrev_b32", "v5", 1, "v5", ""),
                  ("s", "s_lshl_b32", "s13", "s2", 2), ("s", "s_add_u32", "s13", "s13", "s3"), ("s", "s_lshl_b32", "s13", "s13", 5),
                  ("v", "v_lshlrev_b32", "v6", 16, "v6", "")]
    last_in_step = i + 1 == len(slots) or slots[i + 1][0] != si
    if i + LOOK < len(slots): plan_read(i + LOOK)
    acc = ACC + 32 * (n & 1) + 16 * blk
    first = (n, blk) not in first_of; first_of[(n, blk)] = 1
    C.mfma("v_mfma_f32_32x32x16_f16", V(acc, 16), V(slot_reg[i], 4), V(ZR + 4 * (si % 3), 4), 0 if first else V(acc, 16))
    cnt = len(pend) if last_in_step else (len(pend) + 1) // 2
    for o in pend[:cnt]: emitv(C, o)
    pend = pend[cnt:]
    if epi and i >= epi_at:
        for _ in range(2):
            if epi: emitv(C, epi.pop(0))
    elif ops1 and cnt <= 2:
        for _ in range(3):
            if ops1: emitv(C, ops1.pop(0))
    elif tail_pre and not epi and cnt <= 2:
        for _ in range(2):
            if not tail_pre: break
            o = tail_pre.pop(0)
            if o[0] == "v": emitv(C, o[1:])
            elif o[0] == "r": C.dsr(*o[1:])
            elif o[0] == "s": C.s(*o[1:])
            else: C.gload("global_load_ushort", "v6", "v5", "s[30:31]")
    if i == len(slots) - 4:
        assert not tail_pre
        C.dsr("ds_read_b32", V(KAP), "v2", CNT3); C.dsr("ds_read_b32", V(KAP2), V(T1)); C.dsr("ds_read_b32", V(MSK), V(T2))
stamp(C, 9)
a = ACC + 32
C.v("v_readfirstlane_b32", "s5", V(KAP))
C.s("s_cmp_ge_u32", "s5", 4)
C.s("s_cbranch_scc1", "L_C_fin")
C.s("s_setprio", 0)
lds_wait(C, 2, KAP, CNT3, 4, "L_C_w3", sleep=1)
C.dsr("ds_read_b32", V(KAP2), V(T1)); C.dsr("ds_read_b32", V(MSK), V(T2))
C.label("L_C_fin")
C.waitcnt(None, 0)
C.v("v_add_f32", V(KAP2), V(KAP2), V(MSK))
C.raw("s_nop 7", 'nop'); C.out[-1].states = 8
for k in range(13): C.v("v_fmac_f32", V(SACC + k), V(a + k), V(a + 16 + k))
for k in range(13): C.v("v_ldexp_f32", V(SACC + k), V(SACC + k), V(EXR + k))
C.v("v_add_f32", V(SACC + 12), V(SACC + 12), V(KAP2))
for st_ in (1, 2, 4, 8):
    for k in range(0, 13, 2 * st_):
        if k + st_ < 13: C.v("v_add_f32", V(SACC + k), V(SACC + k), V(SACC + k + st_))
C.v("v_mov_b32", V(SACC + 1), V(SACC)); C.v("v_permlane32_swap_b32", V(SACC), V(SACC + 1)); C.v("v_add_f32", V(SACC), V(SACC), V(SACC + 1))
C.v("v_mov_b32", V(SACC + 1), V(SACC)); C.v("v_permlane16_swap_b32", V(SACC), V(SACC + 1))
C.v("v_add_f32", V(SACC), V(SACC), V(SACC + 1))
C.v("v_add_f32", V(SACC), V(SACC), "v6")
C.v("v_cvt_pk_bf16_f32", V(SACC), V(SACC), V(SACC))
C.s("s_mov_b64", "exec", "0xffff")
C.bstore("buffer_store_short", V(SACC), "v5", S(R_OUT, 4), "s13")
if STAMPS:
    C.s("s_mov_b64", "exec", -1)
    stamp(C, 10)
    dump_stamps(C, 250, 251)
C.s("s_endpgm")

WOF, BF, MD, MA, NF, LUT, IDN, MF, TD, TF, SD, FAC, LA = 44, 48, 92, 236, 140, 148, 164, 172, 180, 196, 204, 156, 220
lut = [[None] * 16 for _ in range(64)]
for l in range(64):
    j, hfc = l & 31, l >> 5
    for k in range(14):
        q = 8 * (k // 4) + 4 * hfc + k % 4
        if q < 26 and j <= 26 and q <= j:
            hf, di, half = sm.target[(q, j)]
            lut[l][k] = hf * 384 + di * 4 + half * 2
hf, di, half = sm.target[(26, 26)]
lut[0][14] = hf * 384 + di * 4 + half * 2
def emask(k): return sum(1 << l for l in range(64) if lut[l][k] is not None)
fac = [[0x3c003c00] * 4 for _ in range(64)]
for a_ in range(26):
    hf, di, half = sm.target[(a_, a_)]
    l = hf * 24 + di // 4
    fac[l][di % 4] = (fac[l][di % 4] & ~(0xffff << (16 * half))) | (0x3800 << (16 * half))
def producer(Q, typ):
    tag = "u" if typ == 1 else "x"
    Q.label("L_P2" + tag)
    if typ == 1: Q.s("s_lshl_b32", "s39", "s15", 2)
    else: Q.s("s_sub_u32", "s39", "s15", 7); Q.s("s_lshl_b32", "s39", "s39", 2)
    Q.s("s_add_u32", "s39", "s39", "s3")
    Q.s("s_mul_i32", "s93", "s39", 52 if typ == 1 else 1352)
    if typ == 1: Q.s("s_add_u32", "s93", "s93", 35152)
    Q.v("v_and_b32", "v29", 31, "v1"); Q.v("v_lshrrev_b32", "v30", 5, "v1")
    Q.v("v_mul_u32_u24", "v31", 1352 if typ == 1 else 52, "v29"); Q.v("v_lshl_add_u32", "v31", "v30", 4, "v31")
    stamp(Q, 2)
    W3A = 112
    if typ == 1:
        Q.s("s_mul_i32", "s90", "s3", 11264); Q.s("s_add_u32", "s90", "s90", W3S)
        Q.s("s_mul_i32", "s91", "s3", 352); Q.s("s_add_u32", "s91", "s91", 70304)
        for m in range(9):
            src = "v1"
            if m: Q.v("v_add_u32", "v22", 64 * m, "v1"); src = "v22"
            Q.v("v_mul_u32_u24", "v20", 2979, src); Q.v("v_lshrrev_b32", "v20", 16, "v20")
            Q.v("v_mul_u32_u24", "v20", 1000, "v20"); Q.v("v_lshl_add_u32", V(W3A + m), src, 4, "v20")
    c_setup2(Q)
    Q.s("s_lshl_b32", "s5", "s3", 10); Q.s("s_add_u32", "s92", "s5", STG)
    Q.v("v_add_u32", "v41", "s92", "v32")
    Q.dsw("ds_write_b128", "v41", "v[24:27]")
    if typ == 1:
        Q.v("v_add_u32", "v42", "s90", "v32"); Q.dsw("ds_write_b128", "v42", "v[24:27]", 9216); Q.dsw("ds_write_b128", "v42", "v[24:27]", 10240)
        Q.s("s_mov_b64", "exec", "0xffffff")
        Q.v("v_add_u32", "v42", M3B + 26 * 64, "v32"); Q.dsw("ds_write_b128", "v42", "v[24:27]")
        Q.s("s_mov_b64", "exec", -1)
        Q.v("v_lshlrev_b32", "v43", 6, "v29"); Q.v("v_add_u32", "v43", M3B, "v43"); Q.dsw("ds_write_b64", "v43", "v[24:25]", 56)
    Q.s("s_cmp_lg_u32", "s3", 0); Q.s("s_cbranch_scc1", "L_P_nw" + tag)
    Q.raw("s_waitcnt vmcnt(%d)" % (6 if OPT.get("pretouch", 0) else 3), 'wait')
    Q.s("s_mov_b64", "exec", 1)
    Q.dsw("ds_write_b32", "v2", "v21", CLAIM)
    Q.s("s_mov_b64", "exec", -1)
    Q.label("L_P_nw" + tag)
    Q.waitcnt(None, 0)
    Q.s("s_barrier")
    Q.dsr("ds_read_b32", "v21", "v2", CLAIM)
    Q.v("v_readfirstlane_b32", "s5", "v21")
    Q.s("s_cmp_eq_u32", "s5", 0); Q.s("s_cbranch_scc1", "L_P_win" + tag)
    Q.s("s_barrier")
    Q.s("s_branch", "L_C_lose")
    Q.label("L_P_win" + tag)
    stamp(Q, "pa")
    Q.s("s_setprio", 3)
    Q.bload("buffer_load_dwordx4", V(NF, 4), "v31", S(R_CIN, 4), "s93")
    Q.bload("buffer_load_dwordx4", V(NF + 4, 4), "v31", S(R_CIN, 4), "s93", 32)
    Q.raw("s_add_u32 s94, s94, L_lut-L_pc", 'salu'); Q.raw("s_addc_u32 s95, s95, 0", 'salu')
    for c in range(3): Q.gload("global_load_dwordx4", V(LUT + 4 * c, 4), "v32", "s[94:95]", c * 1024)
    if typ == 1:
        Q.s("s_mov_b32", S(R_WO + 2), 156); srd(Q, R_WO, 22)
        Q.v("v_and_b32", "v35", 48, "v1"); Q.v("v_lshlrev_b32", "v34", 1, "v29")
        Q.bload("buffer_load_dwordx4", V(WOF, 4), "v35", S(R_WO, 4), 0, 104)
        Q.bload("buffer_load_ushort", "v34", "v34", S(R_WO, 4), 0, 52)
        Q.s("s_lshl_b32", "s5", "s39", 1); Q.v("v_mov_b32", "v35", 0)
        Q.bload("buffer_load_ushort", "v35", "v35", S(R_WO, 4), "s5")
        for m in range(9):
            Q.s("s_add_u32", "m0", "s90", 1024 * m)
            w3t = Q.dma(V(W3A + m), S(R_CIN, 4), "s91")
    Q.s("s_barrier")
    Q.v("v_and_b32", "v36", 1, "v29"); Q.v("v_lshlrev_b32", "v36", 4, "v36")
    Q.v("v_mov_b32", "v37", "0x3f80"); Q.v("v_lshlrev_b32", "v37", "v36", "v37")
    Q.v("v_cmp_gt_u32", "vcc", 26, "v29"); Q.v("v_lshrrev_b32", "v38", 1, "v29")
    Q.v("v_lshlrev_b32", "v39", 2, "v30"); Q.v("v_cndmask_b32", "v37", 0, "v37", "vcc")
    Q.v("v_sub_u32", "v39", "v38", "v39")
    Q.v("v_lshlrev_b32", "v40", 1, "v30"); Q.v("v_sub_u32", "v40", "v38", "v40")
    def ident(dst, vsel, key):
        for s_ in range(2):
            for m in range(0, 4, 2):
                Q.v("v_cmp_eq_u32", "vcc", key(s_, m), vsel); Q.v("v_cmp_eq_u32", "s[96:97]", key(s_, m + 1), vsel)
                Q.v("v_cndmask_b32", V(dst + 4 * s_ + m), 0, "v37", "vcc"); Q.v("v_cndmask_b32", V(dst + 4 * s_ + m + 1), 0, "v37", "s[96:97]")
    ident(IDN, "v39", lambda s_, m: 8 * s_ + m)
    if typ == 2: ident(MF, "v40", lambda s_, m: 8 * s_ + 4 * (m >> 1) + (m & 1))
    Q.s("s_mul_i32", "s93", "s39", RS)
    if typ == 1: Q.s("s_add_u32", "s93", "s93", BS)
    Q.v("v_mov_b32", "v36", "s92")
    if typ == 1:
        Q.v("v_lshrrev_b32", "v38", 4, "v1"); Q.v("v_bfe_u32", "v39", "v1", 2, 2); Q.v("v_lshl_add_u32", "v38", "v38", 3, "v39"); Q.v("v_mul_u32_u24", "v38", 352, "v38")
        Q.v("v_and_b32", "v40", 3, "v1"); Q.v("v_lshl_add_u32", "v38", "v40", 3, "v38"); Q.v("v_add_u32", "v28", "s90", "v38")
        Q.v("v_lshl_add_u32", "v39", "v30", 2, "v39"); Q.v("v_lshlrev_b32", "v39", 6, "v39"); Q.v("v_lshl_add_u32", "v39", "v40", 3, "v39")
        Q.v("v_and_b32", "v40", 16, "v1"); Q.v("v_lshl_add_u32", "v39", "v40", 1, "v39"); Q.v("v_add_u32", "v42", M3B, "v39")
        Q.s("s_mul_i32", "s5", "s3", 176); Q.v("v_add_u32", "v38", "s5", "v1")
        Q.v("v_mov_b32", "v43", M3B)
        for i in range(3):
            if i: Q.v("v_add_u32", "v38", 64, "v38")
            Q.v("v_mul_u32_u24", "v39", 2521, "v38"); Q.v("v_lshrrev_b32", "v39", 16, "v39")
            Q.v("v_mad_u32_u24", "v39", "v39", 12, "v43"); Q.v("v_lshl_add_u32", V(MA + i), "v38", 1, "v39")
        Q.v("v_cmp_gt_u32", "vcc", 676, "v38")
        Q.s("s_and_b32", "s15", "vcc_hi", "0xffff"); Q.s("s_mov_b32", "s14", "vcc_lo")
        Q.v("v_lshl_add_u32", "v43", "v29", 6, "v43")
    Q.mfma("v_mfma_f32_32x32x16_bf16", V(TD, 16), V(NF, 4), V(IDN, 4), 0)
    Q.mfma("v_mfma_f32_32x32x16_bf16", V(TD, 16), V(NF + 4, 4), V(IDN + 4, 4), V(TD, 16))
    for k in range(15):
        Q.v("v_add_u32_sdwa", V(LA + k), "v36", V(LUT + k // 2), mods=f"dst_sel:DWORD dst_unused:UNUSED_PAD src0_sel:DWORD src1_sel:WORD_{k&1}")
    for m in range(8): Q.v("v_cvt_pk_bf16_f32", V(TF + m), V(TD + 2 * m), V(TD + 2 * m + 1))
    if typ == 1:
        Q.s("s_mov_b64", "exec", "0x3ffffff")
        Q.dsw("ds_write_b32", "v43", "v34", 52)
        Q.s("s_mov_b64", "exec", -1)
        Q.v("v_lshlrev_b32", "v35", 16, "v35")
        for q in range(4):
            Q.s("s_mov_b32", "s10", "0x%x" % (0x000f000f << (4 * q))); Q.s("s_mov_b32", "s11", "s10")
            for e in range(4): Q.v("v_cndmask_b32", V(MD + 16 + 4 * q + e), 0, V(WOF + e), "s[10:11]")
        Q.wait(w3t)
        stamp(Q, "pw")
        for T in range(11):
            for h in range(2): Q.dsr("ds_read_b64_tr_b16", V(BF + 4 * T + 2 * h, 2), "v28", 32 * T + 4 * 352 * h)
        for T in range(11):
            i = T // 4
            Q.mfma("v_mfma_f32_16x16x32_bf16", V(MD + 4 * i, 4), V(MD + 16 + 4 * (T % 4), 4), V(BF + 4 * T, 4), 0 if T % 4 == 0 else V(MD + 4 * i, 4))
        for i in range(3):
            Q.v("v_cvt_pk_bf16_f32", V(MD + 4 * i), V(MD + 4 * i), V(MD + 4 * i))
            if i == 2: Q.s("s_mov_b64", "exec", "s[14:15]")
            Q.dsw("ds_write_b16", V(MA + i), V(MD + 4 * i))
        lds_signal(Q, 2, 6, MCNT)
        stamp(Q, "pb")
        lds_wait(Q, 2, 44, MCNT, 4, "L_P_wm")
        for s_ in range(2):
            for jj in range(2): Q.dsr("ds_read_b64_tr_b16", V(MF + 4 * s_ + 2 * jj, 2), "v42", (16 * s_ + 8 * jj) * 64)
    Q.wait(idxt)
    for r in range(13): Q.dsr("ds_read_b64", V(GA + 2 * r, 2), "v7", 8 * r)
    aops = []
    for f in range(26): aops += gaddr_ops(GA + f, GA + f, 4, 8 + (f & 1))
    for n_, mm in enumerate(((TF, MF, 0), (TF + 4, MF + 4, V(SD, 16)), (MF, TF, V(SD, 16)), (MF + 4, TF + 4, V(SD, 16)))):
        Q.mfma("v_mfma_f32_32x32x16_bf16", V(SD, 16), V(mm[0], 4), V(mm[1], 4), mm[2])
        c_ = 0 if n_ == 0 else (5 if n_ < 3 else 12)
        for o in aops[:c_]: emitv(Q, o)
        aops = aops[c_:]
    ne = 15 if typ == 1 else 14
    if typ == 1: Q.v("v_mov_b32", V(SD + 14), "v35")
    Q.v("v_max3_f32", "v44", f"|{V(SD)}|", f"|{V(SD+1)}|", f"|{V(SD+ne-1)}|")
    Q.v("v_max3_f32", "v45", f"|{V(SD+2)}|", f"|{V(SD+3)}|", f"|{V(SD+4)}|")
    for k in range(5, 13, 4):
        Q.v("v_max3_f32", "v44", f"|{V(SD+k)}|", f"|{V(SD+k+1)}|", "v44"); Q.v("v_max3_f32", "v45", f"|{V(SD+k+2)}|", f"|{V(SD+k+3)}|", "v45")
    Q.v("v_max3_f32", "v44", f"|{V(SD+13)}|", "v45", "v44")
    for sh in (8, 4, 2, 1):
        for o in aops[:2]: emitv(Q, o)
        aops = aops[2:]
        Q.v("v_max_f32_dpp", "v44", "v44", "v44", mods=f"row_ror:{sh} row_mask:0xf bank_mask:0xf")
    for q in range(4): Q.v("v_readlane_b32", S(8 + q), "v44", 16 * q)
    stamp(Q, "pc")
    Q.s("s_max_u32", "s8", "s8", "s9"); Q.s("s_max_u32", "s10", "s10", "s11"); Q.s("s_max_u32", "s8", "s8", "s10")
    Q.s("s_lshr_b32", "s8", "s8", 23); Q.s("s_max_u32", "s8", "s8", 67); Q.s("s_min_u32", "s8", "s8", 187)
    Q.s("s_sub_u32", "s9", 268, "s8"); Q.s("s_lshl_b32", "s9", "s9", 23)
    Q.s("s_cmp_ge_u32", "s39", 26); Q.s("s_cselect_b32", "s9", 0, "s9")
    for k in range(ne): Q.v("v_mul_f32", V(SD + k), "s9", V(SD + k))
    for k in range(0, ne, 2): Q.v("v_cvt_pk_f16_f32", V(SD + k), V(SD + k), V(SD + min(k + 1, ne - 1)))
    for k in range(ne):
        Q.dsw("ds_write_b16_d16_hi" if k & 1 else "ds_write_b16", V(LA + k), V(SD + (k & ~1)))
    Q.dsr("ds_read_b128", "v[240:243]", "v41")
    for o in aops[:10]: emitv(Q, o)
    aops = aops[10:]
    for e in range(4): Q.v("v_pk_mul_f16", V(240 + e), V(240 + e), V(FAC + e))
    if OPT.get("a8", 1):
        Q.v("v_mov_b32", "v46", "0x00040004"); Q.v("v_mov_b32", "v47", "0xfff8fff8")
        for e in range(4): Q.v("v_pk_add_u16", V(240 + e), V(240 + e), "v46")
        for e in range(4): Q.v("v_and_b32", V(240 + e), "v47", V(240 + e))
    Q.s("s_cmp_ge_u32", "s39", 27)
    Q.v("v_writelane_b32", "v240", "s8", 48)
    Q.s("s_cbranch_scc1", "L_P_skip" + tag)
    Q.cond = True
    Q.s("s_mov_b32", "exec_hi", "0x1ffff")
    Q.bstore("buffer_store_dwordx4", "v[240:243]", "v32", S(R_WS, 4), "s93", mods=SC1)
    Q.s("s_mov_b32", "exec_hi", -1)
    Q.cond = False
    Q.label("L_P_skip" + tag)
    stamp(Q, "pd")
    for o in aops: emitv(Q, o)
    Q.s("s_mov_b32", "s38", 1)
    Q.s("s_lshr_b32", "s5", "s2", 3); Q.s("s_lshl_b32", "s90", 1, "s5")
    Q.waitcnt(None, 0)
    Q.s("s_barrier")
    stamp(Q, 3)
    Q.s("s_setprio", 0)
    Q.s("s_branch", "L_C_join")
CP.s("s_cmp_ge_u32", "s15", 7)
CP.s("s_cbranch_scc1", "L_P2x")
CP.s("s_branch", "L_P2u")
CX = CP.fork()
producer(CP, 1)
producer(CX, 2)

D.label("L_D2")
D.v("v_lshrrev_b32", "v12", 5, "v1")
D.v("v_bfe_u32", "v13", "v1", 2, 2); D.v("v_lshl_add_u32", "v13", "v12", 3, "v13"); D.v("v_mul_u32_u24", "v13", 192, "v13")
D.v("v_and_b32", "v14", 1, "v1"); D.v("v_lshl_add_u32", "v13", "v14", 5, "v13")
D.v("v_bfe_u32", "v14", "v1", 1, 1); D.v("v_lshl_add_u32", "v13", "v14", 3, "v13")
D.v("v_bfe_u32", "v14", "v1", 4, 1); D.v("v_lshl_add_u32", "v13", "v14", 4, "v13")
D.v("v_add_u32", "v5", "s7", "v13")
D.v("v_and_b32", "v13", 31, "v1"); D.v("v_mul_u32_u24", "v6", 104, "v13")
D.s("s_lshl_b32", "s10", "s4", 3)
D.v("v_add_u32", "v7", "s10", "v6")
D.s("s_lshl_b32", "s5", "s6", 10); D.s("s_add_u32", "s5", "s5", DSC)
D.v("v_lshl_add_u32", "v13", "v1", 3, "s5")
D.v("v_lshl_add_u32", "v14", "v12", 6, "s5")
D.v("v_lshrrev_b32", "v15", 4, "v1"); D.v("v_lshl_add_u32", "v15", "v15", 4, "s5")
D.v("v_lshlrev_b32", "v12", 4, "v12")
D.v("v_mov_b32", "v8", MISC); D.v("v_mov_b32", "v9", 1)
def i_reads(p): return [("ds_read_b64", V(GI + 4 * (p & 1) + 2 * cb, 2), "v7", IDXS + cb * 32 * 104) for cb in (1, 0)]
def i_adv():
    D.s("s_add_u32", "s10", "s10", 8); D.s("s_cmp_eq_u32", "s10", 104); D.s("s_cselect_b32", "s10", 0, "s10")
    D.v("v_add_u32", "v7", "s10", "v6")
def i_addr(p):
    L = []
    for k in range(4): L += gaddr_ops(GI + 4 * (p & 1) + k, GI + 4 * (p & 1) + k, 12, 248 + k)
    return L
D.v("v_lshlrev_b32", V(DT), 16, "v10"); D.v("v_and_b32", V(DT + 1), "0xffff0000", "v10")
D.dsw("ds_write_b64", "v13", V(DT, 2))
for b in range(3):
    for g in range(4): D.dsr("ds_read_b128", V(DACC + 32 * b + 4 * g, 4), "v14", 128 * b + 16 * g)
for T in range(2): D.dsr("ds_read_b128", V(B12 + 4 * T, 4), "v15", 384 + 64 * T)
def w_reads(t):
    return [("ds_read_b64_tr_b16", V(WF + 12 * (t & 1) + 4 * b + 2 * h, 2), "v5", (t % NS) * 3072 + 64 * b + 768 * h) for b in range(3) for h in range(2)]
def x_reads(t): return [("ds_read_b128", V(XF + 8 * (t & 1) + 4 * cb, 4), V(GI + 4 * ((t >> 1) & 1) + 2 * cb + (t & 1)), TAB) for cb in (1, 0)]
D.wait(dmat[0])
stamp(D, 7)
wtok = {}
for o in w_reads(0): wtok[0] = D.dsr(*o)
D.wait(tabt)
stamp(D, 8)
D.s("s_barrier")
stamp(D, 3)
D.s("s_setprio", 2)
for o in i_reads(0): D.dsr(*o)
i_adv()
for o in i_reads(1): D.dsr(*o)
i_adv()
a0 = i_addr(0)
for o in a0[6:9] + a0[0:3]: emitv(D, o)
for o in x_reads(0): D.dsr(*o)
for o in a0[9:12] + a0[3:6]: emitv(D, o)
for t in range(OPT["early"], NS):
    for m in range(3): w_m0(t, m); w_piece(t, m)
    w_adv(t)
b12_groups = [list(range(0, 7)), list(range(7, 13))] if NS >= 5 else [list(range(0, 5)), list(range(5, 9)), list(range(9, 13))]
for t in range(26):
    nxt = t + 1 < 26
    wr = w_reads(t + 1) if nxt else []
    xr = x_reads(t + 1) if nxt else []
    dm = t + NS < 26
    p = t >> 1
    av = i_addr(p + 1) if (t % 2 == 0 and p + 1 < 13) else []
    k = 0
    if t in (1, 4, 10, 18): stamp(D, {1: "mx", 4: "pf", 10: 6, 18: 9}[t])
    for b in range(3):
        for cb in (1, 0):
            acc = DACC + 32 * b + 16 * cb
            srcc = V(DACC + 32 * b, 16) if t == 0 else V(acc, 16)
            D.mfma("v_mfma_f32_32x32x16_bf16", V(acc, 16), V(WF + 12 * (t & 1) + 4 * b, 4), V(XF + 8 * (t & 1) + 4 * cb, 4), srcc)
            if k == 1 and nxt:
                for o in xr: D.dsr(*o)
                D.wait(dmat[t + 1])
                for o in wr[:3]: D.dsr(*o)
            if k == 2 and nxt:
                if dm: w_m0(t + NS, 0)
                for o in wr[3:]: wtok[t + 1] = D.dsr(*o)
                if t % 2 == 0 and p + 2 < 13:
                    for o in i_reads(p + 2): D.dsr(*o)
                    i_adv()
            if k >= 3:
                if dm:
                    if k == 3: D.wait(wtok[t])
                    w_piece(t + NS, k - 3)
                    if k < 5: w_m0(t + NS, k - 2)
                    else: w_adv(t + NS)
                for o in av[4 * (k - 3):4 * (k - 2)]: emitv(D, o)
            k += 1
stamp(D, 4)
D.s("s_setprio", 0)
D.v("v_mov_b32", V(DT + 4), f32(2.0 ** 100))
D.v("v_lshlrev_b32", V(DT + 2), 16, "v11"); D.v("v_and_b32", V(DT + 3), "0xffff0000", "v11")
D.v("v_rcp_f32", V(DT + 2), V(DT + 2)); D.v("v_rcp_f32", V(DT + 3), V(DT + 3))
D.v("v_med3_f32", V(DT + 2), V(DT + 2), V(DT + 4), "-" + V(DT + 4)); D.v("v_med3_f32", V(DT + 3), V(DT + 3), V(DT + 4), "-" + V(DT + 4))
D.dsw("ds_write_b64", "v13", V(DT + 2, 2), 512)
for b in range(3):
    for g in range(4): D.dsr("ds_read_b128", V(IW + 16 * b + 4 * g, 4), "v14", 512 + 128 * b + 16 * g)
for T in range(2): D.dsr("ds_read_b128", V(IW12 + 4 * T, 4), "v15", 512 + 384 + 64 * T)
D.v("v_lshrrev_b32", "v10", 2, "v1"); D.v("v_mul_u32_u24", "v10", 832, "v10")
D.v("v_lshrrev_b32", "v11", 4, "v1"); D.v("v_and_b32", "v11", 2, "v11"); D.v("v_xor_b32", "v11", "v11", "v1"); D.v("v_and_b32", "v11", 3, "v11")
D.v("v_lshl_add_u32", "v2", "v11", 4, "v10"); D.v("v_add_u32", "v2", 768, "v2")
D.v("v_lshrrev_b32", "v10", 4, "v1"); D.v("v_bfe_u32", "v11", "v1", 2, 2); D.v("v_lshl_add_u32", "v11", "v10", 3, "v11"); D.v("v_lshlrev_b32", "v11", 6, "v11")
D.v("v_and_b32", "v12", 1, "v10"); D.v("v_lshl_add_u32", "v11", "v12", 5, "v11"); D.v("v_and_b32", "v13", 3, "v1"); D.v("v_lshl_add_u32", "v11", "v13", 3, "v11")
D.v("v_xor_b32", "v13", 32, "v11"); D.v("v_add_u32", "v3", "s7", "v11"); D.v("v_add_u32", "v4", "s7", "v13")
D.v("v_lshlrev_b32", "v12", 4, "v12")
D.v("v_and_b32", "v13", 15, "v1"); D.v("v_mul_u32_u24", "v13", 104, "v13"); D.v("v_lshrrev_b32", "v10", 1, "v10"); D.v("v_lshl_add_u32", "v13", "v10", 2, "v13")
D.s("s_mul_i32", "s5", "s6", 1664); D.v("v_add_u32", "v7", "s5", "v13")
G12 = 232
for t in range(13): D.dsr("ds_read_b32", V(G12 + t), "v7", IDXS + 8 * t)
for t in range(13):
    for o in gaddr_ops(G12 + t, G12 + t, 12, 248 + (t & 1)): emitv(D, o)
def b12_dma(grp):
    tk = None
    for n, t in enumerate(grp):
        for h in range(2):
            D.s("s_add_u32", "m0", "s7", n * 2048 + 1024 * h)
            D.s("s_mov_b32", "s12", (32 * t + 16 * h) * 832)
            tk = D.dma("v2", S(R_W1, 4), "s12")
    return tk
def b12_rd(n, t):
    o = 12 * (n % 3)
    D.dsr("ds_read_b128", V(WF + o + 8, 4), V(G12 + t), TAB)
    for T in range(2):
        for h in range(2): D.dsr("ds_read_b64_tr_b16", V(WF + o + 4 * T + 2 * h, 2), V(3 + T), n * 2048 + 256 * h)
def b12_mm(grp, tk):
    D.wait(tk)
    for n in range(min(2, len(grp))): b12_rd(n, grp[n])
    for n, t in enumerate(grp):
        if n + 2 < len(grp): b12_rd(n + 2, grp[n + 2])
        o = 12 * (n % 3)
        for T in range(2):
            D.mfma("v_mfma_f32_16x16x32_bf16", V(B12 + 4 * T, 4), V(WF + o + 4 * T, 4), V(WF + o + 8, 4), V(B12 + 4 * T, 4))
VK1, VK2, S0, S1, S2 = DT, DT + 1, DT + 2, DT + 3, DT + 4
D.v("v_mov_b32", V(VK1), f32(K1)); D.v("v_mov_b32", V(VK2), f32(K2))
for r in (S0, S1, S2): D.v("v_mov_b32", V(r), 0)
GT = DT + 8
def gelu(items):
    for g0 in range(0, len(items), 4):
        grp = items[g0:g0 + 4]
        t = [GT + 4 * ((g0 // 4) & 1) + i for i in range(len(grp))]
        for (x, w, s), r in zip(grp, t): D.v("v_mul_f32", V(r), V(x), V(x))
        for (x, w, s), r in zip(grp, t): D.v("v_fma_f32", V(r), V(r), V(VK2), V(VK1))
        for (x, w, s), r in zip(grp, t): D.v("v_mul_f32", V(r), V(x), V(r))
        for (x, w, s), r in zip(grp, t): D.v("v_exp_f32", V(r), V(r))
        for (x, w, s), r in zip(grp, t): D.v("v_fma_f32", V(r), V(r), V(w), V(w))
        for (x, w, s), r in zip(grp, t): D.v("v_rcp_f32", V(r), V(r))
        for (x, w, s), r in zip(grp, t): D.v("v_fmac_f32", V(s), V(x), V(r))
for b in range(3):
    tk = None
    if b < len(b12_groups):
        D.waitcnt(None, 0)
        tk = b12_dma(b12_groups[b])
    its = []
    for k in range(16):
        its.append((DACC + 32 * b + k, IW + 16 * b + k, S0)); its.append((DACC + 32 * b + 16 + k, IW + 16 * b + k, S1))
    gelu(its)
    if tk:
        D.s("s_setprio", 2); b12_mm(b12_groups[b], tk); D.s("s_setprio", 0)
gelu([(B12 + k, IW12 + k, S2) for k in range(8)])
D.v("v_permlane32_swap_b32", V(S0), V(S1)); D.v("v_add_f32", V(S0), V(S0), V(S1))
D.v("v_lshl_add_u32", "v10", "v1", 2, "s7")
D.dsw("ds_write_b32", "v10", V(S0)); D.dsw("ds_write_b32", "v10", V(S2), 256)
lds_signal(D, 8, 9, CNT3)
stamp(D, 10)
dump_stamps(D, 10, 11)
D.label("L_end")
D.s("s_endpgm")

lt = ".p2align 6\n.type L_lut,@object\nL_lut:\n"
for c in range(2):
    for l in range(64):
        dm = 800 + 4 * (l & 31)
        g_ = lambda x: dm if x is None else x
        w = [(g_(lut[l][8 * c + 2 * e]) | (g_(lut[l][8 * c + 2 * e + 1]) << 16)) for e in range(4)]
        lt += "  .long " + ", ".join("0x%08x" % x for x in w) + "\n"
for l in range(64): lt += "  .long " + ", ".join("0x%08x" % x for x in fac[l]) + "\n"
lt += ".size L_lut, 3072\nL_lut_end:\n"

ctext = C.text()
cut = ctext.index("L_CN:")
pt, xt = CP.text(), CX.text()
pc_, xc_ = pt.index("L_P2u:"), xt.index("L_P2x:")
body = D1.text() + ctext[:cut] + pt[:pc_] + xt[:xc_] + ctext[cut:] + AS.text() + pt[pc_:] + xt[xc_:] + D.text()
hdr = open("standalone__deep_cross_xdeepfm__recsys.s.ref").read().split("; @launch")[0]
src = hdr + f"; @launch grid=(256,1,1) block=(512,1,1) lds={LDS_TOTAL}\n"
src += f""".amdgcn_target "amdgcn-amd-amdhsa--gfx950"
.text
.globl {NAME}
.p2align 8
.type {NAME},@function
{NAME}:
""" + body + lt + f""".section .rodata,"a"
.p2align 6
.amdhsa_kernel {NAME}
  .amdhsa_next_free_vgpr 256
  .amdhsa_next_free_sgpr 102
  .amdhsa_accum_offset 256
  .amdhsa_group_segment_fixed_size 0
  .amdhsa_kernarg_size 88
  .amdhsa_user_sgpr_count 2
  .amdhsa_user_sgpr_kernarg_segment_ptr 1
  .amdhsa_system_sgpr_workgroup_id_x 1
.end_amdhsa_kernel
"""
open(sys.argv[1], "w").write(src)
for n_, s_ in (("D1", D1), ("C", C), ("CP", CP), ("CX", CX), ("D", D)): print(n_, s_.stats(), "nops", s_.nops)
print("LDS", LDS_TOTAL)
```

```python
import sys, struct
from asmlib import *
import slotmap as sm

NAME = "standalone__deep_cross_xdeepfm__recsys_kernel"
OPT = dict(stamps=0, ns=2, nstg=6)
for a in sys.argv[2:]:
    k, v = a.split("="); OPT[k] = int(v) if v.lstrip("-").isdigit() else v
STAMPS = OPT["stamps"]

TAB = 0
IDXS = 32768
AIMG = IDXS + 6656 + 512
RS = 784
BS = 27 * RS
NS = OPT["ns"]
W3S = AIMG
RING = W3S + 4 * 11264
assert 2 * BS <= 4 * 11264
SLOT = 7168
RSZ = NS * SLOT
MISC = RING + 4 * RSZ
CNT2, CNT3, MCNT, PCNT, RDY, CLAIM, MCNT2 = 0, 4, 8, 12, 16, 32, 36
M3B = MISC + 64
STG = M3B + 2048 + 64
DSC = STG + 4096
LDS_TOTAL = DSC + 4096
assert LDS_TOTAL <= 163840 and AIMG % 16 == 0
def f32(x): return "0x%08x" % struct.unpack("<I", struct.pack("<f", x))[0]
K1 = -2.0 * 0.7978845608028654 * 1.4426950408889634
K2 = K1 * 0.044715
SC1 = "sc1"
def frag_id(blk, ks): return (blk, ks)

SEL = str(OPT.get("sel", "")).split(",")
def stamp(st, name):
    if name == 0 or name == 10: idx = name
    else:
        if "R" + str(name) in SEL and STAMPS:
            j = 1 + SEL.index("R" + str(name))
            st.raw(f"s_memrealtime s[{64+2*j}:{65+2*j}]", 'misc')
            st.lg.append(Tok('lg', [], True, True))
        if str(name) in SEL: idx = 1 + SEL.index(str(name)); assert idx <= 9
        else: return
    if STAMPS:
        st.raw(f"s_memtime s[{64+2*idx}:{65+2*idx}]", 'misc')
        st.lg.append(Tok('lg', [], True, True))
def dump_stamps(st, vt, va):
    if not STAMPS: return
    if OPT.get("dbgdump"):
        if st is not C: return
        st.raw("s_memrealtime s[84:85]", 'misc')
        st.waitcnt(None, 0)
        st.s("s_cmp_eq_u32", "s2", 100); st.s("s_cbranch_scc0", "L_dd"); st.s("s_cmp_eq_u32", "s3", 0); st.s("s_cbranch_scc0", "L_dd")
        st.s("s_mov_b64", "exec", 1)
        st.v("v_mov_b32", V(va), 0)
        for i in range(1, 11):
            st.s("s_sub_u32", "s5", f"s{64+2*i}", "s100")
            st.v("v_mov_b32", V(vt), "s5")
            st.bstore("buffer_store_dword", V(vt), V(va), S(R_DBG, 4), 0, 12 + 4 * i)
        st.label("L_dd")
        return
    st.raw("s_memrealtime s[98:99]", 'misc')
    st.waitcnt(None, 0)
    st.s("s_mov_b32", "s86", "s100"); st.s("s_mov_b32", "s88", "s98"); n = 13
    st.s("s_lshl_b32", "s5", "s2", 3); st.s("s_add_u32", "s5", "s5", "s3"); st.s("s_lshl_b32", "s5", "s5", 6)
    st.s("s_add_u32", "s5", "s5", 0x100000)
    st.v("v_mov_b32", V(va), "s5")
    for i in range(n):
        st.v("v_mov_b32", V(vt), f"s{64+2*i}")
        st.gstore("global_store_dword", V(va), V(vt), "s[36:37]", off=4 * i)
    st.waitcnt(0, None)
def srd(st, r, base): st.s("s_mov_b64", S(r, 2), S(base, 2))
def srd_const(st, r, size):
    st.s("s_mov_b32", S(r + 2), size); st.s("s_mov_b32", S(r + 3), "0x20000")
def lds_signal(st, vaddr, vone, off):
    st.s("s_mov_b64", "exec", 1)
    st.dsw("ds_add_u32", V(vaddr), V(vone), off)
    st.s("s_mov_b64", "exec", -1)
def lds_wait(st, vaddr, vtmp, off, target, name, sleep=None):
    st.s("s_branch", name + "_in") if sleep is not None else None
    st.label(name)
    if sleep is not None:
        st.s("s_sleep", sleep); st.label(name + "_in")
    st.dsr("ds_read_b32", V(vtmp), V(vaddr), off)
    st.waitcnt(None, 0)
    st.v("v_readfirstlane_b32", "s5", V(vtmp))
    st.s("s_cmp_lt_u32", "s5", target)
    st.s("s_cbranch_scc1", name)
def gaddr_ops(dst, idx, vbase, tmp):
    return [("v_xor_b32", V(dst), V(idx), V(vbase), "")]
def emitv(st, o): st.v(o[0], o[1], *o[2:-1], mods=o[-1])

P = Stream()
stamp(P, 0)
if STAMPS: P.raw("s_memrealtime s[100:101]", 'misc')
ka = P.sload("s_load_dwordx16", "s[16:31]", "s[0:1]", 0)
P.v("v_lshrrev_b32", "v2", 6, "v0")
P.v("v_and_b32", "v1", 63, "v0")
P.s("s_cmp_ge_u32", "s2", 256)
P.v("v_readfirstlane_b32", "s3", "v2")
P.s("s_cbranch_scc1", "L_end")
if OPT.get("coldhop", 0):
    P.sload("s_load_dwordx2", "s[36:37]", "s[0:1]", 80)
    P.v("v_mov_b32", "v3", 0x8000000)
    P.waitcnt(None, 0)
    P.gload("global_load_dword", "v3", "v3", "s[36:37]")
    P.waitcnt(0, None)
P.raw("s_getpc_b64 s[94:95]", 'salu')
P.label("L_pc")
P.s("s_lshr_b32", "s15", "s2", 3)
P.s("s_and_b32", "s5", "s2", 7); P.s("s_sub_u32", "s5", "s5", OPT.get("cg0", 2)); P.s("s_cmp_lt_u32", "s5", 1); P.s("s_cselect_b32", "s38", "s15", 99)
R_TAB = 44
P.s("s_cmp_ge_u32", "s3", 4)
P.s("s_cbranch_scc1", "L_D1")
C = P.fork()
D = P
D.label("L_D1")
R_W1 = 40
DACC, WF, XF, BI, GI, DT = 16, 120, 176, 208, 236, 244
D.s("s_sub_u32", "s6", "s3", 4)
D.s("s_and_b32", "s5", "s15", 7); D.s("s_lshl_b32", "s5", "s5", 2); D.s("s_add_u32", "s5", "s5", "s6"); D.s("s_mul_i32", "s5", "s5", 9 * 128)
D.v("v_lshl_add_u32", "v8", "v1", 7, "s5")
D.raw("v_min_u32 v8, L_lut_end-L_pc-4, v8", 'misc')
D.s("s_mov_b64", "exec", "0x1ff")
D.gload("global_load_dword", "v255", "v8", "s[94:95]")
D.s("s_mov_b64", "exec", -1)
if STAMPS: D.sload("s_load_dwordx2", "s[36:37]", "s[0:1]", 80)
srd_const(D, R_W1, 416 * 832 + 4096); srd_const(D, R_TAB, 32000)
D.v("v_bfe_u32", "v33", "v1", 4, 1); D.v("v_xor_b32", "v33", "v33", "v1"); D.v("v_lshlrev_b32", "v33", 4, "v33")
D.s("s_lshl_b32", "s13", "s6", 13)
for n in range(4):
    D.s("s_add_u32", "s5", "s15", n); D.s("s_and_b32", "s5", "s5", 3); D.s("s_lshl_b32", "s5", "s5", 11); D.s("s_add_u32", S(8 + n), "s5", "s13")
D.s("s_add_u32", "s4", "s15", 18); D.s("s_bfe_u32", "s4", "s4", "0x40001"); D.s("s_sub_u32", "s5", "s4", 13); D.s("s_min_u32", "s4", "s4", "s5")
D.s("s_and_b32", "s39", "s15", 1); D.s("s_lshl_b32", "s39", "s39", 4)
D.s("s_mul_i32", "s12", "s4", 32 * 832)
D.s("s_mul_i32", "s7", "s6", RSZ); D.s("s_add_u32", "s7", "s7", RING)
D.s("s_and_b32", "s14", "s6", 1); D.s("s_lshr_b32", "s5", "s6", 1); D.s("s_mul_i32", "s5", "s5", 416); D.s("s_mul_i32", "s13", "s14", 192); D.s("s_add_u32", "s13", "s13", "s5")
D.s("s_lshl_b32", "s5", "s14", 1)
def dma_off(m):
    src = "v1"
    if m: D.v("v_add_u32", "v10", 64 * m, "v1"); src = "v10"
    D.v("v_mul_u32_u24", "v11", 4682, src); D.v("v_lshrrev_b32", "v11", 16, "v11")
    D.v("v_mad_i32_i24", "v12", "v11", -14, src); D.v("v_add_u32", "v12", "s5", "v12")
    D.v("v_subrev_u32", "v13", 14, "v12"); D.v("v_min_u32", "v12", "v12", "v13")
    D.v("v_lshrrev_b32", "v13", 1, "v11"); D.v("v_xor_b32", "v13", "v13", "v11"); D.v("v_and_b32", "v13", 4, "v13")
    D.v("v_mul_u32_u24", "v13", 3, "v13"); D.v("v_bitop3_b32", "v11", "v11", "v13", "s39", mods="bitop3:0x96")
    D.v("v_mul_u32_u24", "v11", 832, "v11"); D.v("v_lshl_add_u32", "v11", "v12", 4, "v11"); D.v("v_add_u32", V(2 + m), "s13", "v11")
    D.v("v_add_u32", V(2 + m), 4096 - 1024 * (m % 4), V(2 + m))
D.v("v_lshl_add_u32", "v10", "s14", 3, "v1"); D.v("v_subrev_u32", "v11", 56, "v10"); D.v("v_min_u32", "v10", "v10", "v11")
D.v("v_min_u32", "v10", 55, "v10"); D.v("v_lshl_add_u32", "v9", "v10", 2, "s13")
for m in range(4): dma_off(m)
HOLD = 1
D.wait(ka)
srd(D, R_TAB, 18)
bt = D.gload("global_load_dword", "v14", "v9", "s[26:27]")
D.s("s_sub_u32", S(R_W1), "s24", 4096); D.s("s_subb_u32", S(R_W1 + 1), "s25", 0)
dmat = {}
def w_m0(t, m, force=False):
    if m % 4 == 0 or force: D.s("s_add_u32", "m0", "s7", (t % NS) * SLOT + 4096 * (m // 4))
def w_piece(t, m): dmat[t] = D.dma(V(2 + m), S(R_W1, 4), "s12", 1024 * (m % 4))
def w_adv(t):
    D.s("s_add_u32", "s12", "s12", 32 * 832)
    D.s("s_cmp_eq_u32", "s12", 416 * 832); D.s("s_cselect_b32", "s12", 0, "s12")
def t_dma(n):
    D.s("s_mov_b32", "m0", S(8 + n))
    D.dma("v33", S(R_TAB, 4), S(8 + n)); return D.dma("v33", S(R_TAB, 4), S(8 + n), 1024)
TE = OPT.get("te", 1)
t_dma(0)
D.s("s_cmp_ge_u32", "s38", 14)
D.s("s_cbranch_scc1", "L_D_nb0")
D.cond = True
for n in range(1, TE): t_dma(n)
D.cond = False
D.s("s_barrier")
D.label("L_D_nb0")
for m in range(4): w_m0(0, m); w_piece(0, m)
for m in range(4, 7): dma_off(m)
if TE > 1:
    D.s("s_cmp_lt_u32", "s38", 14)
    D.s("s_cbranch_scc1", "L_D_nb1")
    D.cond = True
    for n in range(1, TE): t_dma(n)
    D.cond = False
    D.label("L_D_nb1")
for n in range(TE, 4): tabt = t_dma(n)
for m in range(4, 7): w_m0(0, m); w_piece(0, m)
w_adv(0)
stamp(D, 1)
D.s("s_branch", "L_D2")
D1 = D
D = D1.fork()

R_IDX, R_CIN, R_WS, R_OUT, R_DBG, R_WO = 48, 40, 52, 56, 60, 48
C.label("L_C")
k2 = C.sload("s_load_dwordx4", "s[32:35]", "s[0:1]", 64)
C.sload("s_load_dwordx2", "s[36:37]", "s[0:1]", 80)
srd_const(C, R_IDX, 16384 * 104)
C.v("v_lshlrev_b32", "v32", 4, "v1")
C.s("s_and_b32", "s7", "s3", 1)
C.s("s_lshl_b32", "s12", "s2", 2); C.s("s_add_u32", "s12", "s12", "s3"); C.s("s_mul_i32", "s12", "s12", 1664)
C.s("s_mul_i32", "s13", "s3", 1664); C.s("s_add_u32", "s13", "s13", IDXS)
srd_const(C, R_CIN, 105456)
C.s("s_lshl_b32", "s14", "s15", 2); C.s("s_add_u32", "s14", "s14", "s3"); C.s("s_mul_i32", "s14", "s14", 3 * 128); C.s("s_add_u32", "s14", "s14", 70272)
C.v("v_lshlrev_b32", "v7", 7, "v1")
srd_const(C, R_DBG, 256)
C.wait(ka)
srd(C, R_DBG, 34)
srd(C, R_IDX, 16)
C.bload("buffer_load_dwordx4", "v[12:15]", "v32", S(R_IDX, 4), "s12")
idxt = C.bload("buffer_load_dwordx4", "v[16:19]", "v32", S(R_IDX, 4), "s12", 640)
srd(C, R_CIN, 20)
C.s("s_mov_b64", "exec", 7)
C.bload("buffer_load_dword", "v23", "v7", S(R_CIN, 4), "s14")
C.s("s_mov_b64", "exec", -1)
stamp(C, 1)
C.s("s_cmp_ge_u32", "s38", 14)
C.s("s_cbranch_scc1", "L_CN")
CP = C.fork()
CP.label("L_CP")
C.label("L_CN")
GA = 118
def c_setup2(C):
    srd_const(C, R_WS, 2 * BS); srd_const(C, R_OUT, 32768)
    for r, b in ((R_WS, 36), (R_OUT, 32)): srd(C, r, b)
    C.v("v_mov_b32", "v2", MISC)
    for r in range(24, 28): C.v("v_mov_b32", V(r), 0)
    C.dsw("ds_write_b128", "v2", "v[24:27]"); C.dsw("ds_write_b32", "v2", "v24", RDY)
    C.v("v_mov_b32", "v5", 0); C.v("v_mov_b32", "v6", 1)
    if OPT.get("pretouch", 1):
        C.v("v_mov_b32", "v11", 0x10000)
        C.s("s_mov_b64", "exec", 1)
        C.cond = True
        C.gload("global_load_dword", "v248", "v11", "s[36:37]")
        C.gload("global_load_ushort", "v249", "v5", "s[32:33]")
        C.gload("global_load_ushort", "v250", "v5", "s[30:31]")
        C.cond = False
        C.s("s_mov_b64", "exec", -1)
    C.v("v_and_b32", "v8", 15, "v1"); C.v("v_mul_u32_u24", "v7", 104, "v8"); C.v("v_add_u32", "v7", "s13", "v7")
    C.v("v_lshrrev_b32", "v9", 2, "v1"); C.v("v_xor_b32", "v9", "v9", "v1"); C.v("v_and_b32", "v9", 8, "v9")
    C.v("v_and_b32", "v10", 16, "v1"); C.v("v_add_u32", "v4", "v9", "v10")
def c_xform(C):
    C.v("v_add_u32", "v11", "s13", "v32")
    for r in range(12, 20):
        C.v("v_and_b32", "v8" if r & 1 else "v9", 8, V(r))
        C.v("v_lshlrev_b32", V(r), 5, V(r))
        C.v("v_lshl_or_b32", V(r), "v8" if r & 1 else "v9", 1, V(r))
        if r == 15: C.dsw("ds_write_b128", "v11", "v[12:15]")
    C.dsw("ds_write_b128", "v11", "v[16:19]", 640)
def c_addr(C):
    for r in range(13): C.dsr("ds_read_b64", V(GA + 2 * r, 2), "v7", 8 * r)
    for f in range(26):
        for o in gaddr_ops(GA + f, GA + f, 4, 0): emitv(C, o)

c_setup2(C)
C.s("s_mov_b32", "s38", 0)
c_xform(C)
stamp(C, 2)
C.waitcnt(0, 0)
C.s("s_barrier")
stamp(C, 3)
if OPT.get("xprio", 0): C.s("s_setprio", OPT["xprio"])
C.label("L_C_join")
c_addr(C)

PASSES = [(4, 5), (0, 2), (1, 3), (6, 7)]
ACC = 118
SACC = 182
KAP, KAP2, MSK = 195, 196, 197
ZR = 198
STGR = 214
NSTG = OPT.get("nstg2", 5)
RES0 = STGR + 4 * NSTG
def Fr(u, r):
    if u < 4: return 40 + 26 * (u & 1) + 2 * r + (u >> 1)
    return {4: 8, 5: 21, 6: 92, 7: 105}[u] + r
def Rw(f): return Fr(f & 1, f >> 1)
MX, MN = 182, 183
LEAD = 12
def sig1():
    C.s("s_cmp_eq_u32", "s38", 0); C.s("s_cbranch_scc1", "L_C_s1")
    C.s("s_mov_b64", "exec", 1)
    C.raw("s_waitcnt vmcnt(0)", 'wait')
    stamp(C, "pe")
    C.raw(f"ds_add_rtn_u32 v186, v2, v6 offset:{PCNT}", 'misc')
    C.v("v_mov_b32", "v187", "s90")
    C.s("s_mov_b32", "s38", 0)
    C.raw("s_waitcnt lgkmcnt(0)", 'wait')
    C.v("v_readfirstlane_b32", "s5", "v186")
    C.s("s_cmp_lg_u32", "s5", 3); C.s("s_cbranch_scc1", "L_C_s1b")
    C.raw(f"buffer_atomic_or v187, v5, s[{R_DBG}:{R_DBG+3}], 0 offen sc0 sc1", 'misc')
    C.s("s_mov_b32", "s38", 2)
    C.label("L_C_s1b")
    C.s("s_mov_b64", "exec", -1)
    C.label("L_C_s1")
def sig2():
    C.s("s_cmp_eq_u32", "s38", 0); C.s("s_cbranch_scc1", "L_C_s2")
    C.raw("s_waitcnt vmcnt(0)", 'wait')
    C.v("v_readfirstlane_b32", "s5", "v187")
    C.s("s_or_b32", "s5", "s5", "s90"); C.s("s_cmp_lg_u32", "s5", "0x3fff"); C.s("s_cbranch_scc1", "L_C_s2")
    C.s("s_mov_b64", "exec", 1)
    C.raw(f"buffer_store_dword v6, v5, s[{R_DBG}:{R_DBG+3}], 0 offen offset:128 sc1", 'misc')
    C.s("s_mov_b64", "exec", -1)
    stamp(C, "pf")
    C.label("L_C_s2")
for f in range(LEAD): C.dsr("ds_read_b64", V(Rw(f), 2), V(GA + f), TAB)
for f in range(26):
    if f == OPT.get("sig1", 8): sig1()
    if f + LEAD < 26: C.dsr("ds_read_b64", V(Rw(f + LEAD), 2), V(GA + f + LEAD), TAB)
    C.v("v_pk_maximum3_f16", V(MX), V(Rw(f)), V(Rw(f) + 1), V(MX) if f else V(Rw(f)))
    C.v("v_pk_minimum3_f16", V(MN), V(Rw(f)), V(Rw(f) + 1), V(MN) if f else V(Rw(f)))
stamp(C, "mx")
C.v("v_and_b32", V(MX), "0x7fff7fff", V(MX)); C.v("v_and_b32", V(MN), "0x7fff7fff", V(MN))
C.v("v_pk_max_u16", V(MX), V(MX), V(MN))
C.v("v_lshrrev_b32", V(MN), 16, V(MX)); C.v("v_and_b32", V(MX), "0xffff", V(MX)); C.v("v_max_u32", V(MX), V(MX), V(MN))
C.v("v_mov_b32", V(MN), V(MX))
C.v("v_mov_b32", V(MSK), "0xfff8fff8")
C.s("s_mov_b32", "s12", "0x05040100")
C.v("v_permlane32_swap_b32", V(MX), V(MN))
C.v("v_max_u32", V(MX), V(MX), V(MN))
C.v("v_lshrrev_b32", V(MX), 7, V(MX)); C.v("v_max_u32", V(MX), 127, V(MX)); C.v("v_min_u32", V(MX), 254, V(MX))
SCL = 4
C.v("v_sub_u32", V(MN), 260, V(MX)); C.v("v_lshlrev_b32", V(SCL), 23, V(MN))
C.v("v_lshlrev_b32", V(MX), 2, V(MX)); C.v("v_subrev_u32", "v3", 4 * 133 + 282, V(MX))
C.v("v_cvt_pkrtz_f16_f32", V(KAP), V(SCL), V(SCL))
C.v("v_pk_mul_f16", V(KAP2), V(KAP), V(KAP)); C.v("v_and_b32", V(KAP2), "0xffff", V(KAP2))
def conv_ops(kk, T0, nt):
    L = []
    for r in range(13):
        a, b = Fr(2 * kk, r), Fr(2 * kk + 1, r)
        t = T0 + 4 * (r % nt)
        lo, hi = a, b; rp = (r - 1) % 13
        L += [("v_lshlrev_b32", V(t), 16, V(a), ""), ("v_lshlrev_b32", V(t + 1), 16, V(b), ""),
              ("v_mul_f32", V(t + 2), V(SCL), V(a), ""), ("v_mul_f32", V(t + 3), V(SCL), V(b), ""),
              ("v_mul_f32", V(t), V(SCL), V(t), ""), ("v_mul_f32", V(t + 1), V(SCL), V(t + 1), ""),
              ("v_cvt_pkrtz_f16_f32", V(hi), V(t + 2), V(t + 3), ""), ("v_cvt_pkrtz_f16_f32", V(lo), V(t), V(t + 1), ""),
              ("v_and_b32", V(hi), V(MSK), V(hi), ""),
              ("v_cvt_pkrtz_f16_f32", V(Fr(4 + 2 * kk, rp)), V(t + 1), V(t), ""),
              ("v_alignbit_b32", V(Fr(5 + 2 * kk, rp)), V(hi), V(hi), 16, "")]
        if r >= 2:
            for k in range(2): L.append(("v_permlane32_swap_b32", V(Fr(2 * kk + k, r - 2)), V(Fr(4 + 2 * kk + k, r - 2)), ""))
    for r in (12, 11):
        for k in range(2): L.append(("v_permlane32_swap_b32", V(Fr(2 * kk + k, r)), V(Fr(4 + 2 * kk + k, r)), ""))
    return L
FLG = 194
ops = conv_ops(0, 198, 3) + conv_ops(1, 246, 2)
C.v("v_lshlrev_b32", V(193), 4, "v1")
def a_load(tag):
    C.raw("s_call_b64 s[92:93], L_aload", 'salu')
AS = Stream()
AS.label("L_aload")
AS.s("s_lshr_b32", "s8", "s2", 3); AS.s("s_and_b32", "s9", "s8", 3)
AS.s("s_mul_i32", "s13", "s3", 11264)
AS.s("s_cmp_eq_u32", "s9", 3); AS.s("s_cselect_b32", "s9", 0, "s9"); AS.s("s_lshl_b32", "s9", "s9", 12)
for n in range(3):
    AS.s("s_add_u32", "s11", "s13", "s9")
    AS.s("s_add_u32", "m0", "s11", AIMG)
    AS.s("s_cmp_eq_u32", "s9", 8192)
    for e in range(3):
        AS.raw(f"buffer_load_dwordx4 v193, s[{R_WS}:{R_WS+3}], s11 offen offset:{1024*e} sc1 lds", 'misc')
    AS.s("s_cbranch_scc1", f"L_al{n}")
    AS.raw(f"buffer_load_dwordx4 v193, s[{R_WS}:{R_WS+3}], s11 offen offset:3072 sc1 lds", 'misc')
    AS.label(f"L_al{n}")
    if n < 2: AS.s("s_cselect_b32", "s9", -4096, "s9"); AS.s("s_add_u32", "s9", "s9", 4096)
AS.s("s_mov_b32", "s39", 0)
AS.raw("s_setpc_b64 s[92:93]", 'salu')
NDEF = OPT.get("ndef", 0)
ops1 = ops[len(ops) - NDEF:]; ops = ops[:len(ops) - NDEF]
POLL = f"buffer_load_dword v{FLG}, v5, s[{R_DBG}:{R_DBG+3}], 0 offen offset:128 sc1"
C.s("s_mov_b32", "s39", 1)
CHECKS = [int(x) for x in str(OPT.get("chk", "0")).split("_") if 0 < int(x) < len(ops)]
for i, o in enumerate(ops):
    if i == OPT.get("sig2c", 10): sig2()
    if i in CHECKS:
        t = str(CHECKS.index(i) + 1)
        C.s("s_cmp_eq_u32", "s39", 0); C.s("s_cbranch_scc1", "L_C_nc" + t)
        C.raw("s_waitcnt vmcnt(0)", 'wait')
        C.v("v_readfirstlane_b32", "s5", V(FLG))
        C.s("s_cmp_eq_u32", "s5", 0); C.s("s_cbranch_scc1", "L_C_nc" + t)
        C.raw(f"ds_write_b32 v2, v6 offset:{RDY}", 'misc')
        a_load(t)
        C.label("L_C_nc" + t)
    nx = [c for c in CHECKS + [len(ops) + 30] if i == c - 70]
    if nx:
        C.s("s_cmp_eq_u32", "s39", 0); C.s("s_cbranch_scc1", "L_C_np%d" % i)
        C.raw(POLL, 'misc')
        C.label("L_C_np%d" % i)
    emitv(C, o)
stamp(C, 6)
C.v("v_and_b32", V(192), 31, "v1"); C.v("v_lshrrev_b32", V(191), 5, "v1")
C.v("v_cmp_eq_u32", "vcc", 28, V(192)); C.v("v_cmp_gt_u32", "s[14:15]", 25, V(192)); C.v("v_mov_b32", V(190), 26)
C.v("v_cndmask_b32", V(190), V(190), 25, "vcc") if False else None
C.v("v_subb_co_u32", V(190), "s[10:11]", V(190), 0, "vcc") if False else None
C.v("v_mov_b32", V(189), 25); C.v("v_cndmask_b32", V(190), V(190), V(189), "vcc"); C.v("v_cndmask_b32", V(192), V(190), V(192), "s[14:15]")
C.v("v_mul_u32_u24", V(192), RS, V(192)); C.v("v_mul_u32_u24", V(191), 384, V(191)); C.v("v_add3_u32", "v7", V(192), V(191), "v5")
C.v("v_add_u32", "v7", AIMG, "v7")
C.s("s_setprio", 0)
C.s("s_cmp_eq_u32", "s39", 0); C.s("s_cbranch_scc1", "L_C_have")
C.s("s_mov_b32", "s14", 1 << 17)
C.label("L_C_poll")
C.raw("s_waitcnt vmcnt(0)", 'wait')
C.v("v_readfirstlane_b32", "s5", V(FLG))
C.s("s_cmp_lg_u32", "s5", 0)
C.s("s_cbranch_scc1", "L_C_got")
C.s("s_cmp_lg_u32", "s3", 0); C.s("s_cbranch_scc1", "L_C_w0")
C.s("s_sub_u32", "s14", "s14", 1); C.s("s_cmp_eq_u32", "s14", 0); C.s("s_cbranch_scc1", "L_C_got")
C.s("s_sleep", 2)
C.raw(POLL, 'misc')
C.s("s_branch", "L_C_poll")
C.label("L_C_got")
C.dsw("ds_write_b32", "v2", "v6", RDY)
C.s("s_branch", "L_C_ready")
C.label("L_C_w0s")
C.s("s_sleep", 2)
C.label("L_C_w0")
C.dsr("ds_read_b32", V(190), "v2", RDY); C.waitcnt(None, 0)
C.v("v_readfirstlane_b32", "s5", V(190)); C.s("s_cmp_eq_u32", "s5", 0); C.s("s_cbranch_scc1", "L_C_w0s")
C.label("L_C_ready")
stamp(C, 7)
C.s("s_setprio", 3)
a_load("f")
C.label("L_C_have")
for k in range(13): C.v("v_mov_b32", V(SACC + k), 0)

order = list(range(22, 24)) + list(range(22))
order_last = [22, 0] + list(range(1, 22)) + [23]
steps = [(n, ks) for n in range(4) for ks in (order if n < 3 else order_last)]
def zops(si):
    n, ks = steps[si]; L = []
    for h in range(2):
        u = PASSES[n][h]; q = ZR + 8 * (si % 2) + 4 * h
        for j in range(4):
            ins = sm.dwords[4 * ks + j]; d = V(q + j)
            if ins[0] == 'A': L.append(("v_pk_mul_f16", d, V(Fr(u, ins[1])), V(Fr(u, ins[2])), "op_sel:[0,0] op_sel_hi:[0,1]"))
            elif ins[0] == 'D': L.append(("v_pk_mul_f16", d, V(Fr(u, ins[1])), V(Fr(u, ins[1])), "op_sel:[0,0] op_sel_hi:[0,1]"))
            elif ins[0] == 'E':
                L.append(("v_perm_b32", d, V(Fr(u, ins[2])), V(Fr(u, ins[1])), "s12", ""))
                L.append(("v_pk_mul_f16", d, d, d, ""))
            elif ins[0] == 'L': L.append(("v_pk_mul_f16", d, V(Fr(u, ins[1])), V(KAP), ""))
            else: L.append(("v_mov_b32", d, V(KAP2), ""))
    return L
for o in zops(0): emitv(C, o)
C.raw("s_waitcnt vmcnt(0)", 'wait')
lds_signal(C, 2, 6, CNT2)
lds_wait(C, 2, 255, CNT2, 4, "L_C_w2", sleep=1)
C.label("L_C_go")
C.s("s_setprio", 1)
stamp(C, 8)
uses = []
for si, (n, ks) in enumerate(steps):
    if ks < 22: uses.append((si, 0))
    uses.append((si, 1))
resident = {}
free_quads = list(range(RES0, 246 - 3 if ops1 else 253, 4))
had1 = bool(ops1)
LOOK = NSTG - 2
stg_next = [0]; use_reg = {}
def plan_read(i):
    si, blk = uses[i]; n, ks = steps[si]; fid = (blk, ks)
    if fid in resident: use_reg[(si, blk)] = resident[fid]; return
    if free_quads and n < 3:
        reg = free_quads.pop(0); resident[fid] = reg
    else:
        reg = STGR + 4 * stg_next[0]; stg_next[0] = (stg_next[0] + 1) % NSTG
    use_reg[(si, blk)] = reg
    C.dsr("ds_read_b128", V(reg, 4), "v7", blk * BS + ks * 16)
nread = [0]
def read_upto(i):
    while nread[0] <= i and nread[0] < len(uses): plan_read(nread[0]); nread[0] += 1
read_upto(LOOK)
accs = [{(0, 0): ACC, (1, 0): ACC + 16, (0, 1): ACC + 32, (1, 1): ACC + 48}]
spare = [8, 24]
for n in range(1, 4):
    p = accs[-1]
    accs.append({(1, 0): spare[0], (1, 1): spare[1], (0, 0): p[(0, 0)], (0, 1): p[(1, 0)]})
    spare = [p[(0, 1)], p[(1, 1)]]
EXR, EXU = 66, 79
T1, RP = 92 - 2, 0
first_of = set(); extra = []; tail_pre = []
mi = 0; ui = 0
for si, (n, ks) in enumerate(steps):
    seq = [(0, 0), (1, 0), (1, 1), (0, 1)] if ks < 22 else [(1, 0), (1, 1)]
    if ks == order[-1]: seq = [(0, 0), (1, 0), (0, 1), (1, 1)] if n < 3 else [(0, 0), (0, 1), (1, 0), (1, 1)]
    if n == 3 and ks == 0: seq = [(1, 0), (1, 1), (0, 1), (0, 0)]
    if si == len(order) - 1: assert not ops1, len(ops1)
    pend = zops(si + 1) if si + 1 < len(steps) else []
    if ks == order[0]:
        pm = 0
        if n > 0:
            p = accs[n - 1]
            epa = [("v_fmac_f32", V(SACC + k), V(p[(0, 0)] + k), V(p[(1, 0)] + k), "") for k in range(13)]
            epb = [("v_fmac_f32", V(SACC + k), V(p[(0, 1)] + k), V(p[(1, 1)] + k), "") for k in range(13)]
            if n == 1 and had1: free_quads += [246, 250]
            if n == 2: free_quads += list(range(40, 63, 4))
            if n == 3:
                sp = spare
                T1, RP = sp[0], sp[0] + 2
                tail_pre = [("v", "v_lshrrev_b32", V(MSK), 5, "v1", ""), ("v", "v_mul_u32_u24", V(SCL), RS, V(MSK), ""), ("v", "v_lshlrev_b32", V(MSK), 2, V(SCL), ""),
                            ("v", "v_add_u32", V(MSK), AIMG + 768, V(MSK), ""), ("v", "v_add_u32", V(SCL), AIMG + 768, V(SCL), "")]
                for k in range(13):
                    row = 8 * (k // 4) + k % 4; ar = V(SCL) if k == 12 else V(MSK)
                    tail_pre += [("r", "ds_read_b32", V(EXR + k), ar, row * RS), ("r", "ds_read_b32", V(EXU + k), ar, BS + row * RS)]
                tail_pre += [("g",)]
                tail_pre += [("v", "v_add3_u32", V(EXR + k), V(EXR + k), V(EXU + k), "v3", "") for k in range(13)]
                tail_pre += [("v", "v_and_b32", "v5", 15, "v1", ""),
                  ("s", "s_lshl_b32", "s5", "s3", 8), ("s", "s_add_u32", "s5", "s5", RING), ("v", "v_lshl_add_u32", V(T1), "v1", 2, "s5", ""),
                  ("v", "v_lshlrev_b32", "v5", 1, "v5", ""),
                  ("s", "s_lshl_b32", "s13", "s2", 2), ("s", "s_add_u32", "s13", "s13", "s3"), ("s", "s_lshl_b32", "s13", "s13", 5),
                  ("v", "v_lshlrev_b32", "v6", 16, "v6", "")]
                tail_pre += [("v", "v_ldexp_f32", V(SACC + k), V(SACC + k), V(EXR + k), "") for k in range(13)]
                for k in range(4, 13): tail_pre += [("v", "v_add_f32", V(SACC + k % 4), V(SACC + k % 4), V(SACC + k), "")]
                tail_pre += [("v", "v_fmac_f32", V(SACC + 1), 0.25 if False else V(SACC + 4), "v6", "")]
                tail_pre.insert(len(tail_pre) - 1, ("v", "v_mov_b32", V(SACC + 4), "0x3e800000", ""))
        else: epa, epb = [], []
    nblk = 2 if ks < 22 else 1
    for e, (blk, h) in enumerate(seq):
        if e == 0 or (e == 2 and nblk == 2): ui += 1; read_upto(ui - 1 + LOOK + (1 if False else 0))
        acc = accs[n][(blk, h)]
        first = (n, blk, h) not in first_of; first_of.add((n, blk, h))
        if first and blk == 0: assert not epa
        C.mfma("v_mfma_f32_32x32x16_f16", V(acc, 16), V(use_reg[(si, blk)], 4), V(ZR + 8 * (si % 2) + 4 * h, 4), 0 if first else V(acc, 16))
        pm += 1
        left = len(seq) - e
        cnt = len(pend) if left <= 1 else min(len(pend), -(-len(pend) // left) + (1 if left == 2 and len(seq) == 4 else 0))
        for o in pend[:cnt]: emitv(C, o)
        pend = pend[cnt:]
        if epa:
            for _ in range(4):
                if epa: emitv(C, epa.pop(0))
        elif epb and pm >= 4:
            for _ in range(2):
                if epb: emitv(C, epb.pop(0))
        elif ops1 and cnt <= 3:
            for _ in range(5 - cnt if cnt < 3 else 1):
                if ops1: emitv(C, ops1.pop(0))
        elif tail_pre and not epb and cnt <= 2:
            for _ in range(2):
                if not tail_pre: break
                o = tail_pre.pop(0)
                if o[0] == "v": emitv(C, o[1:])
                elif o[0] == "r": C.dsr(*o[1:])
                elif o[0] == "s": C.s(*o[1:])
                else: C.gload("global_load_ushort", "v6", "v5", "s[30:31]")
        if si == len(steps) - 4 and e == 0:
            assert not tail_pre, len(tail_pre)
            C.dsr("ds_read_b32", V(SACC + 5), "v2", CNT3)
            for j in range(4): C.dsr("ds_read_b32", V(RP + j), V(T1), j * RSZ)
        if si == len(steps) - 3 and e == 1:
            C.v("v_readfirstlane_b32", "s10", V(SACC + 5))
        if (si == len(steps) - 2 and e == 3) or (si == len(steps) - 1 and e == 0):
            hh = 0 if e == 3 else 1
            for k in range(13): C.v("v_ldexp_f32", V(accs[3][(0, hh)] + k), V(accs[3][(0, hh)] + k), V(EXR + k))
stamp(C, 9)
p = accs[3]
C.s("s_cmp_lt_u32", "s10", 4)
C.s("s_cbranch_scc1", "L_C_slow")
SL = Stream()
SL.label("L_C_slow")
SL.s("s_setprio", 0)
lds_wait(SL, 2, KAP, CNT3, 4, "L_C_w3", sleep=1)
for j in range(4): SL.dsr("ds_read_b32", V(RP + j), V(T1), j * RSZ)
SL.waitcnt(None, 0)
SL.s("s_branch", "L_C_fin")
C.label("L_C_fin")
for j in range(4): C.v("v_add_f32", V(SACC + j), V(SACC + j), V(RP + j))
for h in range(2):
    for k in range(13): C.v("v_fmac_f32", V(SACC + k % 4), V(p[(0, h)] + k), V(p[(1, h)] + k))
C.v("v_add_f32", V(SACC), V(SACC), V(SACC + 1)); C.v("v_add_f32", V(SACC + 2), V(SACC + 2), V(SACC + 3)); C.v("v_add_f32", V(SACC), V(SACC), V(SACC + 2))
C.v("v_mov_b32", V(SACC + 1), V(SACC)); C.v("v_permlane32_swap_b32", V(SACC), V(SACC + 1)); C.v("v_add_f32", V(SACC), V(SACC), V(SACC + 1))
C.v("v_mov_b32", V(SACC + 1), V(SACC)); C.v("v_permlane16_swap_b32", V(SACC), V(SACC + 1))
C.v("v_add_f32", V(SACC), V(SACC), V(SACC + 1))
C.v("v_cvt_pk_bf16_f32", V(SACC), V(SACC), V(SACC))
C.s("s_mov_b64", "exec", "0xffff")
C.bstore("buffer_store_short", V(SACC), "v5", S(R_OUT, 4), "s13")
if STAMPS:
    C.s("s_mov_b64", "exec", -1)
    stamp(C, 10)
    dump_stamps(C, 250, 251)
C.s("s_endpgm")

WOF, BF, MD, MA, NF, LUT, IDN, MF, TD, TF, SD, FAC, LA = 44, 48, 92, 236, 140, 148, 164, 172, 180, 196, 204, 156, 220
lut = [[None] * 16 for _ in range(64)]
for l in range(64):
    j, hfc = l & 31, l >> 5
    for k in range(14):
        q = 8 * (k // 4) + 4 * hfc + k % 4
        if q < 26 and j <= 26 and q <= j:
            hf, di, half = sm.target[(q, j)]
            lut[l][k] = hf * 384 + di * 4 + half * 2
hf, di, half = sm.target[(26, 26)]
lut[0][14] = hf * 384 + di * 4 + half * 2
def emask(k): return sum(1 << l for l in range(64) if lut[l][k] is not None)
fac = [[0x3c003c00] * 4 for _ in range(64)]
for a_ in range(26):
    hf, di, half = sm.target[(a_, a_)]
    l = hf * 24 + di // 4
    fac[l][di % 4] = (fac[l][di % 4] & ~(0xffff << (16 * half))) | (0x3800 << (16 * half))
def producer(Q, typ):
    tag = "u" if typ == 1 else "x"
    Q.label("L_P1" + tag)
    Q.s("s_setprio", 3)
    BB = "pb" if typ == 1 else OPT.get("bbx", "pa")
    if typ == 1: Q.s("s_lshl_b32", "s39", "s15", 2)
    else: Q.s("s_sub_u32", "s39", "s15", 7); Q.s("s_lshl_b32", "s39", "s39", 2)
    Q.s("s_add_u32", "s39", "s39", "s3")
    Q.s("s_mul_i32", "s93", "s39", 52 if typ == 1 else 1352)
    if typ == 1: Q.s("s_add_u32", "s93", "s93", 35152)
    Q.v("v_and_b32", "v29", 31, "v1"); Q.v("v_lshrrev_b32", "v30", 5, "v1")
    Q.v("v_mul_u32_u24", "v31", 1352 if typ == 1 else 52, "v29"); Q.v("v_lshl_add_u32", "v31", "v30", 4, "v31")
    Q.bload("buffer_load_dwordx4", V(NF, 4), "v31", S(R_CIN, 4), "s93")
    Q.bload("buffer_load_dwordx4", V(NF + 4, 4), "v31", S(R_CIN, 4), "s93", 32)
    Q.raw("s_add_u32 s94, s94, L_lut-L_pc", 'salu'); Q.raw("s_addc_u32 s95, s95, 0", 'salu')
    for c in range(3): Q.gload("global_load_dwordx4", V(LUT + 4 * c, 4), "v32", "s[94:95]", c * 1024)
    if typ == 1:
        Q.s("s_mov_b32", S(R_WO + 2), 156); srd(Q, R_WO, 22)
        Q.v("v_and_b32", "v35", 48, "v1"); Q.v("v_lshlrev_b32", "v34", 1, "v29")
        Q.bload("buffer_load_dwordx4", V(WOF, 4), "v35", S(R_WO, 4), 0, 104)
        Q.bload("buffer_load_ushort", "v34", "v34", S(R_WO, 4), 0, 52)
        Q.s("s_lshl_b32", "s5", "s39", 1); Q.v("v_mov_b32", "v35", 0)
        Q.bload("buffer_load_ushort", "v35", "v35", S(R_WO, 4), "s5")
    def w3_dma(ms, issue=True):
        tk = None
        for m in ms:
            src = "v1"
            if m: Q.v("v_add_u32", "v22", 64 * m, "v1"); src = "v22"
            Q.v("v_mul_u32_u24", "v20", 2979, src); Q.s("s_add_u32", "m0", "s90", 1024 * m); Q.v("v_lshrrev_b32", "v20", 16, "v20")
            Q.v("v_mul_u32_u24", "v20", 1000, "v20"); Q.v("v_lshl_add_u32", V(112 + m), src, 4, "v20")
            if issue: tk = Q.dma(V(112 + m), S(R_CIN, 4), "s91")
        return tk
    if typ == 1:
        Q.s("s_mul_i32", "s90", "s3", 11264); Q.s("s_add_u32", "s90", "s90", W3S)
        Q.s("s_mul_i32", "s91", "s3", 352); Q.s("s_add_u32", "s91", "s91", 70304)
        w3_dma(range(OPT.get("w3a", 4)))
    if BB == "pa": Q.s("s_barrier")
    Q.s("s_branch", "L_P2" + tag)
    Q.label("L_P2" + tag)
    stamp(Q, 2)
    c_setup2(Q)
    Q.s("s_lshl_b32", "s5", "s3", 10); Q.s("s_add_u32", "s92", "s5", STG)
    Q.v("v_add_u32", "v41", "s92", "v32")
    Q.dsw("ds_write_b128", "v41", "v[24:27]")
    if typ == 1:
        Q.v("v_add_u32", "v42", "s90", "v32"); Q.dsw("ds_write_b128", "v42", "v[24:27]", 9216); Q.dsw("ds_write_b128", "v42", "v[24:27]", 10240)
        Q.s("s_mov_b64", "exec", "0xffffff")
        Q.v("v_add_u32", "v42", M3B + 26 * 64, "v32"); Q.dsw("ds_write_b128", "v42", "v[24:27]")
        Q.s("s_mov_b64", "exec", -1)
        Q.v("v_lshlrev_b32", "v43", 6, "v29"); Q.v("v_add_u32", "v43", M3B, "v43"); Q.dsw("ds_write_b64", "v43", "v[24:25]", 56)
    Q.v("v_and_b32", "v36", 1, "v29"); Q.v("v_lshlrev_b32", "v36", 4, "v36")
    Q.v("v_mov_b32", "v37", "0x3f80"); Q.v("v_lshlrev_b32", "v37", "v36", "v37")
    Q.v("v_cmp_gt_u32", "vcc", 26, "v29"); Q.v("v_lshrrev_b32", "v38", 1, "v29")
    Q.v("v_lshlrev_b32", "v39", 2, "v30"); Q.v("v_cndmask_b32", "v37", 0, "v37", "vcc")
    Q.v("v_sub_u32", "v39", "v38", "v39")
    Q.v("v_lshlrev_b32", "v40", 1, "v30"); Q.v("v_sub_u32", "v40", "v38", "v40")
    def ident(dst, vsel, key):
        for s_ in range(2):
            for m in range(0, 4, 2):
                Q.v("v_cmp_eq_u32", "vcc", key(s_, m), vsel); Q.v("v_cmp_eq_u32", "s[96:97]", key(s_, m + 1), vsel)
                Q.v("v_cndmask_b32", V(dst + 4 * s_ + m), 0, "v37", "vcc"); Q.v("v_cndmask_b32", V(dst + 4 * s_ + m + 1), 0, "v37", "s[96:97]")
    ident(IDN, "v39", lambda s_, m: 8 * s_ + m)
    if typ == 2: ident(MF, "v40", lambda s_, m: 8 * s_ + 4 * (m >> 1) + (m & 1))
    Q.s("s_mul_i32", "s93", "s39", RS)
    if typ == 1: Q.s("s_add_u32", "s93", "s93", BS)
    Q.v("v_mov_b32", "v36", "s92")
    if typ == 1:
        Q.v("v_lshrrev_b32", "v38", 4, "v1"); Q.v("v_bfe_u32", "v39", "v1", 2, 2); Q.v("v_lshl_add_u32", "v38", "v38", 3, "v39"); Q.v("v_mul_u32_u24", "v38", 352, "v38")
        Q.v("v_and_b32", "v40", 3, "v1"); Q.v("v_lshl_add_u32", "v38", "v40", 3, "v38"); Q.v("v_add_u32", "v28", "s90", "v38")
        Q.v("v_lshl_add_u32", "v39", "v30", 2, "v39"); Q.v("v_lshlrev_b32", "v39", 6, "v39"); Q.v("v_lshl_add_u32", "v39", "v40", 3, "v39")
        Q.v("v_and_b32", "v40", 16, "v1"); Q.v("v_lshl_add_u32", "v39", "v40", 1, "v39"); Q.v("v_add_u32", "v42", M3B, "v39")
        Q.s("s_mul_i32", "s5", "s3", 176); Q.v("v_add_u32", "v38", "s5", "v1")
        Q.v("v_mov_b32", "v43", M3B)
        for i in range(3):
            if i: Q.v("v_add_u32", "v38", 64, "v38")
            Q.v("v_mul_u32_u24", "v39", 2521, "v38"); Q.v("v_lshrrev_b32", "v39", 16, "v39")
            Q.v("v_mad_u32_u24", "v39", "v39", 12, "v43"); Q.v("v_lshl_add_u32", V(MA + i), "v38", 1, "v39")
        Q.v("v_cmp_gt_u32", "vcc", 676, "v38")
        Q.s("s_and_b32", "s15", "vcc_hi", "0xffff"); Q.s("s_mov_b32", "s14", "vcc_lo")
        Q.v("v_lshl_add_u32", "v43", "v29", 6, "v43")
    stamp(Q, "pa")
    if typ == 1: w3t = w3_dma(range(OPT.get("w3a", 4), 9))
    Q.mfma("v_mfma_f32_32x32x16_bf16", V(TD, 16), V(NF, 4), V(IDN, 4), 0)
    Q.mfma("v_mfma_f32_32x32x16_bf16", V(TD, 16), V(NF + 4, 4), V(IDN + 4, 4), V(TD, 16))
    for k in range(15):
        Q.v("v_add_u32_sdwa", V(LA + k), "v36", V(LUT + k // 2), mods=f"dst_sel:DWORD dst_unused:UNUSED_PAD src0_sel:DWORD src1_sel:WORD_{k&1}")
    for m in range(8): Q.v("v_cvt_pk_bf16_f32", V(TF + m), V(TD + 2 * m), V(TD + 2 * m + 1))
    c_xform(Q)
    if typ == 1:
        Q.s("s_mov_b64", "exec", "0x3ffffff")
        Q.dsw("ds_write_b32", "v43", "v34", 52)
        Q.s("s_mov_b64", "exec", -1)
        Q.v("v_lshlrev_b32", "v35", 16, "v35")
        for q in range(4):
            Q.s("s_mov_b32", "s10", "0x%x" % (0x000f000f << (4 * q))); Q.s("s_mov_b32", "s11", "s10")
            for e in range(4): Q.v("v_cndmask_b32", V(MD + 16 + 4 * q + e), 0, V(WOF + e), "s[10:11]")
        Q.wait(w3t)
        stamp(Q, "pw")
        for T in range(11):
            for h in range(2): Q.dsr("ds_read_b64_tr_b16", V(BF + 4 * T + 2 * h, 2), "v28", 32 * T + 4 * 352 * h)
        for T in range(11):
            i = T // 4
            Q.mfma("v_mfma_f32_16x16x32_bf16", V(MD + 4 * i, 4), V(MD + 16 + 4 * (T % 4), 4), V(BF + 4 * T, 4), 0 if T % 4 == 0 else V(MD + 4 * i, 4))
        for i in range(3):
            Q.v("v_cvt_pk_bf16_f32", V(MD + 4 * i), V(MD + 4 * i), V(MD + 4 * i))
            if i == 2: Q.s("s_mov_b64", "exec", "s[14:15]")
            Q.dsw("ds_write_b16", V(MA + i), V(MD + 4 * i))
        Q.s("s_mov_b64", "exec", -1)
        stamp(Q, "pb")
        Q.waitcnt(None, 0)
        Q.s("s_barrier")
        for s_ in range(2):
            for jj in range(2): Q.dsr("ds_read_b64_tr_b16", V(MF + 4 * s_ + 2 * jj, 2), "v42", (16 * s_ + 8 * jj) * 64)
    aops = []
    for n_, mm in enumerate(((TF, MF, 0), (TF + 4, MF + 4, V(SD, 16)), (MF, TF, V(SD, 16)), (MF + 4, TF + 4, V(SD, 16)))):
        Q.mfma("v_mfma_f32_32x32x16_bf16", V(SD, 16), V(mm[0], 4), V(mm[1], 4), mm[2])
        c_ = 0 if n_ < 3 else 10
        for o in aops[:c_]: emitv(Q, o)
        aops = aops[c_:]
    ne = 15 if typ == 1 else 14
    if typ == 1: Q.v("v_mov_b32", V(SD + 14), "v35")
    Q.v("v_max3_f32", "v44", f"|{V(SD)}|", f"|{V(SD+1)}|", f"|{V(SD+ne-1)}|")
    Q.v("v_max3_f32", "v45", f"|{V(SD+2)}|", f"|{V(SD+3)}|", f"|{V(SD+4)}|")
    for k in range(5, 13, 4):
        Q.v("v_max3_f32", "v44", f"|{V(SD+k)}|", f"|{V(SD+k+1)}|", "v44"); Q.v("v_max3_f32", "v45", f"|{V(SD+k+2)}|", f"|{V(SD+k+3)}|", "v45")
    Q.v("v_max3_f32", "v44", f"|{V(SD+13)}|", "v45", "v44")
    for sh in (8, 4, 2, 1):
        for o in aops[:2]: emitv(Q, o)
        aops = aops[2:]
        Q.v("v_max_f32_dpp", "v44", "v44", "v44", mods=f"row_ror:{sh} row_mask:0xf bank_mask:0xf")
    for q in range(4): Q.v("v_readlane_b32", S(8 + q), "v44", 16 * q)
    stamp(Q, "pc")
    if BB == "pc": Q.s("s_barrier")
    Q.s("s_max_u32", "s8", "s8", "s9"); Q.s("s_max_u32", "s10", "s10", "s11"); Q.s("s_max_u32", "s8", "s8", "s10")
    Q.s("s_lshr_b32", "s8", "s8", 23); Q.s("s_max_u32", "s8", "s8", 67); Q.s("s_min_u32", "s8", "s8", 187)
    Q.s("s_sub_u32", "s9", 268, "s8"); Q.s("s_lshl_b32", "s9", "s9", 23)
    Q.s("s_cmp_ge_u32", "s39", 26); Q.s("s_cselect_b32", "s9", 0, "s9")
    for k in range(ne): Q.v("v_mul_f32", V(SD + k), "s9", V(SD + k))
    for k in range(0, ne, 2): Q.v("v_cvt_pk_f16_f32", V(SD + k), V(SD + k), V(SD + min(k + 1, ne - 1)))
    for k in range(ne):
        Q.dsw("ds_write_b16_d16_hi" if k & 1 else "ds_write_b16", V(LA + k), V(SD + (k & ~1)))
    Q.dsr("ds_read_b128", "v[240:243]", "v41")
    for o in aops[:10]: emitv(Q, o)
    aops = aops[10:]
    for e in range(4): Q.v("v_pk_mul_f16", V(240 + e), V(240 + e), V(FAC + e))
    if OPT.get("a8", 1):
        Q.v("v_mov_b32", "v46", "0x00040004"); Q.v("v_mov_b32", "v47", "0xfff8fff8")
        for e in range(4): Q.v("v_pk_add_u16", V(240 + e), V(240 + e), "v46")
        for e in range(4): Q.v("v_and_b32", V(240 + e), "v47", V(240 + e))
    Q.s("s_cmp_ge_u32", "s39", 27)
    Q.v("v_writelane_b32", "v240", "s8", 48)
    Q.s("s_cbranch_scc1", "L_P_skip" + tag)
    Q.cond = True
    Q.s("s_mov_b32", "exec_hi", "0x1ffff")
    Q.bstore("buffer_store_dwordx4", "v[240:243]", "v32", S(R_WS, 4), "s93", mods=SC1)
    Q.s("s_mov_b32", "exec_hi", -1)
    Q.cond = False
    Q.label("L_P_skip" + tag)
    stamp(Q, "pd")
    Q.s("s_mov_b32", "s38", 1)
    Q.s("s_lshr_b32", "s5", "s2", 3); Q.s("s_lshl_b32", "s90", 1, "s5")
    Q.waitcnt(None, 0)
    Q.s("s_barrier")
    stamp(Q, 3)
    Q.s("s_setprio", OPT.get("pprio", 0))
    Q.s("s_branch", "L_C_join")
CP.s("s_cmp_ge_u32", "s15", 7)
CP.s("s_cbranch_scc1", "L_P1x")
CX = CP.fork()
producer(CP, 1)
producer(CX, 2)

D.label("L_D2")
wt = D.gload("global_load_dword", "v15", "v9", "s[28:29]")
D.v("v_lshrrev_b32", "v10", 5, "v1"); D.v("v_bfe_u32", "v11", "v1", 2, 3); D.v("v_lshl_add_u32", "v11", "v10", 4, "v11"); D.v("v_mul_u32_u24", "v11", 224, "v11")
D.v("v_and_b32", "v12", 3, "v1"); D.v("v_lshl_add_u32", "v11", "v12", 3, "v11"); D.v("v_add_u32", "v9", "s7", "v11")
D.s("s_lshr_b32", "s5", "s39", 4); D.v("v_xor_b32", "v10", "s5", "v10")
D.v("v_and_b32", "v11", 15, "v1"); D.v("v_mul_u32_u24", "v11", 104, "v11"); D.v("v_lshl_add_u32", "v11", "v10", 2, "v11")
D.s("s_mul_i32", "s5", "s14", 32 * 104); D.s("s_sub_u32", "s9", 32 * 104, "s5")
D.v("v_add_u32", V(DT + 8), "s5", "v11"); D.v("v_add_u32", V(DT + 9), "s9", "v11")
D.v("v_and_b32", "v12", 16, "v1")
D.s("s_lshl_b32", "s10", "s4", 3)
D.s("s_lshl_b32", "s5", "s6", 10); D.s("s_add_u32", "s5", "s5", DSC)
D.v("v_lshl_add_u32", "v13", "v1", 3, "s5")
D.v("v_and_b32", "v10", 48, "v1"); D.v("v_add_u32", V(DT + 10), "s5", "v10")
D.v("v_lshlrev_b32", V(DT), 16, "v14"); D.v("v_and_b32", V(DT + 1), "0xffff0000", "v14")
D.dsw("ds_write_b64", "v13", V(DT, 2))
for b in range(7): D.dsr("ds_read_b128", V(BI + 4 * b, 4), V(DT + 10), 64 * b)
def i_base():
    D.v("v_add_u32", "v10", "s10", V(DT + 8)); D.v("v_add_u32", "v11", "s10", V(DT + 9))
def i_adv():
    D.s("s_add_u32", "s10", "s10", 8); D.s("s_cmp_eq_u32", "s10", 104); D.s("s_cselect_b32", "s10", 0, "s10")
def i_reads(t): return [("ds_read_b32", V(GI + 4 * (t & 1) + sb), "v10" if sb < 2 else "v11", IDXS + (sb & 1) * 16 * 104) for sb in range(4)]
def i_addr(t):
    L = []
    for k in range(4): L += gaddr_ops(GI + 4 * (t & 1) + k, GI + 4 * (t & 1) + k, 12, DT + 4 + k)
    return L
def w_reads(t):
    return [("ds_read_b64_tr_b16", V(WF + 28 * (t & 1) + 4 * b + 2 * h, 2), "v9", (t % NS) * SLOT + 32 * b + 8 * 224 * h) for b in range(7) for h in range(2)]
def x_reads(t): return [("ds_read_b128", V(XF + 16 * (t & 1) + 4 * sb, 4), V(GI + 4 * (t & 1) + sb), TAB) for sb in range(4)]
i_base(); i_adv()
if not OPT.get("w1late", 1):
    for m in range(7): w_m0(1, m); w_piece(1, m)
    w_adv(1)
wtok = {}
D.wait(tabt)
stamp(D, 8)
D.s("s_barrier")
stamp(D, 3)
D.s("s_setprio", 2)
for o in i_reads(0): D.dsr(*o)
i_base(); i_adv()
a0 = i_addr(0); xr0 = x_reads(0)
for sb in range(4):
    emitv(D, a0[sb]); D.dsr(*xr0[sb])
if OPT.get("w1late", 1):
    for m in range(7): w_m0(1, m); w_piece(1, m)
    w_adv(1)
D.wait(dmat[0])
stamp(D, 7)
for o in w_reads(0): wtok[0] = D.dsr(*o)
for o in i_reads(1): D.dsr(*o)
tiles = [(b, sb) for sb in range(4) for b in range(6)]
tiles = tiles[:6] + [(6, 0)] + tiles[6:12] + [(6, 1)] + tiles[12:]
def tacc(b, sb): return DACC + 4 * (4 * b + sb)
WSTART = OPT.get("wstart", 11)
for t in range(13):
    sched = {k: [] for k in range(26)}
    if t + 1 < 13:
        av = i_addr(t + 1); xr = x_reads(t + 1)
        for sb in range(4): sched[2 * sb + 1] += [("v", av[sb]), ("r", xr[sb])]
        sched[WSTART] += [("wait", t + 1)]
        for n, o in enumerate(w_reads(t + 1)): sched[WSTART + n // 2] += [("w", o)]
    if t + 2 < 13:
        sched[0] += [("ww", t), ("m0", t + 2, 0)]
        for m in range(7):
            k = [2, 4, 6, 8, 10, 20, 22][m] if OPT.get("dsp", 0) else 2 + 2 * m if m < 4 else 2 * m + 1
            k = {0: 2, 1: 4, 2: 6, 3: 8, 4: 10, 5: 19, 6: 21}[m] if OPT.get("dsp", 0) else {0: 2, 1: 4, 2: 6, 3: 8, 4: 9, 5: 10, 6: 10}[m]
            sched[k] += [("dma", t + 2, m)]
            if m == 3: sched[k] += [("m0", t + 2, 4)]
        sched[22] += [("adv", t + 2)]
        sched[WSTART + 7] += [("ib",)]
        for n, o in enumerate(i_reads(t + 2)): sched[WSTART + 8 + n // 2] += [("r", o)]
    if t in (1, 2, 5, 9): stamp(D, {1: "mx", 2: "pf", 5: 6, 9: 9}[t])
    for k, (b, sb) in enumerate(tiles):
        acc = tacc(b, sb)
        D.mfma("v_mfma_f32_16x16x32_bf16", V(acc, 4), V(WF + 28 * (t & 1) + 4 * b, 4), V(XF + 16 * (t & 1) + 4 * sb, 4), V(BI + 4 * b, 4) if t == 0 else V(acc, 4))
        for f in sched[k]:
            if f[0] == "v": emitv(D, f[1])
            elif f[0] == "r": D.dsr(*f[1])
            elif f[0] == "w": wtok[t + 1] = D.dsr(*f[1])
            elif f[0] == "wait": D.wait(dmat[f[1]])
            elif f[0] == "ww": D.wait(wtok[f[1]])
            elif f[0] == "ib": i_base(); i_adv()
            elif f[0] == "m0": w_m0(f[1], f[2])
            elif f[0] == "dma": w_piece(f[1], f[2])
            elif f[0] == "adv": w_adv(f[1])
stamp(D, 4)
D.s("s_setprio", 0)
D.v("v_mov_b32", V(DT + 4), f32(2.0 ** 100))
D.v("v_lshlrev_b32", V(DT + 2), 16, "v15"); D.v("v_and_b32", V(DT + 3), "0xffff0000", "v15")
D.v("v_rcp_f32", V(DT + 2), V(DT + 2)); D.v("v_rcp_f32", V(DT + 3), V(DT + 3))
D.v("v_med3_f32", V(DT + 2), V(DT + 2), V(DT + 4), "-" + V(DT + 4)); D.v("v_med3_f32", V(DT + 3), V(DT + 3), V(DT + 4), "-" + V(DT + 4))
D.dsw("ds_write_b64", "v13", V(DT + 2, 2), 512)
for b in range(7): D.dsr("ds_read_b128", V(BI + 4 * b, 4), V(DT + 10), 512 + 64 * b)
VK1, VK2, SS, GT = 120, 121, 124, 128
D.v("v_mov_b32", V(VK1), f32(K1)); D.v("v_mov_b32", V(VK2), f32(K2))
for r in range(4): D.v("v_mov_b32", V(SS + r), 0)
D.v("v_mov_b32", "v8", MISC); D.v("v_mov_b32", "v9", 1)
def gelu(items):
    for g0 in range(0, len(items), 4):
        grp = items[g0:g0 + 4]
        t = [GT + 4 * ((g0 // 4) & 1) + i for i in range(len(grp))]
        for (x, w, s), r in zip(grp, t): D.v("v_mul_f32", V(r), V(x), V(x))
        for (x, w, s), r in zip(grp, t): D.v("v_fma_f32", V(r), V(r), V(VK2), V(VK1))
        for (x, w, s), r in zip(grp, t): D.v("v_mul_f32", V(r), V(x), V(r))
        for (x, w, s), r in zip(grp, t): D.v("v_exp_f32", V(r), V(r))
        for (x, w, s), r in zip(grp, t): D.v("v_fma_f32", V(r), V(r), V(w), V(w))
        for (x, w, s), r in zip(grp, t): D.v("v_rcp_f32", V(r), V(r))
        for (x, w, s), r in zip(grp, t): D.v("v_fmac_f32", V(s), V(x), V(r))
its = []
for b in range(7):
    for r in range(4):
        for sb in range(4 if b < 6 else 2): its.append((tacc(b, sb) + r, BI + 4 * b + r, SS + sb))
gelu(its)
D.s("s_lshl_b32", "s5", "s14", 9); D.s("s_add_u32", "s9", "s7", "s5"); D.s("s_sub_u32", "s5", "s7", "s5"); D.s("s_add_u32", "s5", "s5", 512)
D.v("v_lshl_add_u32", "v10", "v1", 2, "s9"); D.v("v_lshl_add_u32", "v11", "v1", 2, "s5")
for sb in range(4): D.dsw("ds_write_b32", "v10" if sb < 2 else "v11", V(SS + sb), 256 * (sb & 1))
lds_signal(D, 8, 9, CNT3)
stamp(D, 10)
dump_stamps(D, 10, 11)
D.label("L_end")
D.s("s_endpgm")

lt = ".p2align 6\n.type L_lut,@object\nL_lut:\n"
for c in range(2):
    for l in range(64):
        dm = 800 + 4 * (l & 31)
        g_ = lambda x: dm if x is None else x
        w = [(g_(lut[l][8 * c + 2 * e]) | (g_(lut[l][8 * c + 2 * e + 1]) << 16)) for e in range(4)]
        lt += "  .long " + ", ".join("0x%08x" % x for x in w) + "\n"
for l in range(64): lt += "  .long " + ", ".join("0x%08x" % x for x in fac[l]) + "\n"
lt += ".size L_lut, 3072\nL_lut_end:\n"

ctext = C.text()
cut = ctext.index("L_CN:")
pt, xt = CP.text(), CX.text()
pc_, xc_ = pt.index("L_P2u:"), xt.index("L_P2x:")
dt1 = D1.text(); dc_ = dt1.index("L_D1:")
body = dt1[:dc_] + ctext[:cut] + pt[:pc_] + xt[:xc_] + dt1[dc_:] + ctext[cut:] + SL.text() + AS.text() + pt[pc_:] + xt[xc_:] + D.text()
hdr = open("standalone__deep_cross_xdeepfm__recsys.s.ref").read().split("; @launch")[0]
src = hdr + f"; @launch grid=(256,1,1) block=(512,1,1) lds={LDS_TOTAL}\n"
src += f""".amdgcn_target "amdgcn-amd-amdhsa--gfx950"
.text
.globl {NAME}
.p2align 8
.type {NAME},@function
{NAME}:
""" + body + lt + f""".section .rodata,"a"
.p2align 6
.amdhsa_kernel {NAME}
  .amdhsa_next_free_vgpr 256
  .amdhsa_next_free_sgpr 102
  .amdhsa_accum_offset 256
  .amdhsa_group_segment_fixed_size 0
  .amdhsa_kernarg_size 88
  .amdhsa_user_sgpr_count 2
  .amdhsa_user_sgpr_kernarg_segment_ptr 1
  .amdhsa_system_sgpr_workgroup_id_x 1
.end_amdhsa_kernel
"""
open(sys.argv[1], "w").write(src)
for n_, s_ in (("D1", D1), ("C", C), ("CP", CP), ("CX", CX), ("D", D)): print(n_, s_.stats(), "nops", s_.nops)
print("LDS", LDS_TOTAL)
```

```python
import sys, struct
from asmlib import *
import slotmap as sm

NAME = "standalone__deep_cross_xdeepfm__recsys_kernel"
OPT = dict(stamps=0, ns=2, nstg=6)
for a in sys.argv[2:]:
    k, v = a.split("="); OPT[k] = int(v) if v.lstrip("-").isdigit() else v
STAMPS = OPT["stamps"]

TAB = 0
IDXS = 32768
AIMG = IDXS + 6656 + 512
RS = 784
BS = 27 * RS
NS = OPT["ns"]
W3S = AIMG
RING = W3S + 4 * 11264
assert 2 * BS <= 4 * 11264
SLOT = 7168
RSZ = NS * SLOT
MISC = RING + 4 * RSZ
CNT2, CNT3, MCNT, PCNT, RDY, CLAIM, MCNT2 = 0, 4, 8, 12, 16, 32, 36
M3B = MISC + 64
STG = M3B + 2048 + 64
DSC = STG + 4096
LDS_TOTAL = DSC + 4096
assert LDS_TOTAL <= 163840 and AIMG % 16 == 0
def f32(x): return "0x%08x" % struct.unpack("<I", struct.pack("<f", x))[0]
K1 = -2.0 * 0.7978845608028654 * 1.4426950408889634
K2 = K1 * 0.044715
SC1 = "sc1"
def frag_id(blk, ks): return (blk, ks)

SEL = str(OPT.get("sel", "")).split(",")
def stamp(st, name):
    if name == 0 or name == 10: idx = name
    else:
        if "R" + str(name) in SEL and STAMPS:
            j = 1 + SEL.index("R" + str(name))
            st.raw(f"s_memrealtime s[{64+2*j}:{65+2*j}]", 'misc')
            st.lg.append(Tok('lg', [], True, True))
        if str(name) in SEL: idx = 1 + SEL.index(str(name)); assert idx <= 9
        else: return
    if STAMPS:
        st.raw(f"s_memtime s[{64+2*idx}:{65+2*idx}]", 'misc')
        st.lg.append(Tok('lg', [], True, True))
def dump_stamps(st, vt, va):
    if not STAMPS: return
    if OPT.get("dbgdump"):
        if st is not C: return
        st.raw("s_memrealtime s[84:85]", 'misc')
        st.waitcnt(None, 0)
        st.s("s_cmp_eq_u32", "s2", 100); st.s("s_cbranch_scc0", "L_dd"); st.s("s_cmp_eq_u32", "s3", 0); st.s("s_cbranch_scc0", "L_dd")
        st.s("s_mov_b64", "exec", 1)
        st.v("v_mov_b32", V(va), 0)
        for i in range(1, 11):
            st.s("s_sub_u32", "s5", f"s{64+2*i}", "s100")
            st.v("v_mov_b32", V(vt), "s5")
            st.bstore("buffer_store_dword", V(vt), V(va), S(R_DBG, 4), 0, 12 + 4 * i)
        st.label("L_dd")
        return
    st.raw("s_memrealtime s[98:99]", 'misc')
    st.waitcnt(None, 0)
    st.s("s_mov_b32", "s86", "s100"); st.s("s_mov_b32", "s88", "s98"); n = 13
    st.s("s_lshl_b32", "s5", "s2", 3); st.s("s_add_u32", "s5", "s5", "s3"); st.s("s_lshl_b32", "s5", "s5", 6)
    st.s("s_add_u32", "s5", "s5", 0x100000)
    st.v("v_mov_b32", V(va), "s5")
    for i in range(n):
        st.v("v_mov_b32", V(vt), f"s{64+2*i}")
        st.gstore("global_store_dword", V(va), V(vt), "s[36:37]", off=4 * i)
    st.waitcnt(0, None)
def srd(st, r, base): st.s("s_mov_b64", S(r, 2), S(base, 2))
def srd_const(st, r, size):
    st.s("s_mov_b32", S(r + 2), size); st.s("s_mov_b32", S(r + 3), "0x20000")
def lds_signal(st, vaddr, vone, off):
    st.s("s_mov_b64", "exec", 1)
    st.dsw("ds_add_u32", V(vaddr), V(vone), off)
    st.s("s_mov_b64", "exec", -1)
def lds_wait(st, vaddr, vtmp, off, target, name, sleep=None):
    st.s("s_branch", name + "_in") if sleep is not None else None
    st.label(name)
    if sleep is not None:
        st.s("s_sleep", sleep); st.label(name + "_in")
    st.dsr("ds_read_b32", V(vtmp), V(vaddr), off)
    st.waitcnt(None, 0)
    st.v("v_readfirstlane_b32", "s5", V(vtmp))
    st.s("s_cmp_lt_u32", "s5", target)
    st.s("s_cbranch_scc1", name)
def gaddr_ops(dst, idx, vbase, tmp):
    return [("v_xor_b32", V(dst), V(idx), V(vbase), "")]
def emitv(st, o): st.v(o[0], o[1], *o[2:-1], mods=o[-1])

P = Stream()
stamp(P, 0)
if STAMPS or OPT.get("dl", 0) or OPT.get("dl2", 0): P.raw("s_memrealtime s[100:101]", 'misc')
ka = P.sload("s_load_dwordx16", "s[16:31]", "s[0:1]", 0)
P.v("v_lshrrev_b32", "v2", 6, "v0")
P.v("v_and_b32", "v1", 63, "v0")
P.s("s_cmp_ge_u32", "s2", 256)
P.v("v_readfirstlane_b32", "s3", "v2")
P.s("s_cbranch_scc1", "L_end")
if OPT.get("coldhop", 0):
    P.sload("s_load_dwordx2", "s[36:37]", "s[0:1]", 80)
    P.v("v_mov_b32", "v3", 0x8000000)
    P.waitcnt(None, 0)
    P.gload("global_load_dword", "v3", "v3", "s[36:37]")
    P.waitcnt(0, None)
P.raw("s_getpc_b64 s[94:95]", 'salu')
P.label("L_pc")
P.s("s_lshr_b32", "s15", "s2", 3)
P.s("s_and_b32", "s5", "s2", 7); P.s("s_sub_u32", "s5", "s5", OPT.get("cg0", 2)); P.s("s_cmp_lt_u32", "s5", 1); P.s("s_cselect_b32", "s38", "s15", 99)
R_TAB = 44
P.s("s_cmp_ge_u32", "s3", 4)
P.s("s_cbranch_scc1", "L_D1")
C = P.fork()
D = P
D.label("L_D1")
R_W1 = 40
DACC, WF, XF, BI, GI, DT = 16, 120, 176, 208, 236, 244
D.s("s_sub_u32", "s6", "s3", 4)
D.s("s_and_b32", "s5", "s15", 7); D.s("s_lshl_b32", "s5", "s5", 2); D.s("s_add_u32", "s5", "s5", "s6"); D.s("s_mul_i32", "s5", "s5", 9 * 128)
D.v("v_lshl_add_u32", "v8", "v1", 7, "s5")
D.raw("v_min_u32 v8, L_lut_end-L_pc-4, v8", 'misc')
D.s("s_mov_b64", "exec", "0x1ff")
D.gload("global_load_dword", "v255", "v8", "s[94:95]")
D.s("s_mov_b64", "exec", -1)
if STAMPS: D.sload("s_load_dwordx2", "s[36:37]", "s[0:1]", 80)
srd_const(D, R_W1, 416 * 832 + 4096); srd_const(D, R_TAB, 32000)
D.v("v_bfe_u32", "v33", "v1", 4, 1); D.v("v_xor_b32", "v33", "v33", "v1"); D.v("v_lshlrev_b32", "v33", 4, "v33")
D.s("s_lshl_b32", "s13", "s6", 13)
for n in range(4):
    D.s("s_add_u32", "s5", "s15", n); D.s("s_and_b32", "s5", "s5", 3); D.s("s_lshl_b32", "s5", "s5", 11); D.s("s_add_u32", S(8 + n), "s5", "s13")
D.s("s_add_u32", "s4", "s15", 18); D.s("s_bfe_u32", "s4", "s4", "0x40001"); D.s("s_sub_u32", "s5", "s4", 13); D.s("s_min_u32", "s4", "s4", "s5")
D.s("s_and_b32", "s39", "s15", 1); D.s("s_lshl_b32", "s39", "s39", 4)
D.s("s_mul_i32", "s12", "s4", 32 * 832)
D.s("s_mul_i32", "s7", "s6", RSZ); D.s("s_add_u32", "s7", "s7", RING)
D.s("s_and_b32", "s14", "s6", 1); D.s("s_lshr_b32", "s5", "s6", 1); D.s("s_mul_i32", "s5", "s5", 416); D.s("s_mul_i32", "s13", "s14", 192); D.s("s_add_u32", "s13", "s13", "s5")
D.s("s_lshl_b32", "s5", "s14", 1)
def dma_off(m):
    src = "v1"
    if m: D.v("v_add_u32", "v10", 64 * m, "v1"); src = "v10"
    D.v("v_mul_u32_u24", "v11", 4682, src); D.v("v_lshrrev_b32", "v11", 16, "v11")
    D.v("v_mad_i32_i24", "v12", "v11", -14, src); D.v("v_add_u32", "v12", "s5", "v12")
    D.v("v_subrev_u32", "v13", 14, "v12"); D.v("v_min_u32", "v12", "v12", "v13")
    D.v("v_lshrrev_b32", "v13", 1, "v11"); D.v("v_xor_b32", "v13", "v13", "v11"); D.v("v_and_b32", "v13", 4, "v13")
    D.v("v_mul_u32_u24", "v13", 3, "v13"); D.v("v_bitop3_b32", "v11", "v11", "v13", "s39", mods="bitop3:0x96")
    D.v("v_mul_u32_u24", "v11", 832, "v11"); D.v("v_lshl_add_u32", "v11", "v12", 4, "v11"); D.v("v_add_u32", V(2 + m), "s13", "v11")
    D.v("v_add_u32", V(2 + m), 4096 - 1024 * (m % 4), V(2 + m))
D.v("v_lshl_add_u32", "v10", "s14", 3, "v1"); D.v("v_subrev_u32", "v11", 56, "v10"); D.v("v_min_u32", "v10", "v10", "v11")
D.v("v_min_u32", "v10", 55, "v10"); D.v("v_lshl_add_u32", "v9", "v10", 2, "s13")
for m in range(4): dma_off(m)
HOLD = 1
D.wait(ka)
srd(D, R_TAB, 18)
bt = D.gload("global_load_dword", "v14", "v9", "s[26:27]")
D.s("s_sub_u32", S(R_W1), "s24", 4096); D.s("s_subb_u32", S(R_W1 + 1), "s25", 0)
dmat = {}
def w_m0(t, m, force=False):
    if m % 4 == 0 or force: D.s("s_add_u32", "m0", "s7", (t % NS) * SLOT + 4096 * (m // 4))
def w_piece(t, m): dmat[t] = D.dma(V(2 + m), S(R_W1, 4), "s12", 1024 * (m % 4))
def w_adv(t):
    D.s("s_add_u32", "s12", "s12", 32 * 832)
    D.s("s_cmp_eq_u32", "s12", 416 * 832); D.s("s_cselect_b32", "s12", 0, "s12")
def t_dma(n):
    D.s("s_mov_b32", "m0", S(8 + n))
    D.dma("v33", S(R_TAB, 4), S(8 + n)); return D.dma("v33", S(R_TAB, 4), S(8 + n), 1024)
TE = OPT.get("te", 1)
t_dma(0)
D.s("s_cmp_ge_u32", "s38", 14)
D.s("s_cbranch_scc1", "L_D_nb0")
D.cond = True
for n in range(1, TE): t_dma(n)
D.cond = False
D.s("s_barrier")
D.label("L_D_nb0")
for m in range(4): w_m0(0, m); w_piece(0, m)
for m in range(4, 7): dma_off(m)
if TE > 1:
    D.s("s_cmp_lt_u32", "s38", 14)
    D.s("s_cbranch_scc1", "L_D_nb1")
    D.cond = True
    for n in range(1, TE): t_dma(n)
    D.cond = False
    D.label("L_D_nb1")
for n in range(TE, 4): tabt = t_dma(n)
for m in range(4, 7): w_m0(0, m); w_piece(0, m)
w_adv(0)
stamp(D, 1)
D.s("s_branch", "L_D2")
D1 = D
D = D1.fork()

R_IDX, R_CIN, R_WS, R_OUT, R_DBG, R_WO = 48, 40, 52, 56, 60, 48
C.label("L_C")
k2 = C.sload("s_load_dwordx4", "s[32:35]", "s[0:1]", 64)
C.sload("s_load_dwordx2", "s[36:37]", "s[0:1]", 80)
srd_const(C, R_IDX, 16384 * 104)
C.v("v_lshlrev_b32", "v32", 4, "v1")
C.s("s_and_b32", "s7", "s3", 1)
C.s("s_lshl_b32", "s12", "s2", 2); C.s("s_add_u32", "s12", "s12", "s3"); C.s("s_mul_i32", "s12", "s12", 1664)
C.s("s_mul_i32", "s13", "s3", 1664); C.s("s_add_u32", "s13", "s13", IDXS)
srd_const(C, R_CIN, 105456)
C.s("s_lshl_b32", "s14", "s15", 2); C.s("s_add_u32", "s14", "s14", "s3"); C.s("s_mul_i32", "s14", "s14", 3 * 128); C.s("s_add_u32", "s14", "s14", 70272)
C.v("v_lshlrev_b32", "v7", 7, "v1")
srd_const(C, R_DBG, 256)
C.wait(ka)
srd(C, R_DBG, 34)
srd(C, R_IDX, 16)
C.bload("buffer_load_dwordx4", "v[12:15]", "v32", S(R_IDX, 4), "s12")
idxt = C.bload("buffer_load_dwordx4", "v[16:19]", "v32", S(R_IDX, 4), "s12", 640)
srd(C, R_CIN, 20)
C.s("s_mov_b64", "exec", 7)
C.bload("buffer_load_dword", "v23", "v7", S(R_CIN, 4), "s14")
C.s("s_mov_b64", "exec", -1)
stamp(C, 1)
C.s("s_cmp_ge_u32", "s38", 14)
C.s("s_cbranch_scc1", "L_CN")
CP = C.fork()
CP.label("L_CP")
C.label("L_CN")
GA = 118
def c_setup2(C):
    srd_const(C, R_WS, 2 * BS); srd_const(C, R_OUT, 32768)
    for r, b in ((R_WS, 36), (R_OUT, 32)): srd(C, r, b)
    C.v("v_mov_b32", "v2", MISC)
    for r in range(24, 28): C.v("v_mov_b32", V(r), 0)
    C.dsw("ds_write_b128", "v2", "v[24:27]"); C.dsw("ds_write_b32", "v2", "v24", RDY)
    C.v("v_mov_b32", "v5", 0); C.v("v_mov_b32", "v6", 1)
    if OPT.get("pretouch", 1):
        C.v("v_mov_b32", "v11", 0x10000)
        C.s("s_mov_b64", "exec", 1)
        C.cond = True
        C.gload("global_load_dword", "v248", "v11", "s[36:37]")
        C.gload("global_load_ushort", "v249", "v5", "s[32:33]")
        C.gload("global_load_ushort", "v250", "v5", "s[30:31]")
        C.cond = False
        C.s("s_mov_b64", "exec", -1)
    C.v("v_and_b32", "v8", 15, "v1"); C.v("v_mul_u32_u24", "v7", 104, "v8"); C.v("v_add_u32", "v7", "s13", "v7")
    C.v("v_lshrrev_b32", "v9", 2, "v1"); C.v("v_xor_b32", "v9", "v9", "v1"); C.v("v_and_b32", "v9", 8, "v9")
    C.v("v_and_b32", "v10", 16, "v1"); C.v("v_add_u32", "v4", "v9", "v10")
def c_xform(C):
    C.v("v_add_u32", "v11", "s13", "v32")
    for r in range(12, 20):
        C.v("v_and_b32", "v8" if r & 1 else "v9", 8, V(r))
        C.v("v_lshlrev_b32", V(r), 5, V(r))
        C.v("v_lshl_or_b32", V(r), "v8" if r & 1 else "v9", 1, V(r))
        if r == 15: C.dsw("ds_write_b128", "v11", "v[12:15]")
    C.dsw("ds_write_b128", "v11", "v[16:19]", 640)
def c_addr(C):
    for r in range(13): C.dsr("ds_read_b64", V(GA + 2 * r, 2), "v7", 8 * r)
    for f in range(26):
        for o in gaddr_ops(GA + f, GA + f, 4, 0): emitv(C, o)

c_setup2(C)
C.s("s_mov_b32", "s38", 0)
c_xform(C)
stamp(C, 2)
C.waitcnt(0, 0)
C.s("s_barrier")
stamp(C, 3)
if OPT.get("xprio", 0): C.s("s_setprio", OPT["xprio"])
C.label("L_C_join")
c_addr(C)

PASSES = [(4, 5), (0, 2), (1, 3), (6, 7)]
ACC = 118
SACC = 182
KAP, KAP2, MSK = 195, 196, 197
ZR = 198
STGR = 214
NSTG = OPT.get("nstg2", 5)
RES0 = STGR + 4 * NSTG
def Fr(u, r):
    if u < 4: return 40 + 26 * (u & 1) + 2 * r + (u >> 1)
    return {4: 8, 5: 21, 6: 92, 7: 105}[u] + r
def Rw(f): return Fr(f & 1, f >> 1)
MX, MN = 182, 183
LEAD = 12
def sig1():
    C.s("s_cmp_eq_u32", "s38", 0); C.s("s_cbranch_scc1", "L_C_s1")
    C.s("s_mov_b64", "exec", 1)
    C.raw("s_waitcnt vmcnt(0)", 'wait')
    stamp(C, "pe")
    C.raw(f"ds_add_rtn_u32 v186, v2, v6 offset:{PCNT}", 'misc')
    C.v("v_mov_b32", "v187", "s90")
    C.s("s_mov_b32", "s38", 0)
    C.raw("s_waitcnt lgkmcnt(0)", 'wait')
    C.v("v_readfirstlane_b32", "s5", "v186")
    C.s("s_cmp_lg_u32", "s5", 3); C.s("s_cbranch_scc1", "L_C_s1b")
    C.raw(f"buffer_atomic_or v187, v5, s[{R_DBG}:{R_DBG+3}], 0 offen sc0 sc1", 'misc')
    C.s("s_mov_b32", "s38", 2)
    C.label("L_C_s1b")
    C.s("s_mov_b64", "exec", -1)
    C.label("L_C_s1")
def sig2():
    C.s("s_cmp_eq_u32", "s38", 0); C.s("s_cbranch_scc1", "L_C_s2")
    C.raw("s_waitcnt vmcnt(0)", 'wait')
    C.v("v_readfirstlane_b32", "s5", "v187")
    C.s("s_or_b32", "s5", "s5", "s90"); C.s("s_cmp_lg_u32", "s5", "0x3fff"); C.s("s_cbranch_scc1", "L_C_s2")
    C.s("s_mov_b64", "exec", 1)
    C.raw(f"buffer_store_dword v6, v5, s[{R_DBG}:{R_DBG+3}], 0 offen offset:128 sc1", 'misc')
    C.s("s_mov_b64", "exec", -1)
    stamp(C, "pf")
    C.label("L_C_s2")
for f in range(LEAD): C.dsr("ds_read_b64", V(Rw(f), 2), V(GA + f), TAB)
for f in range(26):
    if f == OPT.get("sig1", 8): sig1()
    if f + LEAD < 26: C.dsr("ds_read_b64", V(Rw(f + LEAD), 2), V(GA + f + LEAD), TAB)
    C.v("v_pk_maximum3_f16", V(MX), V(Rw(f)), V(Rw(f) + 1), V(MX) if f else V(Rw(f)))
    C.v("v_pk_minimum3_f16", V(MN), V(Rw(f)), V(Rw(f) + 1), V(MN) if f else V(Rw(f)))
stamp(C, "mx")
C.v("v_and_b32", V(MX), "0x7fff7fff", V(MX)); C.v("v_and_b32", V(MN), "0x7fff7fff", V(MN))
C.v("v_pk_max_u16", V(MX), V(MX), V(MN))
C.v("v_lshrrev_b32", V(MN), 16, V(MX)); C.v("v_and_b32", V(MX), "0xffff", V(MX)); C.v("v_max_u32", V(MX), V(MX), V(MN))
C.v("v_mov_b32", V(MN), V(MX))
C.v("v_mov_b32", V(MSK), "0xfff8fff8")
C.s("s_mov_b32", "s12", "0x05040100")
C.v("v_permlane32_swap_b32", V(MX), V(MN))
C.v("v_max_u32", V(MX), V(MX), V(MN))
C.v("v_lshrrev_b32", V(MX), 7, V(MX)); C.v("v_max_u32", V(MX), 127, V(MX)); C.v("v_min_u32", V(MX), 254, V(MX))
SCL = 4
C.v("v_sub_u32", V(MN), 260, V(MX)); C.v("v_lshlrev_b32", V(SCL), 23, V(MN))
C.v("v_lshlrev_b32", V(MX), 2, V(MX)); C.v("v_subrev_u32", "v3", 4 * 133 + 282, V(MX))
C.v("v_cvt_pkrtz_f16_f32", V(KAP), V(SCL), V(SCL))
C.v("v_pk_mul_f16", V(KAP2), V(KAP), V(KAP)); C.v("v_and_b32", V(KAP2), "0xffff", V(KAP2))
def conv_ops(kk, T0, nt):
    L = []
    for r in range(13):
        a, b = Fr(2 * kk, r), Fr(2 * kk + 1, r)
        t = T0 + 4 * (r % nt)
        lo, hi = a, b; rp = (r - 1) % 13
        L += [("v_lshlrev_b32", V(t), 16, V(a), ""), ("v_lshlrev_b32", V(t + 1), 16, V(b), ""),
              ("v_mul_f32", V(t + 2), V(SCL), V(a), ""), ("v_mul_f32", V(t + 3), V(SCL), V(b), ""),
              ("v_mul_f32", V(t), V(SCL), V(t), ""), ("v_mul_f32", V(t + 1), V(SCL), V(t + 1), ""),
              ("v_cvt_pkrtz_f16_f32", V(hi), V(t + 2), V(t + 3), ""), ("v_cvt_pkrtz_f16_f32", V(lo), V(t), V(t + 1), ""),
              ("v_and_b32", V(hi), V(MSK), V(hi), ""),
              ("v_cvt_pkrtz_f16_f32", V(Fr(4 + 2 * kk, rp)), V(t + 1), V(t), ""),
              ("v_alignbit_b32", V(Fr(5 + 2 * kk, rp)), V(hi), V(hi), 16, "")]
        if r >= 2:
            for k in range(2): L.append(("v_permlane32_swap_b32", V(Fr(2 * kk + k, r - 2)), V(Fr(4 + 2 * kk + k, r - 2)), ""))
    for r in (12, 11):
        for k in range(2): L.append(("v_permlane32_swap_b32", V(Fr(2 * kk + k, r)), V(Fr(4 + 2 * kk + k, r)), ""))
    return L
FLG = 194
ops = conv_ops(0, 198, 3) + conv_ops(1, 246, 2)
C.v("v_lshlrev_b32", V(193), 4, "v1")
def a_load(tag):
    C.raw("s_call_b64 s[92:93], L_aload", 'salu')
AS = Stream()
AS.label("L_aload")
AS.s("s_lshr_b32", "s8", "s2", 3); AS.s("s_and_b32", "s9", "s8", 3)
AS.s("s_mul_i32", "s13", "s3", 11264)
AS.s("s_cmp_eq_u32", "s9", 3); AS.s("s_cselect_b32", "s9", 0, "s9"); AS.s("s_lshl_b32", "s9", "s9", 12)
for n in range(3):
    AS.s("s_add_u32", "s11", "s13", "s9")
    AS.s("s_add_u32", "m0", "s11", AIMG)
    AS.s("s_cmp_eq_u32", "s9", 8192)
    for e in range(3):
        AS.raw(f"buffer_load_dwordx4 v193, s[{R_WS}:{R_WS+3}], s11 offen offset:{1024*e} sc1 lds", 'misc')
    AS.s("s_cbranch_scc1", f"L_al{n}")
    AS.raw(f"buffer_load_dwordx4 v193, s[{R_WS}:{R_WS+3}], s11 offen offset:3072 sc1 lds", 'misc')
    AS.label(f"L_al{n}")
    if n < 2: AS.s("s_cselect_b32", "s9", -4096, "s9"); AS.s("s_add_u32", "s9", "s9", 4096)
AS.s("s_mov_b32", "s39", 0)
AS.raw("s_setpc_b64 s[92:93]", 'salu')
NDEF = OPT.get("ndef", 0)
ops1 = ops[len(ops) - NDEF:]; ops = ops[:len(ops) - NDEF]
POLL = f"buffer_load_dword v{FLG}, v5, s[{R_DBG}:{R_DBG+3}], 0 offen offset:128 sc1"
C.s("s_mov_b32", "s39", 1)
CHECKS = [int(x) for x in str(OPT.get("chk", "0")).split("_") if 0 < int(x) < len(ops)]
for i, o in enumerate(ops):
    if i == OPT.get("sig2c", 10): sig2()
    if i in CHECKS:
        t = str(CHECKS.index(i) + 1)
        C.s("s_cmp_eq_u32", "s39", 0); C.s("s_cbranch_scc1", "L_C_nc" + t)
        C.raw("s_waitcnt vmcnt(0)", 'wait')
        C.v("v_readfirstlane_b32", "s5", V(FLG))
        C.s("s_cmp_eq_u32", "s5", 0); C.s("s_cbranch_scc1", "L_C_nc" + t)
        C.raw(f"ds_write_b32 v2, v6 offset:{RDY}", 'misc')
        a_load(t)
        C.label("L_C_nc" + t)
    nx = [c for c in CHECKS + [len(ops) + 30] if i == c - 70]
    if nx:
        C.s("s_cmp_eq_u32", "s39", 0); C.s("s_cbranch_scc1", "L_C_np%d" % i)
        C.raw(POLL, 'misc')
        C.label("L_C_np%d" % i)
    emitv(C, o)
stamp(C, 6)
C.v("v_and_b32", V(192), 31, "v1"); C.v("v_lshrrev_b32", V(191), 5, "v1")
C.v("v_cmp_eq_u32", "vcc", 28, V(192)); C.v("v_cmp_gt_u32", "s[14:15]", 25, V(192)); C.v("v_mov_b32", V(190), 26)
C.v("v_cndmask_b32", V(190), V(190), 25, "vcc") if False else None
C.v("v_subb_co_u32", V(190), "s[10:11]", V(190), 0, "vcc") if False else None
C.v("v_mov_b32", V(189), 25); C.v("v_cndmask_b32", V(190), V(190), V(189), "vcc"); C.v("v_cndmask_b32", V(192), V(190), V(192), "s[14:15]")
C.v("v_mul_u32_u24", V(192), RS, V(192)); C.v("v_mul_u32_u24", V(191), 384, V(191)); C.v("v_add3_u32", "v7", V(192), V(191), "v5")
C.v("v_add_u32", "v7", AIMG, "v7")
C.s("s_setprio", 0)
C.s("s_cmp_eq_u32", "s39", 0); C.s("s_cbranch_scc1", "L_C_have")
C.s("s_mov_b32", "s14", 1 << 17)
C.label("L_C_poll")
C.raw("s_waitcnt vmcnt(0)", 'wait')
C.v("v_readfirstlane_b32", "s5", V(FLG))
C.s("s_cmp_lg_u32", "s5", 0)
C.s("s_cbranch_scc1", "L_C_got")
C.s("s_cmp_lg_u32", "s3", 0); C.s("s_cbranch_scc1", "L_C_w0")
C.s("s_sub_u32", "s14", "s14", 1); C.s("s_cmp_eq_u32", "s14", 0); C.s("s_cbranch_scc1", "L_C_got")
C.s("s_sleep", 2)
C.raw(POLL, 'misc')
C.s("s_branch", "L_C_poll")
C.label("L_C_got")
C.dsw("ds_write_b32", "v2", "v6", RDY)
C.s("s_branch", "L_C_ready")
C.label("L_C_w0s")
C.s("s_sleep", 2)
C.label("L_C_w0")
C.dsr("ds_read_b32", V(190), "v2", RDY); C.waitcnt(None, 0)
C.v("v_readfirstlane_b32", "s5", V(190)); C.s("s_cmp_eq_u32", "s5", 0); C.s("s_cbranch_scc1", "L_C_w0s")
C.label("L_C_ready")
stamp(C, 7)
C.s("s_setprio", 3)
a_load("f")
C.label("L_C_have")
for k in range(13): C.v("v_mov_b32", V(SACC + k), 0)

order = list(range(22, 24)) + list(range(22))
order_last = [22, 0] + list(range(1, 22)) + [23]
steps = [(n, ks) for n in range(4) for ks in (order if n < 3 else order_last)]
def zops(si):
    n, ks = steps[si]; L = []
    for h in range(2):
        u = PASSES[n][h]; q = ZR + 8 * (si % 2) + 4 * h
        for j in range(4):
            ins = sm.dwords[4 * ks + j]; d = V(q + j)
            if ins[0] == 'A': L.append(("v_pk_mul_f16", d, V(Fr(u, ins[1])), V(Fr(u, ins[2])), "op_sel:[0,0] op_sel_hi:[0,1]"))
            elif ins[0] == 'D': L.append(("v_pk_mul_f16", d, V(Fr(u, ins[1])), V(Fr(u, ins[1])), "op_sel:[0,0] op_sel_hi:[0,1]"))
            elif ins[0] == 'E':
                L.append(("v_perm_b32", d, V(Fr(u, ins[2])), V(Fr(u, ins[1])), "s12", ""))
                L.append(("v_pk_mul_f16", d, d, d, ""))
            elif ins[0] == 'L': L.append(("v_pk_mul_f16", d, V(Fr(u, ins[1])), V(KAP), ""))
            else: L.append(("v_mov_b32", d, V(KAP2), ""))
    return L
for o in zops(0): emitv(C, o)
C.raw("s_waitcnt vmcnt(0)", 'wait')
lds_signal(C, 2, 6, CNT2)
lds_wait(C, 2, 255, CNT2, 4, "L_C_w2", sleep=1)
C.label("L_C_go")
C.s("s_setprio", 1)
stamp(C, 8)
uses = []
for si, (n, ks) in enumerate(steps):
    if ks < 22: uses.append((si, 0))
    uses.append((si, 1))
resident = {}
free_quads = list(range(RES0, 246 - 3 if ops1 else 253, 4))
had1 = bool(ops1)
LOOK = NSTG - 2
stg_next = [0]; use_reg = {}
def plan_read(i):
    si, blk = uses[i]; n, ks = steps[si]; fid = (blk, ks)
    if fid in resident: use_reg[(si, blk)] = resident[fid]; return
    if free_quads and n < 3:
        reg = free_quads.pop(0); resident[fid] = reg
    else:
        reg = STGR + 4 * stg_next[0]; stg_next[0] = (stg_next[0] + 1) % NSTG
    use_reg[(si, blk)] = reg
    C.dsr("ds_read_b128", V(reg, 4), "v7", blk * BS + ks * 16)
nread = [0]
def read_upto(i):
    while nread[0] <= i and nread[0] < len(uses): plan_read(nread[0]); nread[0] += 1
read_upto(LOOK)
accs = [{(0, 0): ACC, (1, 0): ACC + 16, (0, 1): ACC + 32, (1, 1): ACC + 48}]
spare = [8, 24]
for n in range(1, 4):
    p = accs[-1]
    accs.append({(1, 0): spare[0], (1, 1): spare[1], (0, 0): p[(0, 0)], (0, 1): p[(1, 0)]})
    spare = [p[(0, 1)], p[(1, 1)]]
EXR, EXU = 66, 79
T1, RP = 92 - 2, 0
first_of = set(); extra = []; tail_pre = []
mi = 0; ui = 0
for si, (n, ks) in enumerate(steps):
    seq = [(0, 0), (1, 0), (1, 1), (0, 1)] if ks < 22 else [(1, 0), (1, 1)]
    if ks == order[-1]: seq = [(0, 0), (1, 0), (0, 1), (1, 1)] if n < 3 else [(0, 0), (0, 1), (1, 0), (1, 1)]
    if n == 3 and ks == 0: seq = [(1, 0), (1, 1), (0, 1), (0, 0)]
    if si == len(order) - 1: assert not ops1, len(ops1)
    pend = zops(si + 1) if si + 1 < len(steps) else []
    if ks == order[0]:
        pm = 0
        if n > 0:
            p = accs[n - 1]
            epa = [("v_fmac_f32", V(SACC + k), V(p[(0, 0)] + k), V(p[(1, 0)] + k), "") for k in range(13)]
            epb = [("v_fmac_f32", V(SACC + k), V(p[(0, 1)] + k), V(p[(1, 1)] + k), "") for k in range(13)]
            if n == 1 and had1: free_quads += [246, 250]
            if n == 2: free_quads += list(range(40, 63, 4))
            if n == 3:
                sp = spare
                T1, RP = sp[0], sp[0] + 2
                tail_pre = [("v", "v_lshrrev_b32", V(MSK), 5, "v1", ""), ("v", "v_mul_u32_u24", V(SCL), RS, V(MSK), ""), ("v", "v_lshlrev_b32", V(MSK), 2, V(SCL), ""),
                            ("v", "v_add_u32", V(MSK), AIMG + 768, V(MSK), ""), ("v", "v_add_u32", V(SCL), AIMG + 768, V(SCL), "")]
                for k in range(13):
                    row = 8 * (k // 4) + k % 4; ar = V(SCL) if k == 12 else V(MSK)
                    tail_pre += [("r", "ds_read_b32", V(EXR + k), ar, row * RS), ("r", "ds_read_b32", V(EXU + k), ar, BS + row * RS)]
                tail_pre += [("g",)]
                tail_pre += [("v", "v_add3_u32", V(EXR + k), V(EXR + k), V(EXU + k), "v3", "") for k in range(13)]
                tail_pre += [("v", "v_and_b32", "v5", 15, "v1", ""),
                  ("s", "s_lshl_b32", "s5", "s3", 8), ("s", "s_add_u32", "s5", "s5", RING), ("v", "v_lshl_add_u32", V(T1), "v1", 2, "s5", ""),
                  ("v", "v_lshlrev_b32", "v5", 1, "v5", ""),
                  ("s", "s_lshl_b32", "s13", "s2", 2), ("s", "s_add_u32", "s13", "s13", "s3"), ("s", "s_lshl_b32", "s13", "s13", 5),
                  ("v", "v_lshlrev_b32", "v6", 16, "v6", "")]
                tail_pre += [("v", "v_ldexp_f32", V(SACC + k), V(SACC + k), V(EXR + k), "") for k in range(13)]
                for k in range(4, 13): tail_pre += [("v", "v_add_f32", V(SACC + k % 4), V(SACC + k % 4), V(SACC + k), "")]
                tail_pre += [("v", "v_fmac_f32", V(SACC + 1), 0.25 if False else V(SACC + 4), "v6", "")]
                tail_pre.insert(len(tail_pre) - 1, ("v", "v_mov_b32", V(SACC + 4), "0x3e800000", ""))
        else: epa, epb = [], []
    nblk = 2 if ks < 22 else 1
    for e, (blk, h) in enumerate(seq):
        if e == 0 or (e == 2 and nblk == 2): ui += 1; read_upto(ui - 1 + LOOK + (1 if False else 0))
        acc = accs[n][(blk, h)]
        first = (n, blk, h) not in first_of; first_of.add((n, blk, h))
        if first and blk == 0: assert not epa
        C.mfma("v_mfma_f32_32x32x16_f16", V(acc, 16), V(use_reg[(si, blk)], 4), V(ZR + 8 * (si % 2) + 4 * h, 4), 0 if first else V(acc, 16))
        pm += 1
        left = len(seq) - e
        cnt = len(pend) if left <= 1 else min(len(pend), -(-len(pend) // left) + (1 if left == 2 and len(seq) == 4 else 0))
        for o in pend[:cnt]: emitv(C, o)
        pend = pend[cnt:]
        if epa:
            for _ in range(4):
                if epa: emitv(C, epa.pop(0))
        elif epb and pm >= 4:
            for _ in range(2):
                if epb: emitv(C, epb.pop(0))
        elif ops1 and cnt <= 3:
            for _ in range(5 - cnt if cnt < 3 else 1):
                if ops1: emitv(C, ops1.pop(0))
        elif tail_pre and not epb and cnt <= 2:
            for _ in range(2):
                if not tail_pre: break
                o = tail_pre.pop(0)
                if o[0] == "v": emitv(C, o[1:])
                elif o[0] == "r": C.dsr(*o[1:])
                elif o[0] == "s": C.s(*o[1:])
                else: C.gload("global_load_ushort", "v6", "v5", "s[30:31]")
        if si == len(steps) - 4 and e == 0:
            assert not tail_pre, len(tail_pre)
            C.dsr("ds_read_b32", V(SACC + 5), "v2", CNT3)
            for j in range(4): C.dsr("ds_read_b32", V(RP + j), V(T1), j * RSZ)
        if si == len(steps) - 3 and e == 1:
            C.v("v_readfirstlane_b32", "s10", V(SACC + 5))
        if (si == len(steps) - 2 and e == 3) or (si == len(steps) - 1 and e == 0):
            hh = 0 if e == 3 else 1
            for k in range(13): C.v("v_ldexp_f32", V(accs[3][(0, hh)] + k), V(accs[3][(0, hh)] + k), V(EXR + k))
stamp(C, 9)
p = accs[3]
C.s("s_cmp_lt_u32", "s10", 4)
C.s("s_cbranch_scc1", "L_C_slow")
SL = Stream()
SL.label("L_C_slow")
SL.s("s_setprio", 0)
lds_wait(SL, 2, KAP, CNT3, 4, "L_C_w3", sleep=1)
for j in range(4): SL.dsr("ds_read_b32", V(RP + j), V(T1), j * RSZ)
SL.waitcnt(None, 0)
SL.s("s_branch", "L_C_fin")
C.label("L_C_fin")
for j in range(4): C.v("v_add_f32", V(SACC + j), V(SACC + j), V(RP + j))
for h in range(2):
    for k in range(13): C.v("v_fmac_f32", V(SACC + k % 4), V(p[(0, h)] + k), V(p[(1, h)] + k))
C.v("v_add_f32", V(SACC), V(SACC), V(SACC + 1)); C.v("v_add_f32", V(SACC + 2), V(SACC + 2), V(SACC + 3)); C.v("v_add_f32", V(SACC), V(SACC), V(SACC + 2))
C.v("v_mov_b32", V(SACC + 1), V(SACC)); C.v("v_permlane32_swap_b32", V(SACC), V(SACC + 1)); C.v("v_add_f32", V(SACC), V(SACC), V(SACC + 1))
C.v("v_mov_b32", V(SACC + 1), V(SACC)); C.v("v_permlane16_swap_b32", V(SACC), V(SACC + 1))
C.v("v_add_f32", V(SACC), V(SACC), V(SACC + 1))
C.v("v_cvt_pk_bf16_f32", V(SACC), V(SACC), V(SACC))
if OPT.get("dl", 0):
    C.label("L_dl")
    C.raw("s_memrealtime s[66:67]", 'misc'); C.raw("s_waitcnt lgkmcnt(0)", 'wait')
    C.s("s_sub_u32", "s5", "s66", "s100"); C.s("s_cmp_lt_u32", "s5", OPT["dl"]); C.s("s_cbranch_scc1", "L_dl")
if OPT.get("dmask", 0):
    C.s("s_and_b32", "s5", "s2", 7); C.s("s_lshr_b32", "s5", OPT["dmask"], "s5"); C.s("s_and_b32", "s5", "s5", 1)
    C.s("s_cmp_eq_u32", "s5", 0); C.s("s_cbranch_scc1", "L_nodelay")
    C.raw("s_memrealtime s[64:65]", 'misc'); C.raw("s_waitcnt lgkmcnt(0)", 'wait')
    C.label("L_delay")
    C.s("s_sleep", 2)
    C.raw("s_memrealtime s[66:67]", 'misc'); C.raw("s_waitcnt lgkmcnt(0)", 'wait')
    C.s("s_sub_u32", "s5", "s66", "s64"); C.s("s_cmp_lt_u32", "s5", OPT["dus"]); C.s("s_cbranch_scc1", "L_delay")
    C.label("L_nodelay")
C.s("s_mov_b64", "exec", "0xffff")
C.bstore("buffer_store_short", V(SACC), "v5", S(R_OUT, 4), "s13")
if STAMPS:
    C.s("s_mov_b64", "exec", -1)
    stamp(C, 10)
    dump_stamps(C, 250, 251)
C.s("s_endpgm")

WOF, BF, MD, MA, NF, LUT, IDN, MF, TD, TF, SD, FAC, LA = 44, 48, 92, 236, 140, 148, 164, 172, 180, 196, 204, 156, 220
lut = [[None] * 16 for _ in range(64)]
for l in range(64):
    j, hfc = l & 31, l >> 5
    for k in range(14):
        q = 8 * (k // 4) + 4 * hfc + k % 4
        if q < 26 and j <= 26 and q <= j:
            hf, di, half = sm.target[(q, j)]
            lut[l][k] = hf * 384 + di * 4 + half * 2
hf, di, half = sm.target[(26, 26)]
lut[0][14] = hf * 384 + di * 4 + half * 2
def emask(k): return sum(1 << l for l in range(64) if lut[l][k] is not None)
fac = [[0x3c003c00] * 4 for _ in range(64)]
for a_ in range(26):
    hf, di, half = sm.target[(a_, a_)]
    l = hf * 24 + di // 4
    fac[l][di % 4] = (fac[l][di % 4] & ~(0xffff << (16 * half))) | (0x3800 << (16 * half))
def producer(Q, typ):
    tag = "u" if typ == 1 else "x"
    Q.label("L_P1" + tag)
    Q.s("s_setprio", 3)
    BB = "pb" if typ == 1 else OPT.get("bbx", "pa")
    if typ == 1: Q.s("s_lshl_b32", "s39", "s15", 2)
    else: Q.s("s_sub_u32", "s39", "s15", 7); Q.s("s_lshl_b32", "s39", "s39", 2)
    Q.s("s_add_u32", "s39", "s39", "s3")
    Q.s("s_mul_i32", "s93", "s39", 52 if typ == 1 else 1352)
    if typ == 1: Q.s("s_add_u32", "s93", "s93", 35152)
    Q.v("v_and_b32", "v29", 31, "v1"); Q.v("v_lshrrev_b32", "v30", 5, "v1")
    Q.v("v_mul_u32_u24", "v31", 1352 if typ == 1 else 52, "v29"); Q.v("v_lshl_add_u32", "v31", "v30", 4, "v31")
    Q.bload("buffer_load_dwordx4", V(NF, 4), "v31", S(R_CIN, 4), "s93")
    Q.bload("buffer_load_dwordx4", V(NF + 4, 4), "v31", S(R_CIN, 4), "s93", 32)
    Q.raw("s_add_u32 s94, s94, L_lut-L_pc", 'salu'); Q.raw("s_addc_u32 s95, s95, 0", 'salu')
    for c in range(3): Q.gload("global_load_dwordx4", V(LUT + 4 * c, 4), "v32", "s[94:95]", c * 1024)
    if typ == 1:
        Q.s("s_mov_b32", S(R_WO + 2), 156); srd(Q, R_WO, 22)
        Q.v("v_and_b32", "v35", 48, "v1"); Q.v("v_lshlrev_b32", "v34", 1, "v29")
        Q.bload("buffer_load_dwordx4", V(WOF, 4), "v35", S(R_WO, 4), 0, 104)
        Q.bload("buffer_load_ushort", "v34", "v34", S(R_WO, 4), 0, 52)
        Q.s("s_lshl_b32", "s5", "s39", 1); Q.v("v_mov_b32", "v35", 0)
        Q.bload("buffer_load_ushort", "v35", "v35", S(R_WO, 4), "s5")
    def w3_dma(ms, issue=True):
        tk = None
        for m in ms:
            src = "v1"
            if m: Q.v("v_add_u32", "v22", 64 * m, "v1"); src = "v22"
            Q.v("v_mul_u32_u24", "v20", 2979, src); Q.s("s_add_u32", "m0", "s90", 1024 * m); Q.v("v_lshrrev_b32", "v20", 16, "v20")
            Q.v("v_mul_u32_u24", "v20", 1000, "v20"); Q.v("v_lshl_add_u32", V(112 + m), src, 4, "v20")
            if issue: tk = Q.dma(V(112 + m), S(R_CIN, 4), "s91")
        return tk
    if typ == 1:
        Q.s("s_mul_i32", "s90", "s3", 11264); Q.s("s_add_u32", "s90", "s90", W3S)
        Q.s("s_mul_i32", "s91", "s3", 352); Q.s("s_add_u32", "s91", "s91", 70304)
        w3_dma(range(OPT.get("w3a", 4)))
    if BB == "pa": Q.s("s_barrier")
    Q.s("s_branch", "L_P2" + tag)
    Q.label("L_P2" + tag)
    stamp(Q, 2)
    c_setup2(Q)
    Q.s("s_lshl_b32", "s5", "s3", 10); Q.s("s_add_u32", "s92", "s5", STG)
    Q.v("v_add_u32", "v41", "s92", "v32")
    Q.dsw("ds_write_b128", "v41", "v[24:27]")
    if typ == 1:
        Q.v("v_add_u32", "v42", "s90", "v32"); Q.dsw("ds_write_b128", "v42", "v[24:27]", 9216); Q.dsw("ds_write_b128", "v42", "v[24:27]", 10240)
        Q.s("s_mov_b64", "exec", "0xffffff")
        Q.v("v_add_u32", "v42", M3B + 26 * 64, "v32"); Q.dsw("ds_write_b128", "v42", "v[24:27]")
        Q.s("s_mov_b64", "exec", -1)
        Q.v("v_lshlrev_b32", "v43", 6, "v29"); Q.v("v_add_u32", "v43", M3B, "v43"); Q.dsw("ds_write_b64", "v43", "v[24:25]", 56)
    Q.v("v_and_b32", "v36", 1, "v29"); Q.v("v_lshlrev_b32", "v36", 4, "v36")
    Q.v("v_mov_b32", "v37", "0x3f80"); Q.v("v_lshlrev_b32", "v37", "v36", "v37")
    Q.v("v_cmp_gt_u32", "vcc", 26, "v29"); Q.v("v_lshrrev_b32", "v38", 1, "v29")
    Q.v("v_lshlrev_b32", "v39", 2, "v30"); Q.v("v_cndmask_b32", "v37", 0, "v37", "vcc")
    Q.v("v_sub_u32", "v39", "v38", "v39")
    Q.v("v_lshlrev_b32", "v40", 1, "v30"); Q.v("v_sub_u32", "v40", "v38", "v40")
    def ident(dst, vsel, key):
        for s_ in range(2):
            for m in range(0, 4, 2):
                Q.v("v_cmp_eq_u32", "vcc", key(s_, m), vsel); Q.v("v_cmp_eq_u32", "s[96:97]", key(s_, m + 1), vsel)
                Q.v("v_cndmask_b32", V(dst + 4 * s_ + m), 0, "v37", "vcc"); Q.v("v_cndmask_b32", V(dst + 4 * s_ + m + 1), 0, "v37", "s[96:97]")
    ident(IDN, "v39", lambda s_, m: 8 * s_ + m)
    if typ == 2: ident(MF, "v40", lambda s_, m: 8 * s_ + 4 * (m >> 1) + (m & 1))
    Q.s("s_mul_i32", "s93", "s39", RS)
    if typ == 1: Q.s("s_add_u32", "s93", "s93", BS)
    Q.v("v_mov_b32", "v36", "s92")
    if typ == 1:
        Q.v("v_lshrrev_b32", "v38", 4, "v1"); Q.v("v_bfe_u32", "v39", "v1", 2, 2); Q.v("v_lshl_add_u32", "v38", "v38", 3, "v39"); Q.v("v_mul_u32_u24", "v38", 352, "v38")
        Q.v("v_and_b32", "v40", 3, "v1"); Q.v("v_lshl_add_u32", "v38", "v40", 3, "v38"); Q.v("v_add_u32", "v28", "s90", "v38")
        Q.v("v_lshl_add_u32", "v39", "v30", 2, "v39"); Q.v("v_lshlrev_b32", "v39", 6, "v39"); Q.v("v_lshl_add_u32", "v39", "v40", 3, "v39")
        Q.v("v_and_b32", "v40", 16, "v1"); Q.v("v_lshl_add_u32", "v39", "v40", 1, "v39"); Q.v("v_add_u32", "v42", M3B, "v39")
        Q.s("s_mul_i32", "s5", "s3", 176); Q.v("v_add_u32", "v38", "s5", "v1")
        Q.v("v_mov_b32", "v43", M3B)
        for i in range(3):
            if i: Q.v("v_add_u32", "v38", 64, "v38")
            Q.v("v_mul_u32_u24", "v39", 2521, "v38"); Q.v("v_lshrrev_b32", "v39", 16, "v39")
            Q.v("v_mad_u32_u24", "v39", "v39", 12, "v43"); Q.v("v_lshl_add_u32", V(MA + i), "v38", 1, "v39")
        Q.v("v_cmp_gt_u32", "vcc", 676, "v38")
        Q.s("s_and_b32", "s15", "vcc_hi", "0xffff"); Q.s("s_mov_b32", "s14", "vcc_lo")
        Q.v("v_lshl_add_u32", "v43", "v29", 6, "v43")
    stamp(Q, "pa")
    if typ == 1: w3t = w3_dma(range(OPT.get("w3a", 4), 9))
    Q.mfma("v_mfma_f32_32x32x16_bf16", V(TD, 16), V(NF, 4), V(IDN, 4), 0)
    Q.mfma("v_mfma_f32_32x32x16_bf16", V(TD, 16), V(NF + 4, 4), V(IDN + 4, 4), V(TD, 16))
    for k in range(15):
        Q.v("v_add_u32_sdwa", V(LA + k), "v36", V(LUT + k // 2), mods=f"dst_sel:DWORD dst_unused:UNUSED_PAD src0_sel:DWORD src1_sel:WORD_{k&1}")
    for m in range(8): Q.v("v_cvt_pk_bf16_f32", V(TF + m), V(TD + 2 * m), V(TD + 2 * m + 1))
    c_xform(Q)
    if typ == 1:
        Q.s("s_mov_b64", "exec", "0x3ffffff")
        Q.dsw("ds_write_b32", "v43", "v34", 52)
        Q.s("s_mov_b64", "exec", -1)
        Q.v("v_lshlrev_b32", "v35", 16, "v35")
        for q in range(4):
            Q.s("s_mov_b32", "s10", "0x%x" % (0x000f000f << (4 * q))); Q.s("s_mov_b32", "s11", "s10")
            for e in range(4): Q.v("v_cndmask_b32", V(MD + 16 + 4 * q + e), 0, V(WOF + e), "s[10:11]")
        Q.wait(w3t)
        stamp(Q, "pw")
        for T in range(11):
            for h in range(2): Q.dsr("ds_read_b64_tr_b16", V(BF + 4 * T + 2 * h, 2), "v28", 32 * T + 4 * 352 * h)
        for T in range(11):
            i = T // 4
            Q.mfma("v_mfma_f32_16x16x32_bf16", V(MD + 4 * i, 4), V(MD + 16 + 4 * (T % 4), 4), V(BF + 4 * T, 4), 0 if T % 4 == 0 else V(MD + 4 * i, 4))
        for i in range(3):
            Q.v("v_cvt_pk_bf16_f32", V(MD + 4 * i), V(MD + 4 * i), V(MD + 4 * i))
            if i == 2: Q.s("s_mov_b64", "exec", "s[14:15]")
            Q.dsw("ds_write_b16", V(MA + i), V(MD + 4 * i))
        Q.s("s_mov_b64", "exec", -1)
        stamp(Q, "pb")
        Q.waitcnt(None, 0)
        Q.s("s_barrier")
        for s_ in range(2):
            for jj in range(2): Q.dsr("ds_read_b64_tr_b16", V(MF + 4 * s_ + 2 * jj, 2), "v42", (16 * s_ + 8 * jj) * 64)
    aops = []
    for n_, mm in enumerate(((TF, MF, 0), (TF + 4, MF + 4, V(SD, 16)), (MF, TF, V(SD, 16)), (MF + 4, TF + 4, V(SD, 16)))):
        Q.mfma("v_mfma_f32_32x32x16_bf16", V(SD, 16), V(mm[0], 4), V(mm[1], 4), mm[2])
        c_ = 0 if n_ < 3 else 10
        for o in aops[:c_]: emitv(Q, o)
        aops = aops[c_:]
    ne = 15 if typ == 1 else 14
    if typ == 1: Q.v("v_mov_b32", V(SD + 14), "v35")
    Q.v("v_max3_f32", "v44", f"|{V(SD)}|", f"|{V(SD+1)}|", f"|{V(SD+ne-1)}|")
    Q.v("v_max3_f32", "v45", f"|{V(SD+2)}|", f"|{V(SD+3)}|", f"|{V(SD+4)}|")
    for k in range(5, 13, 4):
        Q.v("v_max3_f32", "v44", f"|{V(SD+k)}|", f"|{V(SD+k+1)}|", "v44"); Q.v("v_max3_f32", "v45", f"|{V(SD+k+2)}|", f"|{V(SD+k+3)}|", "v45")
    Q.v("v_max3_f32", "v44", f"|{V(SD+13)}|", "v45", "v44")
    for sh in (8, 4, 2, 1):
        for o in aops[:2]: emitv(Q, o)
        aops = aops[2:]
        Q.v("v_max_f32_dpp", "v44", "v44", "v44", mods=f"row_ror:{sh} row_mask:0xf bank_mask:0xf")
    for q in range(4): Q.v("v_readlane_b32", S(8 + q), "v44", 16 * q)
    stamp(Q, "pc")
    if BB == "pc": Q.s("s_barrier")
    Q.s("s_max_u32", "s8", "s8", "s9"); Q.s("s_max_u32", "s10", "s10", "s11"); Q.s("s_max_u32", "s8", "s8", "s10")
    Q.s("s_lshr_b32", "s8", "s8", 23); Q.s("s_max_u32", "s8", "s8", 67); Q.s("s_min_u32", "s8", "s8", 187)
    Q.s("s_sub_u32", "s9", 268, "s8"); Q.s("s_lshl_b32", "s9", "s9", 23)
    Q.s("s_cmp_ge_u32", "s39", 26); Q.s("s_cselect_b32", "s9", 0, "s9")
    for k in range(ne): Q.v("v_mul_f32", V(SD + k), "s9", V(SD + k))
    for k in range(0, ne, 2): Q.v("v_cvt_pk_f16_f32", V(SD + k), V(SD + k), V(SD + min(k + 1, ne - 1)))
    for k in range(ne):
        Q.dsw("ds_write_b16_d16_hi" if k & 1 else "ds_write_b16", V(LA + k), V(SD + (k & ~1)))
    Q.dsr("ds_read_b128", "v[240:243]", "v41")
    for o in aops[:10]: emitv(Q, o)
    aops = aops[10:]
    for e in range(4): Q.v("v_pk_mul_f16", V(240 + e), V(240 + e), V(FAC + e))
    if OPT.get("a8", 1):
        Q.v("v_mov_b32", "v46", "0x00040004"); Q.v("v_mov_b32", "v47", "0xfff8fff8")
        for e in range(4): Q.v("v_pk_add_u16", V(240 + e), V(240 + e), "v46")
        for e in range(4): Q.v("v_and_b32", V(240 + e), "v47", V(240 + e))
    Q.s("s_cmp_ge_u32", "s39", 27)
    Q.v("v_writelane_b32", "v240", "s8", 48)
    Q.s("s_cbranch_scc1", "L_P_skip" + tag)
    Q.cond = True
    Q.s("s_mov_b32", "exec_hi", "0x1ffff")
    Q.bstore("buffer_store_dwordx4", "v[240:243]", "v32", S(R_WS, 4), "s93", mods=SC1)
    Q.s("s_mov_b32", "exec_hi", -1)
    Q.cond = False
    Q.label("L_P_skip" + tag)
    stamp(Q, "pd")
    Q.s("s_mov_b32", "s38", 1)
    Q.s("s_lshr_b32", "s5", "s2", 3); Q.s("s_lshl_b32", "s90", 1, "s5")
    Q.waitcnt(None, 0)
    Q.s("s_barrier")
    stamp(Q, 3)
    Q.s("s_setprio", OPT.get("pprio", 0))
    Q.s("s_branch", "L_C_join")
CP.s("s_cmp_ge_u32", "s15", 7)
CP.s("s_cbranch_scc1", "L_P1x")
CX = CP.fork()
producer(CP, 1)
producer(CX, 2)

D.label("L_D2")
wt = D.gload("global_load_dword", "v15", "v9", "s[28:29]")
D.v("v_lshrrev_b32", "v10", 5, "v1"); D.v("v_bfe_u32", "v11", "v1", 2, 3); D.v("v_lshl_add_u32", "v11", "v10", 4, "v11"); D.v("v_mul_u32_u24", "v11", 224, "v11")
D.v("v_and_b32", "v12", 3, "v1"); D.v("v_lshl_add_u32", "v11", "v12", 3, "v11"); D.v("v_add_u32", "v9", "s7", "v11")
D.s("s_lshr_b32", "s5", "s39", 4); D.v("v_xor_b32", "v10", "s5", "v10")
D.v("v_and_b32", "v11", 15, "v1"); D.v("v_mul_u32_u24", "v11", 104, "v11"); D.v("v_lshl_add_u32", "v11", "v10", 2, "v11")
D.s("s_mul_i32", "s5", "s14", 32 * 104); D.s("s_sub_u32", "s9", 32 * 104, "s5")
D.v("v_add_u32", V(DT + 8), "s5", "v11"); D.v("v_add_u32", V(DT + 9), "s9", "v11")
D.v("v_and_b32", "v12", 16, "v1")
D.s("s_lshl_b32", "s10", "s4", 3)
D.s("s_lshl_b32", "s5", "s6", 10); D.s("s_add_u32", "s5", "s5", DSC)
D.v("v_lshl_add_u32", "v13", "v1", 3, "s5")
D.v("v_and_b32", "v10", 48, "v1"); D.v("v_add_u32", V(DT + 10), "s5", "v10")
D.v("v_lshlrev_b32", V(DT), 16, "v14"); D.v("v_and_b32", V(DT + 1), "0xffff0000", "v14")
D.dsw("ds_write_b64", "v13", V(DT, 2))
for b in range(7): D.dsr("ds_read_b128", V(BI + 4 * b, 4), V(DT + 10), 64 * b)
def i_base():
    D.v("v_add_u32", "v10", "s10", V(DT + 8)); D.v("v_add_u32", "v11", "s10", V(DT + 9))
def i_adv():
    D.s("s_add_u32", "s10", "s10", 8); D.s("s_cmp_eq_u32", "s10", 104); D.s("s_cselect_b32", "s10", 0, "s10")
def i_reads(t): return [("ds_read_b32", V(GI + 4 * (t & 1) + sb), "v10" if sb < 2 else "v11", IDXS + (sb & 1) * 16 * 104) for sb in range(4)]
def i_addr(t):
    L = []
    for k in range(4): L += gaddr_ops(GI + 4 * (t & 1) + k, GI + 4 * (t & 1) + k, 12, DT + 4 + k)
    return L
def w_reads(t):
    return [("ds_read_b64_tr_b16", V(WF + 28 * (t & 1) + 4 * b + 2 * h, 2), "v9", (t % NS) * SLOT + 32 * b + 8 * 224 * h) for b in range(7) for h in range(2)]
def x_reads(t): return [("ds_read_b128", V(XF + 16 * (t & 1) + 4 * sb, 4), V(GI + 4 * (t & 1) + sb), TAB) for sb in range(4)]
i_base(); i_adv()
if not OPT.get("w1late", 1):
    for m in range(7): w_m0(1, m); w_piece(1, m)
    w_adv(1)
wtok = {}
D.wait(tabt)
stamp(D, 8)
D.s("s_barrier")
stamp(D, 3)
D.s("s_setprio", 2)
for o in i_reads(0): D.dsr(*o)
i_base(); i_adv()
a0 = i_addr(0); xr0 = x_reads(0)
for sb in range(4):
    emitv(D, a0[sb]); D.dsr(*xr0[sb])
if OPT.get("w1late", 1):
    for m in range(7): w_m0(1, m); w_piece(1, m)
    w_adv(1)
D.wait(dmat[0])
stamp(D, 7)
for o in w_reads(0): wtok[0] = D.dsr(*o)
for o in i_reads(1): D.dsr(*o)
tiles = [(b, sb) for sb in range(4) for b in range(6)]
tiles = tiles[:6] + [(6, 0)] + tiles[6:12] + [(6, 1)] + tiles[12:]
def tacc(b, sb): return DACC + 4 * (4 * b + sb)
WSTART = OPT.get("wstart", 11)
for t in range(13):
    sched = {k: [] for k in range(26)}
    if t + 1 < 13:
        av = i_addr(t + 1); xr = x_reads(t + 1)
        for sb in range(4): sched[2 * sb + 1] += [("v", av[sb]), ("r", xr[sb])]
        sched[WSTART] += [("wait", t + 1)]
        for n, o in enumerate(w_reads(t + 1)): sched[WSTART + n // 2] += [("w", o)]
    if t + 2 < 13:
        sched[0] += [("ww", t), ("m0", t + 2, 0)]
        for m in range(7):
            k = [2, 4, 6, 8, 10, 20, 22][m] if OPT.get("dsp", 0) else 2 + 2 * m if m < 4 else 2 * m + 1
            k = {0: 2, 1: 4, 2: 6, 3: 8, 4: 10, 5: 19, 6: 21}[m] if OPT.get("dsp", 0) else {0: 2, 1: 4, 2: 6, 3: 8, 4: 9, 5: 10, 6: 10}[m]
            sched[k] += [("dma", t + 2, m)]
            if m == 3: sched[k] += [("m0", t + 2, 4)]
        sched[22] += [("adv", t + 2)]
        sched[WSTART + 7] += [("ib",)]
        for n, o in enumerate(i_reads(t + 2)): sched[WSTART + 8 + n // 2] += [("r", o)]
    if t in (1, 2, 5, 9): stamp(D, {1: "mx", 2: "pf", 5: 6, 9: 9}[t])
    for k, (b, sb) in enumerate(tiles):
        acc = tacc(b, sb)
        D.mfma("v_mfma_f32_16x16x32_bf16", V(acc, 4), V(WF + 28 * (t & 1) + 4 * b, 4), V(XF + 16 * (t & 1) + 4 * sb, 4), V(BI + 4 * b, 4) if t == 0 else V(acc, 4))
        for f in sched[k]:
            if f[0] == "v": emitv(D, f[1])
            elif f[0] == "r": D.dsr(*f[1])
            elif f[0] == "w": wtok[t + 1] = D.dsr(*f[1])
            elif f[0] == "wait": D.wait(dmat[f[1]])
            elif f[0] == "ww": D.wait(wtok[f[1]])
            elif f[0] == "ib": i_base(); i_adv()
            elif f[0] == "m0": w_m0(f[1], f[2])
            elif f[0] == "dma": w_piece(f[1], f[2])
            elif f[0] == "adv": w_adv(f[1])
stamp(D, 4)
D.s("s_setprio", 0)
D.v("v_mov_b32", V(DT + 4), f32(2.0 ** 100))
D.v("v_lshlrev_b32", V(DT + 2), 16, "v15"); D.v("v_and_b32", V(DT + 3), "0xffff0000", "v15")
D.v("v_rcp_f32", V(DT + 2), V(DT + 2)); D.v("v_rcp_f32", V(DT + 3), V(DT + 3))
D.v("v_med3_f32", V(DT + 2), V(DT + 2), V(DT + 4), "-" + V(DT + 4)); D.v("v_med3_f32", V(DT + 3), V(DT + 3), V(DT + 4), "-" + V(DT + 4))
D.dsw("ds_write_b64", "v13", V(DT + 2, 2), 512)
for b in range(7): D.dsr("ds_read_b128", V(BI + 4 * b, 4), V(DT + 10), 512 + 64 * b)
VK1, VK2, SS, GT = 120, 121, 124, 128
D.v("v_mov_b32", V(VK1), f32(K1)); D.v("v_mov_b32", V(VK2), f32(K2))
for r in range(4): D.v("v_mov_b32", V(SS + r), 0)
D.v("v_mov_b32", "v8", MISC); D.v("v_mov_b32", "v9", 1)
def gelu(items):
    for g0 in range(0, len(items), 4):
        grp = items[g0:g0 + 4]
        t = [GT + 4 * ((g0 // 4) & 1) + i for i in range(len(grp))]
        for (x, w, s), r in zip(grp, t): D.v("v_mul_f32", V(r), V(x), V(x))
        for (x, w, s), r in zip(grp, t): D.v("v_fma_f32", V(r), V(r), V(VK2), V(VK1))
        for (x, w, s), r in zip(grp, t): D.v("v_mul_f32", V(r), V(x), V(r))
        for (x, w, s), r in zip(grp, t): D.v("v_exp_f32", V(r), V(r))
        for (x, w, s), r in zip(grp, t): D.v("v_fma_f32", V(r), V(r), V(w), V(w))
        for (x, w, s), r in zip(grp, t): D.v("v_rcp_f32", V(r), V(r))
        for (x, w, s), r in zip(grp, t): D.v("v_fmac_f32", V(s), V(x), V(r))
its = []
for b in range(7):
    for r in range(4):
        for sb in range(4 if b < 6 else 2): its.append((tacc(b, sb) + r, BI + 4 * b + r, SS + sb))
gelu(its)
D.s("s_lshl_b32", "s5", "s14", 9); D.s("s_add_u32", "s9", "s7", "s5"); D.s("s_sub_u32", "s5", "s7", "s5"); D.s("s_add_u32", "s5", "s5", 512)
D.v("v_lshl_add_u32", "v10", "v1", 2, "s9"); D.v("v_lshl_add_u32", "v11", "v1", 2, "s5")
for sb in range(4): D.dsw("ds_write_b32", "v10" if sb < 2 else "v11", V(SS + sb), 256 * (sb & 1))
lds_signal(D, 8, 9, CNT3)
stamp(D, 10)
dump_stamps(D, 10, 11)
D.label("L_end")
D.s("s_endpgm")

lt = ".p2align 6\n.type L_lut,@object\nL_lut:\n"
for c in range(2):
    for l in range(64):
        dm = 800 + 4 * (l & 31)
        g_ = lambda x: dm if x is None else x
        w = [(g_(lut[l][8 * c + 2 * e]) | (g_(lut[l][8 * c + 2 * e + 1]) << 16)) for e in range(4)]
        lt += "  .long " + ", ".join("0x%08x" % x for x in w) + "\n"
for l in range(64): lt += "  .long " + ", ".join("0x%08x" % x for x in fac[l]) + "\n"
lt += ".size L_lut, 3072\nL_lut_end:\n"

ctext = C.text()
cut = ctext.index("L_CN:")
pt, xt = CP.text(), CX.text()
pc_, xc_ = pt.index("L_P2u:"), xt.index("L_P2x:")
dt1 = D1.text(); dc_ = dt1.index("L_D1:")
body = dt1[:dc_] + ctext[:cut] + pt[:pc_] + xt[:xc_] + dt1[dc_:] + ctext[cut:] + SL.text() + AS.text() + pt[pc_:] + xt[xc_:] + D.text()
hdr = open("standalone__deep_cross_xdeepfm__recsys.s.ref").read().split("; @launch")[0]
src = hdr + f"; @launch grid=(256,1,1) block=(512,1,1) lds={LDS_TOTAL}\n"
src += f""".amdgcn_target "amdgcn-amd-amdhsa--gfx950"
.text
.globl {NAME}
.p2align 8
.type {NAME},@function
{NAME}:
""" + body + lt + f""".section .rodata,"a"
.p2align 6
.amdhsa_kernel {NAME}
  .amdhsa_next_free_vgpr 256
  .amdhsa_next_free_sgpr 102
  .amdhsa_accum_offset 256
  .amdhsa_group_segment_fixed_size 0
  .amdhsa_kernarg_size 88
  .amdhsa_user_sgpr_count 2
  .amdhsa_user_sgpr_kernarg_segment_ptr 1
  .amdhsa_system_sgpr_workgroup_id_x 1
.end_amdhsa_kernel
"""
open(sys.argv[1], "w").write(src)
for n_, s_ in (("D1", D1), ("C", C), ("CP", CP), ("CX", CX), ("D", D)): print(n_, s_.stats(), "nops", s_.nops)
print("LDS", LDS_TOTAL)
```

```python
import sys, struct
from asmlib import *
import slotmap as sm

NAME = "standalone__deep_cross_xdeepfm__recsys_kernel"
OPT = dict(stamps=0, ns=2, nstg=6)
for a in sys.argv[2:]:
    k, v = a.split("="); OPT[k] = int(v) if v.lstrip("-").isdigit() else v
STAMPS = OPT["stamps"]

TAB = 0
IDXS = 32768
AIMG = IDXS + 6656 + 512
RS = 784
BS = 27 * RS
NS = OPT["ns"]
W3S = AIMG
RING = W3S + 4 * 11264
assert 2 * BS <= 4 * 11264
SLOT = 7168
RSZ = NS * SLOT
MISC = RING + 4 * RSZ
CNT2, CNT3, MCNT, PCNT, RDY, CLAIM, MCNT2 = 0, 4, 8, 12, 16, 32, 36
M3B = MISC + 64
STG = M3B + 2048 + 64
DSC = STG + 4096
LDS_TOTAL = DSC + 4096
assert LDS_TOTAL <= 163840 and AIMG % 16 == 0
def f32(x): return "0x%08x" % struct.unpack("<I", struct.pack("<f", x))[0]
K1 = -2.0 * 0.7978845608028654 * 1.4426950408889634
K2 = K1 * 0.044715
SC1 = "sc1"
def frag_id(blk, ks): return (blk, ks)

SEL = str(OPT.get("sel", "")).split(",")
def stamp(st, name):
    if name == 0 or name == 10: idx = name
    else:
        if "R" + str(name) in SEL and STAMPS:
            j = 1 + SEL.index("R" + str(name))
            st.raw(f"s_memrealtime s[{64+2*j}:{65+2*j}]", 'misc')
            st.lg.append(Tok('lg', [], True, True))
        if str(name) in SEL: idx = 1 + SEL.index(str(name)); assert idx <= 9
        else: return
    if STAMPS:
        st.raw(f"s_memtime s[{64+2*idx}:{65+2*idx}]", 'misc')
        st.lg.append(Tok('lg', [], True, True))
def dump_stamps(st, vt, va):
    if not STAMPS: return
    if OPT.get("dbgdump"):
        if st is not C: return
        st.raw("s_memrealtime s[84:85]", 'misc')
        st.waitcnt(None, 0)
        st.s("s_cmp_eq_u32", "s2", 100); st.s("s_cbranch_scc0", "L_dd"); st.s("s_cmp_eq_u32", "s3", 0); st.s("s_cbranch_scc0", "L_dd")
        st.s("s_mov_b64", "exec", 1)
        st.v("v_mov_b32", V(va), 0)
        for i in range(1, 11):
            st.s("s_sub_u32", "s5", f"s{64+2*i}", "s100")
            st.v("v_mov_b32", V(vt), "s5")
            st.bstore("buffer_store_dword", V(vt), V(va), S(R_DBG, 4), 0, 12 + 4 * i)
        st.label("L_dd")
        return
    st.raw("s_memrealtime s[98:99]", 'misc')
    st.waitcnt(None, 0)
    st.s("s_mov_b32", "s86", "s100"); st.s("s_mov_b32", "s88", "s98"); n = 13
    st.s("s_lshl_b32", "s5", "s2", 3); st.s("s_add_u32", "s5", "s5", "s3"); st.s("s_lshl_b32", "s5", "s5", 6)
    st.s("s_add_u32", "s5", "s5", 0x100000)
    st.v("v_mov_b32", V(va), "s5")
    for i in range(n):
        st.v("v_mov_b32", V(vt), f"s{64+2*i}")
        st.gstore("global_store_dword", V(va), V(vt), "s[36:37]", off=4 * i)
    st.waitcnt(0, None)
def srd(st, r, base): st.s("s_mov_b64", S(r, 2), S(base, 2))
def srd_const(st, r, size):
    st.s("s_mov_b32", S(r + 2), size); st.s("s_mov_b32", S(r + 3), "0x20000")
def lds_signal(st, vaddr, vone, off):
    st.s("s_mov_b64", "exec", 1)
    st.dsw("ds_add_u32", V(vaddr), V(vone), off)
    st.s("s_mov_b64", "exec", -1)
def lds_wait(st, vaddr, vtmp, off, target, name, sleep=None):
    st.s("s_branch", name + "_in") if sleep is not None else None
    st.label(name)
    if sleep is not None:
        st.s("s_sleep", sleep); st.label(name + "_in")
    st.dsr("ds_read_b32", V(vtmp), V(vaddr), off)
    st.waitcnt(None, 0)
    st.v("v_readfirstlane_b32", "s5", V(vtmp))
    st.s("s_cmp_lt_u32", "s5", target)
    st.s("s_cbranch_scc1", name)
def gaddr_ops(dst, idx, vbase, tmp):
    return [("v_xor_b32", V(dst), V(idx), V(vbase), "")]
def emitv(st, o): st.v(o[0], o[1], *o[2:-1], mods=o[-1])

P = Stream()
stamp(P, 0)
if STAMPS or OPT.get("dl", 0) or OPT.get("dl2", 0): P.raw("s_memrealtime s[100:101]", 'misc')
ka = P.sload("s_load_dwordx16", "s[16:31]", "s[0:1]", 0)
P.v("v_lshrrev_b32", "v2", 6, "v0")
P.v("v_and_b32", "v1", 63, "v0")
P.s("s_cmp_ge_u32", "s2", 256)
P.v("v_readfirstlane_b32", "s3", "v2")
P.s("s_cbranch_scc1", "L_end")
if OPT.get("coldhop", 0):
    P.sload("s_load_dwordx2", "s[36:37]", "s[0:1]", 80)
    P.v("v_mov_b32", "v3", 0x8000000)
    P.waitcnt(None, 0)
    P.gload("global_load_dword", "v3", "v3", "s[36:37]")
    P.waitcnt(0, None)
P.raw("s_getpc_b64 s[94:95]", 'salu')
P.label("L_pc")
P.s("s_lshr_b32", "s15", "s2", 3)
P.s("s_and_b32", "s5", "s2", 7); P.s("s_sub_u32", "s5", "s5", OPT.get("cg0", 2)); P.s("s_cmp_lt_u32", "s5", 1); P.s("s_cselect_b32", "s38", "s15", 99)
R_TAB = 44
P.s("s_cmp_ge_u32", "s3", 4)
P.s("s_cbranch_scc1", "L_D1")
C = P.fork()
D = P
D.label("L_D1")
R_W1 = 40
DACC, WF, XF, BI, GI, DT = 16, 120, 176, 208, 236, 244
D.s("s_sub_u32", "s6", "s3", 4)
D.s("s_and_b32", "s5", "s15", 7); D.s("s_lshl_b32", "s5", "s5", 2); D.s("s_add_u32", "s5", "s5", "s6"); D.s("s_mul_i32", "s5", "s5", 9 * 128)
D.v("v_lshl_add_u32", "v8", "v1", 7, "s5")
D.raw("v_min_u32 v8, L_lut_end-L_pc-4, v8", 'misc')
D.s("s_mov_b64", "exec", "0x1ff")
D.gload("global_load_dword", "v255", "v8", "s[94:95]")
D.s("s_mov_b64", "exec", -1)
if STAMPS: D.sload("s_load_dwordx2", "s[36:37]", "s[0:1]", 80)
srd_const(D, R_W1, 416 * 832 + 4096); srd_const(D, R_TAB, 32000)
D.v("v_bfe_u32", "v33", "v1", 4, 1); D.v("v_xor_b32", "v33", "v33", "v1"); D.v("v_lshlrev_b32", "v33", 4, "v33")
D.s("s_lshl_b32", "s13", "s6", 13)
for n in range(4):
    D.s("s_add_u32", "s5", "s15", n); D.s("s_and_b32", "s5", "s5", 3); D.s("s_lshl_b32", "s5", "s5", 11); D.s("s_add_u32", S(8 + n), "s5", "s13")
D.s("s_add_u32", "s4", "s15", 18); D.s("s_bfe_u32", "s4", "s4", "0x40001"); D.s("s_sub_u32", "s5", "s4", 13); D.s("s_min_u32", "s4", "s4", "s5")
D.s("s_and_b32", "s39", "s15", 1); D.s("s_lshl_b32", "s39", "s39", 4)
D.s("s_mul_i32", "s12", "s4", 32 * 832)
D.s("s_mul_i32", "s7", "s6", RSZ); D.s("s_add_u32", "s7", "s7", RING)
D.s("s_and_b32", "s14", "s6", 1); D.s("s_lshr_b32", "s5", "s6", 1); D.s("s_mul_i32", "s5", "s5", 416); D.s("s_mul_i32", "s13", "s14", 192); D.s("s_add_u32", "s13", "s13", "s5")
D.s("s_lshl_b32", "s5", "s14", 1)
def dma_off(m):
    src = "v1"
    if m: D.v("v_add_u32", "v10", 64 * m, "v1"); src = "v10"
    D.v("v_mul_u32_u24", "v11", 4682, src); D.v("v_lshrrev_b32", "v11", 16, "v11")
    D.v("v_mad_i32_i24", "v12", "v11", -14, src); D.v("v_add_u32", "v12", "s5", "v12")
    D.v("v_subrev_u32", "v13", 14, "v12"); D.v("v_min_u32", "v12", "v12", "v13")
    D.v("v_lshrrev_b32", "v13", 1, "v11"); D.v("v_xor_b32", "v13", "v13", "v11"); D.v("v_and_b32", "v13", 4, "v13")
    D.v("v_mul_u32_u24", "v13", 3, "v13"); D.v("v_bitop3_b32", "v11", "v11", "v13", "s39", mods="bitop3:0x96")
    D.v("v_mul_u32_u24", "v11", 832, "v11"); D.v("v_lshl_add_u32", "v11", "v12", 4, "v11"); D.v("v_add_u32", V(2 + m), "s13", "v11")
    D.v("v_add_u32", V(2 + m), 4096 - 1024 * (m % 4), V(2 + m))
D.v("v_lshl_add_u32", "v10", "s14", 3, "v1"); D.v("v_subrev_u32", "v11", 56, "v10"); D.v("v_min_u32", "v10", "v10", "v11")
D.v("v_min_u32", "v10", 55, "v10"); D.v("v_lshl_add_u32", "v9", "v10", 2, "s13")
for m in range(4): dma_off(m)
HOLD = 1
D.wait(ka)
srd(D, R_TAB, 18)
bt = D.gload("global_load_dword", "v14", "v9", "s[26:27]")
D.s("s_sub_u32", S(R_W1), "s24", 4096); D.s("s_subb_u32", S(R_W1 + 1), "s25", 0)
dmat = {}
def w_m0(t, m, force=False):
    if m % 4 == 0 or force: D.s("s_add_u32", "m0", "s7", (t % NS) * SLOT + 4096 * (m // 4))
def w_piece(t, m): dmat[t] = D.dma(V(2 + m), S(R_W1, 4), "s12", 1024 * (m % 4))
def w_adv(t):
    D.s("s_add_u32", "s12", "s12", 32 * 832)
    D.s("s_cmp_eq_u32", "s12", 416 * 832); D.s("s_cselect_b32", "s12", 0, "s12")
def t_dma(n):
    D.s("s_mov_b32", "m0", S(8 + n))
    D.dma("v33", S(R_TAB, 4), S(8 + n)); return D.dma("v33", S(R_TAB, 4), S(8 + n), 1024)
TE = OPT.get("te", 1)
t_dma(0)
D.s("s_cmp_ge_u32", "s38", 14)
D.s("s_cbranch_scc1", "L_D_nb0")
D.cond = True
for n in range(1, TE): t_dma(n)
D.cond = False
D.s("s_barrier")
D.label("L_D_nb0")
for m in range(4): w_m0(0, m); w_piece(0, m)
for m in range(4, 7): dma_off(m)
if TE > 1:
    D.s("s_cmp_lt_u32", "s38", 14)
    D.s("s_cbranch_scc1", "L_D_nb1")
    D.cond = True
    for n in range(1, TE): t_dma(n)
    D.cond = False
    D.label("L_D_nb1")
for n in range(TE, 4): tabt = t_dma(n)
for m in range(4, 7): w_m0(0, m); w_piece(0, m)
w_adv(0)
stamp(D, 1)
D.s("s_branch", "L_D2")
D1 = D
D = D1.fork()

R_IDX, R_CIN, R_WS, R_OUT, R_DBG, R_WO = 48, 40, 52, 56, 60, 48
C.label("L_C")
k2 = C.sload("s_load_dwordx4", "s[32:35]", "s[0:1]", 64)
C.sload("s_load_dwordx2", "s[36:37]", "s[0:1]", 80)
srd_const(C, R_IDX, 16384 * 104)
C.v("v_lshlrev_b32", "v32", 4, "v1")
C.s("s_and_b32", "s7", "s3", 1)
C.s("s_lshl_b32", "s12", "s2", 2); C.s("s_add_u32", "s12", "s12", "s3"); C.s("s_mul_i32", "s12", "s12", 1664)
C.s("s_mul_i32", "s13", "s3", 1664); C.s("s_add_u32", "s13", "s13", IDXS)
srd_const(C, R_CIN, 105456)
C.s("s_lshl_b32", "s14", "s15", 2); C.s("s_add_u32", "s14", "s14", "s3"); C.s("s_mul_i32", "s14", "s14", 3 * 128); C.s("s_add_u32", "s14", "s14", 70272)
C.v("v_lshlrev_b32", "v7", 7, "v1")
srd_const(C, R_DBG, 256)
C.wait(ka)
srd(C, R_DBG, 34)
srd(C, R_IDX, 16)
C.bload("buffer_load_dwordx4", "v[12:15]", "v32", S(R_IDX, 4), "s12")
idxt = C.bload("buffer_load_dwordx4", "v[16:19]", "v32", S(R_IDX, 4), "s12", 640)
srd(C, R_CIN, 20)
C.s("s_mov_b64", "exec", 7)
C.bload("buffer_load_dword", "v23", "v7", S(R_CIN, 4), "s14")
C.s("s_mov_b64", "exec", -1)
stamp(C, 1)
C.s("s_cmp_ge_u32", "s38", 14)
C.s("s_cbranch_scc1", "L_CN")
CP = C.fork()
CP.label("L_CP")
C.label("L_CN")
GA = 118
def c_setup2(C):
    srd_const(C, R_WS, 2 * BS); srd_const(C, R_OUT, 32768)
    for r, b in ((R_WS, 36), (R_OUT, 32)): srd(C, r, b)
    C.v("v_mov_b32", "v2", MISC)
    for r in range(24, 28): C.v("v_mov_b32", V(r), 0)
    C.dsw("ds_write_b128", "v2", "v[24:27]"); C.dsw("ds_write_b32", "v2", "v24", RDY)
    C.v("v_mov_b32", "v5", 0); C.v("v_mov_b32", "v6", 1)
    if OPT.get("pretouch", 1):
        C.v("v_mov_b32", "v11", 0x10000)
        C.s("s_mov_b64", "exec", 1)
        C.cond = True
        C.gload("global_load_dword", "v248", "v11", "s[36:37]")
        C.gload("global_load_ushort", "v249", "v5", "s[32:33]")
        C.gload("global_load_ushort", "v250", "v5", "s[30:31]")
        C.cond = False
        C.s("s_mov_b64", "exec", -1)
    C.v("v_and_b32", "v8", 15, "v1"); C.v("v_mul_u32_u24", "v7", 104, "v8"); C.v("v_add_u32", "v7", "s13", "v7")
    C.v("v_lshrrev_b32", "v9", 2, "v1"); C.v("v_xor_b32", "v9", "v9", "v1"); C.v("v_and_b32", "v9", 8, "v9")
    C.v("v_and_b32", "v10", 16, "v1"); C.v("v_add_u32", "v4", "v9", "v10")
def c_xform(C):
    C.v("v_add_u32", "v11", "s13", "v32")
    for r in range(12, 20):
        C.v("v_and_b32", "v8" if r & 1 else "v9", 8, V(r))
        C.v("v_lshlrev_b32", V(r), 5, V(r))
        C.v("v_lshl_or_b32", V(r), "v8" if r & 1 else "v9", 1, V(r))
        if r == 15: C.dsw("ds_write_b128", "v11", "v[12:15]")
    C.dsw("ds_write_b128", "v11", "v[16:19]", 640)
def c_addr(C):
    for r in range(13): C.dsr("ds_read_b64", V(GA + 2 * r, 2), "v7", 8 * r)
    for f in range(26):
        for o in gaddr_ops(GA + f, GA + f, 4, 0): emitv(C, o)

c_setup2(C)
C.s("s_mov_b32", "s38", 0); C.s("s_mov_b32", "s91", 0)
c_xform(C)
stamp(C, 2)
C.waitcnt(0, 0)
C.s("s_barrier")
stamp(C, 3)
if OPT.get("xprio", 0): C.s("s_setprio", OPT["xprio"])
C.label("L_C_join")
c_addr(C)

PASSES = [(4, 5), (0, 2), (1, 3), (6, 7)]
ACC = 118
SACC = 182
KAP, KAP2, MSK = 195, 196, 197
ZR = 198
STGR = 214
NSTG = OPT.get("nstg2", 5)
RES0 = STGR + 4 * NSTG
def Fr(u, r):
    if u < 4: return 40 + 26 * (u & 1) + 2 * r + (u >> 1)
    return {4: 8, 5: 21, 6: 92, 7: 105}[u] + r
def Rw(f): return Fr(f & 1, f >> 1)
MX, MN = 182, 183
LEAD = 12
def sig1():
    C.s("s_cmp_eq_u32", "s38", 0); C.s("s_cbranch_scc1", "L_C_s1")
    C.s("s_mov_b64", "exec", 1)
    C.raw("s_waitcnt vmcnt(0)", 'wait')
    stamp(C, "pe")
    C.raw(f"ds_add_rtn_u32 v186, v2, v6 offset:{PCNT}", 'misc')
    C.v("v_mov_b32", "v187", "s90")
    C.s("s_mov_b32", "s38", 0)
    C.raw("s_waitcnt lgkmcnt(0)", 'wait')
    C.v("v_readfirstlane_b32", "s5", "v186")
    C.s("s_cmp_lg_u32", "s5", 3); C.s("s_cbranch_scc1", "L_C_s1b")
    C.raw(f"buffer_atomic_or v187, v5, s[{R_DBG}:{R_DBG+3}], 0 offen sc1", 'misc')
    stamp(C, "pf")
    C.label("L_C_s1b")
    C.s("s_mov_b64", "exec", -1)
    C.label("L_C_s1")
def sig2():
    C.s("s_cmp_eq_u32", "s38", 0); C.s("s_cbranch_scc1", "L_C_s2")
    C.raw("s_waitcnt vmcnt(0)", 'wait')
    C.v("v_readfirstlane_b32", "s5", "v187")
    C.s("s_or_b32", "s5", "s5", "s90"); C.s("s_cmp_lg_u32", "s5", "0x3fff"); C.s("s_cbranch_scc1", "L_C_s2")
    C.s("s_mov_b64", "exec", 1)
    C.raw(f"buffer_store_dword v6, v5, s[{R_DBG}:{R_DBG+3}], 0 offen offset:128 sc1", 'misc')
    C.s("s_mov_b64", "exec", -1)
    stamp(C, "pf")
    C.label("L_C_s2")
for f in range(LEAD): C.dsr("ds_read_b64", V(Rw(f), 2), V(GA + f), TAB)
for f in range(26):
    if f == OPT.get("sig1", 8): sig1()
    if f + LEAD < 26: C.dsr("ds_read_b64", V(Rw(f + LEAD), 2), V(GA + f + LEAD), TAB)
    C.v("v_pk_maximum3_f16", V(MX), V(Rw(f)), V(Rw(f) + 1), V(MX) if f else V(Rw(f)))
    C.v("v_pk_minimum3_f16", V(MN), V(Rw(f)), V(Rw(f) + 1), V(MN) if f else V(Rw(f)))
stamp(C, "mx")
C.v("v_lshlrev_b32", "v250", 16, "v250"); C.v("v_mul_f32", "v250", "0x3e800000", "v250")
C.v("v_readfirstlane_b32", "s96", "v250")
C.v("v_and_b32", V(MX), "0x7fff7fff", V(MX)); C.v("v_and_b32", V(MN), "0x7fff7fff", V(MN))
C.v("v_pk_max_u16", V(MX), V(MX), V(MN))
C.v("v_lshrrev_b32", V(MN), 16, V(MX)); C.v("v_and_b32", V(MX), "0xffff", V(MX)); C.v("v_max_u32", V(MX), V(MX), V(MN))
C.v("v_mov_b32", V(MN), V(MX))
C.v("v_mov_b32", V(MSK), "0xfff8fff8")
C.s("s_mov_b32", "s12", "0x05040100")
C.v("v_permlane32_swap_b32", V(MX), V(MN))
C.v("v_max_u32", V(MX), V(MX), V(MN))
C.v("v_lshrrev_b32", V(MX), 7, V(MX)); C.v("v_max_u32", V(MX), 127, V(MX)); C.v("v_min_u32", V(MX), 254, V(MX))
SCL = 4
C.v("v_sub_u32", V(MN), 260, V(MX)); C.v("v_lshlrev_b32", V(SCL), 23, V(MN))
C.v("v_lshlrev_b32", V(MX), 2, V(MX)); C.v("v_subrev_u32", "v3", 4 * 133 + 282, V(MX))
C.v("v_cvt_pkrtz_f16_f32", V(KAP), V(SCL), V(SCL))
C.v("v_pk_mul_f16", V(KAP2), V(KAP), V(KAP)); C.v("v_and_b32", V(KAP2), "0xffff", V(KAP2))
def conv_ops(kk, T0, nt):
    L = []
    for r in range(13):
        a, b = Fr(2 * kk, r), Fr(2 * kk + 1, r)
        t = T0 + 4 * (r % nt)
        lo, hi = a, b; rp = (r - 1) % 13
        L += [("v_lshlrev_b32", V(t), 16, V(a), ""), ("v_lshlrev_b32", V(t + 1), 16, V(b), ""),
              ("v_mul_f32", V(t + 2), V(SCL), V(a), ""), ("v_mul_f32", V(t + 3), V(SCL), V(b), ""),
              ("v_mul_f32", V(t), V(SCL), V(t), ""), ("v_mul_f32", V(t + 1), V(SCL), V(t + 1), ""),
              ("v_cvt_pkrtz_f16_f32", V(hi), V(t + 2), V(t + 3), ""), ("v_cvt_pkrtz_f16_f32", V(lo), V(t), V(t + 1), ""),
              ("v_and_b32", V(hi), V(MSK), V(hi), ""),
              ("v_cvt_pkrtz_f16_f32", V(Fr(4 + 2 * kk, rp)), V(t + 1), V(t), ""),
              ("v_alignbit_b32", V(Fr(5 + 2 * kk, rp)), V(hi), V(hi), 16, "")]
        if r >= 2:
            for k in range(2): L.append(("v_permlane32_swap_b32", V(Fr(2 * kk + k, r - 2)), V(Fr(4 + 2 * kk + k, r - 2)), ""))
    for r in (12, 11):
        for k in range(2): L.append(("v_permlane32_swap_b32", V(Fr(2 * kk + k, r)), V(Fr(4 + 2 * kk + k, r)), ""))
    return L
FLG = 194
ops = conv_ops(0, 198, 3) + conv_ops(1, 246, 2)
C.v("v_lshlrev_b32", V(193), 4, "v1")
def a_load(tag):
    C.raw("s_call_b64 s[92:93], L_aload", 'salu')
AS = Stream()
AS.label("L_aload")
AS.s("s_lshr_b32", "s8", "s2", 3); AS.s("s_and_b32", "s9", "s8", 3)
AS.s("s_mul_i32", "s13", "s3", 11264)
AS.s("s_cmp_eq_u32", "s9", 3); AS.s("s_cselect_b32", "s9", 0, "s9"); AS.s("s_lshl_b32", "s9", "s9", 12)
for n in range(3):
    AS.s("s_add_u32", "s11", "s13", "s9")
    AS.s("s_add_u32", "m0", "s11", AIMG)
    AS.s("s_cmp_eq_u32", "s9", 8192)
    for e in range(3):
        AS.raw(f"buffer_load_dwordx4 v193, s[{R_WS}:{R_WS+3}], s11 offen offset:{1024*e} sc1 lds", 'misc')
    AS.s("s_cbranch_scc1", f"L_al{n}")
    AS.raw(f"buffer_load_dwordx4 v193, s[{R_WS}:{R_WS+3}], s11 offen offset:3072 sc1 lds", 'misc')
    AS.label(f"L_al{n}")
    if n < 2: AS.s("s_cselect_b32", "s9", -4096, "s9"); AS.s("s_add_u32", "s9", "s9", 4096)
AS.s("s_mov_b32", "s39", 0)
AS.raw("s_setpc_b64 s[92:93]", 'salu')
NDEF = OPT.get("ndef", 0)
ops1 = ops[len(ops) - NDEF:]; ops = ops[:len(ops) - NDEF]
POLL = f"buffer_load_dword v{FLG}, v5, s[{R_DBG}:{R_DBG+3}], 0 offen sc1"
C.s("s_mov_b32", "s39", 1)
CHECKS = [int(x) for x in str(OPT.get("chk", "0")).split("_") if 0 < int(x) < len(ops)]
for i, o in enumerate(ops):
    PC = OPT.get("pchk", 0)
    if PC and i == PC - 60:
        C.s("s_cmp_eq_u32", "s91", 0); C.s("s_cbranch_scc1", "L_C_pp")
        C.raw(POLL, 'misc')
        C.label("L_C_pp")
    if PC and i == PC:
        C.s("s_cmp_eq_u32", "s91", 0); C.s("s_cbranch_scc1", "L_C_pc")
        C.raw("s_waitcnt vmcnt(0)", 'wait')
        C.v("v_readfirstlane_b32", "s5", V(FLG))
        C.s("s_cmp_lg_u32", "s5", "0x3fff"); C.s("s_cbranch_scc1", "L_C_pc")
        C.s("s_setprio", 3)
        C.raw(f"ds_write_b32 v2, v6 offset:{RDY}", 'misc')
        a_load("p")
        C.s("s_setprio", OPT.get("pprio2", 0))
        C.label("L_C_pc")
    if i in CHECKS:
        t = str(CHECKS.index(i) + 1)
        C.s("s_cmp_eq_u32", "s39", 0); C.s("s_cbranch_scc1", "L_C_nc" + t)
        C.raw("s_waitcnt vmcnt(0)", 'wait')
        C.v("v_readfirstlane_b32", "s5", V(FLG))
        C.s("s_cmp_lg_u32", "s5", "0x3fff"); C.s("s_cbranch_scc1", "L_C_nc" + t)
        C.raw(f"ds_write_b32 v2, v6 offset:{RDY}", 'misc')
        a_load(t)
        C.label("L_C_nc" + t)
    nx = [c for c in CHECKS + [len(ops) + 30] if i == c - 70]
    if nx:
        C.s("s_cmp_eq_u32", "s39", 0); C.s("s_cbranch_scc1", "L_C_np%d" % i)
        C.raw(POLL, 'misc')
        C.label("L_C_np%d" % i)
    emitv(C, o)
stamp(C, 6)
C.v("v_and_b32", V(192), 31, "v1"); C.v("v_lshrrev_b32", V(191), 5, "v1")
C.v("v_cmp_eq_u32", "vcc", 28, V(192)); C.v("v_cmp_gt_u32", "s[14:15]", 25, V(192)); C.v("v_mov_b32", V(190), 26)
C.v("v_cndmask_b32", V(190), V(190), 25, "vcc") if False else None
C.v("v_subb_co_u32", V(190), "s[10:11]", V(190), 0, "vcc") if False else None
C.v("v_mov_b32", V(189), 25); C.v("v_cndmask_b32", V(190), V(190), V(189), "vcc"); C.v("v_cndmask_b32", V(192), V(190), V(192), "s[14:15]")
C.v("v_mul_u32_u24", V(192), RS, V(192)); C.v("v_mul_u32_u24", V(191), 384, V(191)); C.v("v_add3_u32", "v7", V(192), V(191), "v5")
C.v("v_add_u32", "v7", AIMG, "v7")
C.s("s_setprio", 0)
C.s("s_cmp_eq_u32", "s39", 0); C.s("s_cbranch_scc1", "L_C_have")
C.s("s_mov_b32", "s14", 1 << 17)
C.label("L_C_poll")
C.raw("s_waitcnt vmcnt(0)", 'wait')
C.v("v_readfirstlane_b32", "s5", V(FLG))
C.s("s_cmp_eq_u32", "s5", "0x3fff")
C.s("s_cbranch_scc1", "L_C_got")
C.s("s_cmp_lg_u32", "s3", 0); C.s("s_cbranch_scc1", "L_C_w0")
C.s("s_sub_u32", "s14", "s14", 1); C.s("s_cmp_eq_u32", "s14", 0); C.s("s_cbranch_scc1", "L_C_got")
C.s("s_sleep", 2)
C.raw(POLL, 'misc')
C.s("s_branch", "L_C_poll")
C.label("L_C_got")
C.dsw("ds_write_b32", "v2", "v6", RDY)
C.s("s_branch", "L_C_ready")
C.label("L_C_w0s")
C.s("s_sleep", 2)
C.label("L_C_w0")
C.dsr("ds_read_b32", V(190), "v2", RDY); C.waitcnt(None, 0)
C.v("v_readfirstlane_b32", "s5", V(190)); C.s("s_cmp_eq_u32", "s5", 0); C.s("s_cbranch_scc1", "L_C_w0s")
C.label("L_C_ready")
stamp(C, 7)
C.s("s_setprio", 3)
a_load("f")
C.label("L_C_have")
for k in range(13): C.v("v_mov_b32", V(SACC + k), 0)

order = list(range(22, 24)) + list(range(22))
order_last = [22, 0] + list(range(1, 22)) + [23]
steps = [(n, ks) for n in range(4) for ks in (order if n < 3 else order_last)]
def zops(si):
    n, ks = steps[si]; L = []
    for h in range(2):
        u = PASSES[n][h]; q = ZR + 8 * (si % 2) + 4 * h
        for j in range(4):
            ins = sm.dwords[4 * ks + j]; d = V(q + j)
            if ins[0] == 'A': L.append(("v_pk_mul_f16", d, V(Fr(u, ins[1])), V(Fr(u, ins[2])), "op_sel:[0,0] op_sel_hi:[0,1]"))
            elif ins[0] == 'D': L.append(("v_pk_mul_f16", d, V(Fr(u, ins[1])), V(Fr(u, ins[1])), "op_sel:[0,0] op_sel_hi:[0,1]"))
            elif ins[0] == 'E':
                L.append(("v_perm_b32", d, V(Fr(u, ins[2])), V(Fr(u, ins[1])), "s12", ""))
                L.append(("v_pk_mul_f16", d, d, d, ""))
            elif ins[0] == 'L': L.append(("v_pk_mul_f16", d, V(Fr(u, ins[1])), V(KAP), ""))
            else: L.append(("v_mov_b32", d, V(KAP2), ""))
    return L
for o in zops(0): emitv(C, o)
C.raw("s_waitcnt vmcnt(0)", 'wait')
lds_signal(C, 2, 6, CNT2)
lds_wait(C, 2, 255, CNT2, 4, "L_C_w2", sleep=1)
C.label("L_C_go")
C.s("s_setprio", 1)
stamp(C, 8)
uses = []
for si, (n, ks) in enumerate(steps):
    if ks < 22: uses.append((si, 0))
    uses.append((si, 1))
resident = {}
free_quads = list(range(RES0, 246 - 3 if ops1 else 253, 4))
had1 = bool(ops1)
LOOK = NSTG - 2
stg_next = [0]; use_reg = {}; use_tok = {}
def plan_read(i):
    si, blk = uses[i]; n, ks = steps[si]; fid = (blk, ks)
    if fid in resident: use_reg[(si, blk)] = resident[fid]; return
    if free_quads and n < 3:
        reg = free_quads.pop(0); resident[fid] = reg
    else:
        reg = STGR + 4 * stg_next[0]; stg_next[0] = (stg_next[0] + 1) % NSTG
    use_reg[(si, blk)] = reg
    use_tok[(si, blk)] = C.dsr("ds_read_b128", V(reg, 4), "v7", blk * BS + ks * 16)
nread = [0]
def read_upto(i):
    while nread[0] <= i and nread[0] < len(uses): plan_read(nread[0]); nread[0] += 1
read_upto(LOOK)
accs = [{(0, 0): ACC, (1, 0): ACC + 16, (0, 1): ACC + 32, (1, 1): ACC + 48}]
spare = [8, 24]
for n in range(1, 4):
    p = accs[-1]
    accs.append({(1, 0): spare[0], (1, 1): spare[1], (0, 0): p[(0, 0)], (0, 1): p[(1, 0)]})
    spare = [p[(0, 1)], p[(1, 1)]]
EXR, EXU = 66, 79
T1, RP = 92 - 2, 0
first_of = set(); extra = []; tail_pre = []
mi = 0; ui = 0
for si, (n, ks) in enumerate(steps):
    seq = [(0, 0), (1, 0), (1, 1), (0, 1)] if ks < 22 else [(1, 0), (1, 1)]
    if OPT.get("cord", 0) == 1 and ks < 22: seq = [(0, 0), (0, 1), (1, 1), (1, 0)]
    if OPT.get("cord", 0) == 2 and ks < 22 and si % 2: seq = [(0, 1), (1, 1), (1, 0), (0, 0)]
    if ks == order[-1]: seq = [(0, 0), (1, 0), (0, 1), (1, 1)] if n < 3 else [(0, 0), (0, 1), (1, 0), (1, 1)]
    if n > 0 and ks == 0: seq = [(1, 0), (1, 1), (0, 1), (0, 0)]
    if si == len(order) - 1: assert not ops1, len(ops1)
    pend = zops(si + 1) if si + 1 < len(steps) else []
    if ks == order[0]:
        pm = 0
        if n > 0 and STAMPS and ("u%d" % n in SEL or "Ru%d" % n in SEL):
            keep = list(C.lg); stamp(C, "u%d" % n); C.lg = keep
        if n > 0:
            p = accs[n - 1]
            epa = [("v_fmac_f32", V(SACC + k), V(p[(0, 0)] + k), V(p[(1, 0)] + k), "") for k in range(13)]
            epb = [("v_fmac_f32", V(SACC + k), V(p[(0, 1)] + k), V(p[(1, 1)] + k), "") for k in range(13)]
            if n == 1 and had1: free_quads += [246, 250]
            if n == 2: free_quads += list(range(40, 63, 4))
            if n == 3:
                sp = spare
                T1, RP = sp[0], sp[0] + 2
                tail_pre = [("v", "v_lshrrev_b32", V(MSK), 5, "v1", ""), ("v", "v_mul_u32_u24", V(SCL), RS, V(MSK), ""), ("v", "v_lshlrev_b32", V(MSK), 2, V(SCL), ""),
                            ("v", "v_add_u32", V(MSK), AIMG + 768, V(MSK), ""), ("v", "v_add_u32", V(SCL), AIMG + 768, V(SCL), "")]
                for k in range(13):
                    row = 8 * (k // 4) + k % 4; ar = V(SCL) if k == 12 else V(MSK)
                    tail_pre += [("r", "ds_read_b32", V(EXR + k), ar, row * RS), ("r", "ds_read_b32", V(EXU + k), ar, BS + row * RS)]
                tail_pre += [("v", "v_add3_u32", V(EXR + k), V(EXR + k), V(EXU + k), "v3", "") for k in range(13)]
                tail_pre += [("v", "v_and_b32", "v5", 15, "v1", ""),
                  ("s", "s_lshl_b32", "s5", "s3", 8), ("s", "s_add_u32", "s5", "s5", RING), ("v", "v_lshl_add_u32", V(T1), "v1", 2, "s5", ""),
                  ("v", "v_lshlrev_b32", "v5", 1, "v5", ""),
                  ("s", "s_lshl_b32", "s13", "s2", 2), ("s", "s_add_u32", "s13", "s13", "s3"), ("s", "s_lshl_b32", "s13", "s13", 5),
                  ]
                tail_pre += [("v", "v_ldexp_f32", V(SACC + k), V(SACC + k), V(EXR + k), "") for k in range(13)]
                for k in range(4, 13): tail_pre += [("v", "v_add_f32", V(SACC + k % 4), V(SACC + k % 4), V(SACC + k), "")]
                tail_pre += [("v", "v_add_f32", V(SACC + 1), "s96", V(SACC + 1), "")]
        else: epa, epb = [], []
    nblk = 2 if ks < 22 else 1
    for e, (blk, h) in enumerate(seq):
        if e == 0 or (e == 2 and nblk == 2): ui += 1; read_upto(ui - 1 + LOOK + (1 if False else 0))
        if e == 0 and OPT.get("mw", 1): C.wait(use_tok.get((si, 0)), use_tok.get((si, 1)))
        acc = accs[n][(blk, h)]
        first = (n, blk, h) not in first_of; first_of.add((n, blk, h))
        if first and blk == 0: assert not epa
        C.mfma("v_mfma_f32_32x32x16_f16", V(acc, 16), V(use_reg[(si, blk)], 4), V(ZR + 8 * (si % 2) + 4 * h, 4), 0 if first else V(acc, 16))
        pm += 1
        left = len(seq) - e
        cnt = len(pend) if left <= 1 else min(len(pend), -(-len(pend) // left) + (1 if left == 2 and len(seq) == 4 else 0))
        for o in pend[:cnt]: emitv(C, o)
        pend = pend[cnt:]
        if epa:
            for _ in range(4 if n == 3 else (2 if ks >= 22 else 3)):
                if epa: emitv(C, epa.pop(0))
        elif epb and pm >= 4:
            for _ in range(2):
                if epb: emitv(C, epb.pop(0))
        elif ops1 and cnt <= 3:
            for _ in range(5 - cnt if cnt < 3 else 1):
                if ops1: emitv(C, ops1.pop(0))
        elif tail_pre and not epb and cnt <= 2:
            for _ in range(2):
                if not tail_pre: break
                o = tail_pre.pop(0)
                if o[0] == "v": emitv(C, o[1:])
                elif o[0] == "r": C.dsr(*o[1:])
                elif o[0] == "s": C.s(*o[1:])
                else: C.gload("global_load_ushort", "v6", "v5", "s[30:31]")
        if si == len(steps) - 4 and e == 0:
            assert not tail_pre, len(tail_pre)
            C.dsr("ds_read_b32", V(SACC + 5), "v2", CNT3)
            for j in range(4): C.dsr("ds_read_b32", V(RP + j), V(T1), j * RSZ)
        if si == len(steps) - 3 and e == 1:
            C.v("v_readfirstlane_b32", "s10", V(SACC + 5))
        if (si == len(steps) - 2 and e == 3) or (si == len(steps) - 1 and e == 0):
            hh = 0 if e == 3 else 1
            for k in range(13): C.v("v_ldexp_f32", V(accs[3][(0, hh)] + k), V(accs[3][(0, hh)] + k), V(EXR + k))
stamp(C, 9)
p = accs[3]
C.s("s_cmp_lt_u32", "s10", 4)
C.s("s_cbranch_scc1", "L_C_slow")
SL = Stream()
SL.label("L_C_slow")
SL.s("s_setprio", 0)
lds_wait(SL, 2, KAP, CNT3, 4, "L_C_w3", sleep=1)
for j in range(4): SL.dsr("ds_read_b32", V(RP + j), V(T1), j * RSZ)
SL.waitcnt(None, 0)
SL.s("s_branch", "L_C_fin")
C.label("L_C_fin")
for j in range(4): C.v("v_add_f32", V(SACC + j), V(SACC + j), V(RP + j))
for h in range(2):
    for k in range(13): C.v("v_fmac_f32", V(SACC + k % 4), V(p[(0, h)] + k), V(p[(1, h)] + k))
C.v("v_add_f32", V(SACC), V(SACC), V(SACC + 1)); C.v("v_add_f32", V(SACC + 2), V(SACC + 2), V(SACC + 3)); C.v("v_add_f32", V(SACC), V(SACC), V(SACC + 2))
C.v("v_mov_b32", V(SACC + 1), V(SACC)); C.v("v_permlane32_swap_b32", V(SACC), V(SACC + 1)); C.v("v_add_f32", V(SACC), V(SACC), V(SACC + 1))
C.v("v_mov_b32", V(SACC + 1), V(SACC)); C.v("v_permlane16_swap_b32", V(SACC), V(SACC + 1))
C.v("v_add_f32", V(SACC), V(SACC), V(SACC + 1))
C.v("v_cvt_pk_bf16_f32", V(SACC), V(SACC), V(SACC))
if OPT.get("dl", 0):
    C.label("L_dl")
    C.raw("s_memrealtime s[66:67]", 'misc'); C.raw("s_waitcnt lgkmcnt(0)", 'wait')
    C.s("s_sub_u32", "s5", "s66", "s100"); C.s("s_cmp_lt_u32", "s5", OPT["dl"]); C.s("s_cbranch_scc1", "L_dl")
if OPT.get("dmask", 0):
    C.s("s_and_b32", "s5", "s2", 7); C.s("s_lshr_b32", "s5", OPT["dmask"], "s5"); C.s("s_and_b32", "s5", "s5", 1)
    C.s("s_cmp_eq_u32", "s5", 0); C.s("s_cbranch_scc1", "L_nodelay")
    C.raw("s_memrealtime s[64:65]", 'misc'); C.raw("s_waitcnt lgkmcnt(0)", 'wait')
    C.label("L_delay")
    C.s("s_sleep", 2)
    C.raw("s_memrealtime s[66:67]", 'misc'); C.raw("s_waitcnt lgkmcnt(0)", 'wait')
    C.s("s_sub_u32", "s5", "s66", "s64"); C.s("s_cmp_lt_u32", "s5", OPT["dus"]); C.s("s_cbranch_scc1", "L_delay")
    C.label("L_nodelay")
C.s("s_mov_b64", "exec", "0xffff")
C.bstore("buffer_store_short", V(SACC), "v5", S(R_OUT, 4), "s13")
if STAMPS:
    C.s("s_mov_b64", "exec", -1)
    stamp(C, 10)
    dump_stamps(C, 250, 251)
C.s("s_endpgm")

WOF, BF, MD, MA, NF, LUT, IDN, MF, TD, TF, SD, FAC, LA = 44, 48, 92, 236, 140, 148, 164, 172, 180, 196, 204, 156, 220
lut = [[None] * 16 for _ in range(64)]
for l in range(64):
    j, hfc = l & 31, l >> 5
    for k in range(14):
        q = 8 * (k // 4) + 4 * hfc + k % 4
        if q < 26 and j <= 26 and q <= j:
            hf, di, half = sm.target[(q, j)]
            lut[l][k] = hf * 384 + di * 4 + half * 2
hf, di, half = sm.target[(26, 26)]
lut[0][14] = hf * 384 + di * 4 + half * 2
def emask(k): return sum(1 << l for l in range(64) if lut[l][k] is not None)
fac = [[0x3c003c00] * 4 for _ in range(64)]
for a_ in range(26):
    hf, di, half = sm.target[(a_, a_)]
    l = hf * 24 + di // 4
    fac[l][di % 4] = (fac[l][di % 4] & ~(0xffff << (16 * half))) | (0x3800 << (16 * half))
def producer(Q, typ):
    tag = "u" if typ == 1 else "x"
    Q.label("L_P1" + tag)
    Q.s("s_setprio", 3)
    BB = "pb" if typ == 1 else OPT.get("bbx", "pa")
    if typ == 1: Q.s("s_lshl_b32", "s39", "s15", 2)
    else: Q.s("s_sub_u32", "s39", "s15", 7); Q.s("s_lshl_b32", "s39", "s39", 2)
    Q.s("s_add_u32", "s39", "s39", "s3")
    Q.s("s_mul_i32", "s93", "s39", 52 if typ == 1 else 1352)
    if typ == 1: Q.s("s_add_u32", "s93", "s93", 35152)
    Q.v("v_and_b32", "v29", 31, "v1"); Q.v("v_lshrrev_b32", "v30", 5, "v1")
    Q.v("v_mul_u32_u24", "v31", 1352 if typ == 1 else 52, "v29"); Q.v("v_lshl_add_u32", "v31", "v30", 4, "v31")
    Q.bload("buffer_load_dwordx4", V(NF, 4), "v31", S(R_CIN, 4), "s93")
    Q.bload("buffer_load_dwordx4", V(NF + 4, 4), "v31", S(R_CIN, 4), "s93", 32)
    Q.raw("s_add_u32 s94, s94, L_lut-L_pc", 'salu'); Q.raw("s_addc_u32 s95, s95, 0", 'salu')
    for c in range(3): Q.gload("global_load_dwordx4", V(LUT + 4 * c, 4), "v32", "s[94:95]", c * 1024)
    if typ == 1:
        Q.s("s_mov_b32", S(R_WO + 2), 156); srd(Q, R_WO, 22)
        Q.v("v_and_b32", "v35", 48, "v1"); Q.v("v_lshlrev_b32", "v34", 1, "v29")
        Q.bload("buffer_load_dwordx4", V(WOF, 4), "v35", S(R_WO, 4), 0, 104)
        Q.bload("buffer_load_ushort", "v34", "v34", S(R_WO, 4), 0, 52)
        Q.s("s_lshl_b32", "s5", "s39", 1); Q.v("v_mov_b32", "v35", 0)
        Q.bload("buffer_load_ushort", "v35", "v35", S(R_WO, 4), "s5")
    def w3_dma(ms, issue=True):
        tk = None
        for m in ms:
            src = "v1"
            if m: Q.v("v_add_u32", "v22", 64 * m, "v1"); src = "v22"
            Q.v("v_mul_u32_u24", "v20", 2979, src); Q.s("s_add_u32", "m0", "s90", 1024 * m); Q.v("v_lshrrev_b32", "v20", 16, "v20")
            Q.v("v_mul_u32_u24", "v20", 1000, "v20"); Q.v("v_lshl_add_u32", V(112 + m), src, 4, "v20")
            if issue: tk = Q.dma(V(112 + m), S(R_CIN, 4), "s91")
        return tk
    if typ == 1:
        Q.s("s_mul_i32", "s90", "s3", 11264); Q.s("s_add_u32", "s90", "s90", W3S)
        Q.s("s_mul_i32", "s91", "s3", 352); Q.s("s_add_u32", "s91", "s91", 70304)
        w3_dma(range(OPT.get("w3a", 4)))
    if BB == "pa": Q.s("s_barrier")
    Q.s("s_branch", "L_P2" + tag)
    Q.label("L_P2" + tag)
    stamp(Q, 2)
    c_setup2(Q)
    Q.s("s_lshl_b32", "s5", "s3", 10); Q.s("s_add_u32", "s92", "s5", STG)
    Q.v("v_add_u32", "v41", "s92", "v32")
    Q.dsw("ds_write_b128", "v41", "v[24:27]")
    if typ == 1:
        Q.v("v_add_u32", "v42", "s90", "v32"); Q.dsw("ds_write_b128", "v42", "v[24:27]", 9216); Q.dsw("ds_write_b128", "v42", "v[24:27]", 10240)
        Q.s("s_mov_b64", "exec", "0xffffff")
        Q.v("v_add_u32", "v42", M3B + 26 * 64, "v32"); Q.dsw("ds_write_b128", "v42", "v[24:27]")
        Q.s("s_mov_b64", "exec", -1)
        Q.v("v_lshlrev_b32", "v43", 6, "v29"); Q.v("v_add_u32", "v43", M3B, "v43"); Q.dsw("ds_write_b64", "v43", "v[24:25]", 56)
    Q.v("v_and_b32", "v36", 1, "v29"); Q.v("v_lshlrev_b32", "v36", 4, "v36")
    Q.v("v_mov_b32", "v37", "0x3f80"); Q.v("v_lshlrev_b32", "v37", "v36", "v37")
    Q.v("v_cmp_gt_u32", "vcc", 26, "v29"); Q.v("v_lshrrev_b32", "v38", 1, "v29")
    Q.v("v_lshlrev_b32", "v39", 2, "v30"); Q.v("v_cndmask_b32", "v37", 0, "v37", "vcc")
    Q.v("v_sub_u32", "v39", "v38", "v39")
    Q.v("v_lshlrev_b32", "v40", 1, "v30"); Q.v("v_sub_u32", "v40", "v38", "v40")
    def ident(dst, vsel, key):
        for s_ in range(2):
            for m in range(0, 4, 2):
                Q.v("v_cmp_eq_u32", "vcc", key(s_, m), vsel); Q.v("v_cmp_eq_u32", "s[96:97]", key(s_, m + 1), vsel)
                Q.v("v_cndmask_b32", V(dst + 4 * s_ + m), 0, "v37", "vcc"); Q.v("v_cndmask_b32", V(dst + 4 * s_ + m + 1), 0, "v37", "s[96:97]")
    ident(IDN, "v39", lambda s_, m: 8 * s_ + m)
    if typ == 2: ident(MF, "v40", lambda s_, m: 8 * s_ + 4 * (m >> 1) + (m & 1))
    Q.s("s_mul_i32", "s93", "s39", RS)
    if typ == 1: Q.s("s_add_u32", "s93", "s93", BS)
    Q.v("v_mov_b32", "v36", "s92")
    if typ == 1:
        Q.v("v_lshrrev_b32", "v38", 4, "v1"); Q.v("v_bfe_u32", "v39", "v1", 2, 2); Q.v("v_lshl_add_u32", "v38", "v38", 3, "v39"); Q.v("v_mul_u32_u24", "v38", 352, "v38")
        Q.v("v_and_b32", "v40", 3, "v1"); Q.v("v_lshl_add_u32", "v38", "v40", 3, "v38"); Q.v("v_add_u32", "v28", "s90", "v38")
        Q.v("v_lshl_add_u32", "v39", "v30", 2, "v39"); Q.v("v_lshlrev_b32", "v39", 6, "v39"); Q.v("v_lshl_add_u32", "v39", "v40", 3, "v39")
        Q.v("v_and_b32", "v40", 16, "v1"); Q.v("v_lshl_add_u32", "v39", "v40", 1, "v39"); Q.v("v_add_u32", "v42", M3B, "v39")
        Q.s("s_mul_i32", "s5", "s3", 176); Q.v("v_add_u32", "v38", "s5", "v1")
        Q.v("v_mov_b32", "v43", M3B)
        for i in range(3):
            if i: Q.v("v_add_u32", "v38", 64, "v38")
            Q.v("v_mul_u32_u24", "v39", 2521, "v38"); Q.v("v_lshrrev_b32", "v39", 16, "v39")
            Q.v("v_mad_u32_u24", "v39", "v39", 12, "v43"); Q.v("v_lshl_add_u32", V(MA + i), "v38", 1, "v39")
        Q.v("v_cmp_gt_u32", "vcc", 676, "v38")
        Q.s("s_and_b32", "s15", "vcc_hi", "0xffff"); Q.s("s_mov_b32", "s14", "vcc_lo")
        Q.v("v_lshl_add_u32", "v43", "v29", 6, "v43")
    stamp(Q, "pa")
    if typ == 1:
        w3t = w3_dma(range(OPT.get("w3a", 4), 9))
        if OPT.get("pa2", 1): Q.waitcnt(None, 0); Q.s("s_barrier")
    Q.mfma("v_mfma_f32_32x32x16_bf16", V(TD, 16), V(NF, 4), V(IDN, 4), 0)
    Q.mfma("v_mfma_f32_32x32x16_bf16", V(TD, 16), V(NF + 4, 4), V(IDN + 4, 4), V(TD, 16))
    for k in range(15):
        Q.v("v_add_u32_sdwa", V(LA + k), "v36", V(LUT + k // 2), mods=f"dst_sel:DWORD dst_unused:UNUSED_PAD src0_sel:DWORD src1_sel:WORD_{k&1}")
    for m in range(8): Q.v("v_cvt_pk_bf16_f32", V(TF + m), V(TD + 2 * m), V(TD + 2 * m + 1))
    c_xform(Q)
    if typ == 1:
        Q.s("s_mov_b64", "exec", "0x3ffffff")
        Q.dsw("ds_write_b32", "v43", "v34", 52)
        Q.s("s_mov_b64", "exec", -1)
        Q.v("v_lshlrev_b32", "v35", 16, "v35")
        for q in range(4):
            Q.s("s_mov_b32", "s10", "0x%x" % (0x000f000f << (4 * q))); Q.s("s_mov_b32", "s11", "s10")
            for e in range(4): Q.v("v_cndmask_b32", V(MD + 16 + 4 * q + e), 0, V(WOF + e), "s[10:11]")
        Q.wait(w3t)
        stamp(Q, "pw")
        for T in range(11):
            for h in range(2): Q.dsr("ds_read_b64_tr_b16", V(BF + 4 * T + 2 * h, 2), "v28", 32 * T + 4 * 352 * h)
        for T in range(11):
            i = T // 4
            Q.mfma("v_mfma_f32_16x16x32_bf16", V(MD + 4 * i, 4), V(MD + 16 + 4 * (T % 4), 4), V(BF + 4 * T, 4), 0 if T % 4 == 0 else V(MD + 4 * i, 4))
        for i in range(3):
            Q.v("v_cvt_pk_bf16_f32", V(MD + 4 * i), V(MD + 4 * i), V(MD + 4 * i))
            if i == 2: Q.s("s_mov_b64", "exec", "s[14:15]")
            Q.dsw("ds_write_b16", V(MA + i), V(MD + 4 * i))
        if OPT.get("pa2", 1):
            lds_signal(Q, 2, 6, MCNT)
            stamp(Q, "pb")
            lds_wait(Q, 2, 44, MCNT, 4, "L_P_wm")
        else:
            Q.s("s_mov_b64", "exec", -1)
            stamp(Q, "pb")
            Q.waitcnt(None, 0)
            Q.s("s_barrier")
        for s_ in range(2):
            for jj in range(2): Q.dsr("ds_read_b64_tr_b16", V(MF + 4 * s_ + 2 * jj, 2), "v42", (16 * s_ + 8 * jj) * 64)
    aops = []
    if typ == 2 and OPT.get("xb1", 1):
        Q.waitcnt(None, 0); Q.s("s_barrier")
    for n_, mm in enumerate(((TF, MF, 0), (TF + 4, MF + 4, V(SD, 16)), (MF, TF, V(SD, 16)), (MF + 4, TF + 4, V(SD, 16)))):
        Q.mfma("v_mfma_f32_32x32x16_bf16", V(SD, 16), V(mm[0], 4), V(mm[1], 4), mm[2])
        c_ = 0 if n_ < 3 else 10
        for o in aops[:c_]: emitv(Q, o)
        aops = aops[c_:]
    ne = 15 if typ == 1 else 14
    if typ == 1: Q.v("v_mov_b32", V(SD + 14), "v35")
    Q.v("v_max3_f32", "v44", f"|{V(SD)}|", f"|{V(SD+1)}|", f"|{V(SD+ne-1)}|")
    Q.v("v_max3_f32", "v45", f"|{V(SD+2)}|", f"|{V(SD+3)}|", f"|{V(SD+4)}|")
    for k in range(5, 13, 4):
        Q.v("v_max3_f32", "v44", f"|{V(SD+k)}|", f"|{V(SD+k+1)}|", "v44"); Q.v("v_max3_f32", "v45", f"|{V(SD+k+2)}|", f"|{V(SD+k+3)}|", "v45")
    Q.v("v_max3_f32", "v44", f"|{V(SD+13)}|", "v45", "v44")
    for sh in (8, 4, 2, 1):
        for o in aops[:2]: emitv(Q, o)
        aops = aops[2:]
        Q.v("v_max_f32_dpp", "v44", "v44", "v44", mods=f"row_ror:{sh} row_mask:0xf bank_mask:0xf")
    for q in range(4): Q.v("v_readlane_b32", S(8 + q), "v44", 16 * q)
    stamp(Q, "pc")
    if BB == "pc": Q.s("s_barrier")
    Q.s("s_max_u32", "s8", "s8", "s9"); Q.s("s_max_u32", "s10", "s10", "s11"); Q.s("s_max_u32", "s8", "s8", "s10")
    Q.s("s_lshr_b32", "s8", "s8", 23); Q.s("s_max_u32", "s8", "s8", 67); Q.s("s_min_u32", "s8", "s8", 187)
    Q.s("s_sub_u32", "s9", 268, "s8"); Q.s("s_lshl_b32", "s9", "s9", 23)
    Q.s("s_cmp_ge_u32", "s39", 26); Q.s("s_cselect_b32", "s9", 0, "s9")
    for k in range(ne): Q.v("v_mul_f32", V(SD + k), "s9", V(SD + k))
    for k in range(0, ne, 2): Q.v("v_cvt_pk_f16_f32", V(SD + k), V(SD + k), V(SD + min(k + 1, ne - 1)))
    for k in range(ne):
        Q.dsw("ds_write_b16_d16_hi" if k & 1 else "ds_write_b16", V(LA + k), V(SD + (k & ~1)))
    Q.dsr("ds_read_b128", "v[240:243]", "v41")
    for o in aops[:10]: emitv(Q, o)
    aops = aops[10:]
    for e in range(4): Q.v("v_pk_mul_f16", V(240 + e), V(240 + e), V(FAC + e))
    if OPT.get("a8", 0):
        Q.v("v_mov_b32", "v46", "0x00040004"); Q.v("v_mov_b32", "v47", "0xfff8fff8")
        for e in range(4): Q.v("v_pk_add_u16", V(240 + e), V(240 + e), "v46")
        for e in range(4): Q.v("v_and_b32", V(240 + e), "v47", V(240 + e))
    Q.s("s_cmp_ge_u32", "s39", 27)
    Q.v("v_writelane_b32", "v240", "s8", 48)
    Q.s("s_cbranch_scc1", "L_P_skip" + tag)
    Q.cond = True
    Q.s("s_mov_b32", "exec_hi", "0x1ffff")
    Q.bstore("buffer_store_dwordx4", "v[240:243]", "v32", S(R_WS, 4), "s93", mods=SC1)
    Q.s("s_mov_b32", "exec_hi", -1)
    Q.cond = False
    Q.label("L_P_skip" + tag)
    stamp(Q, "pd")
    Q.s("s_mov_b32", "s38", 1); Q.s("s_mov_b32", "s91", 1)
    Q.s("s_lshr_b32", "s5", "s2", 3); Q.s("s_lshl_b32", "s90", 1, "s5")
    Q.waitcnt(None, 0)
    if not (typ == 2 and OPT.get("xb1", 1)): Q.s("s_barrier")
    stamp(Q, 3)
    Q.s("s_setprio", OPT.get("pprio", 0))
    Q.s("s_branch", "L_C_join")
CP.s("s_cmp_ge_u32", "s15", 7)
CP.s("s_cbranch_scc1", "L_P1x")
CX = CP.fork()
producer(CP, 1)
producer(CX, 2)

D.label("L_D2")
wt = D.gload("global_load_dword", "v15", "v9", "s[28:29]")
D.v("v_lshrrev_b32", "v10", 5, "v1"); D.v("v_bfe_u32", "v11", "v1", 2, 3); D.v("v_lshl_add_u32", "v11", "v10", 4, "v11"); D.v("v_mul_u32_u24", "v11", 224, "v11")
D.v("v_and_b32", "v12", 3, "v1"); D.v("v_lshl_add_u32", "v11", "v12", 3, "v11"); D.v("v_add_u32", "v9", "s7", "v11")
D.s("s_lshr_b32", "s5", "s39", 4); D.v("v_xor_b32", "v10", "s5", "v10")
D.v("v_and_b32", "v11", 15, "v1"); D.v("v_mul_u32_u24", "v11", 104, "v11"); D.v("v_lshl_add_u32", "v11", "v10", 2, "v11")
D.s("s_mul_i32", "s5", "s14", 32 * 104); D.s("s_sub_u32", "s9", 32 * 104, "s5")
D.v("v_add_u32", V(DT + 8), "s5", "v11"); D.v("v_add_u32", V(DT + 9), "s9", "v11")
D.v("v_and_b32", "v12", 16, "v1")
D.s("s_lshl_b32", "s10", "s4", 3)
D.s("s_lshl_b32", "s5", "s6", 10); D.s("s_add_u32", "s5", "s5", DSC)
D.v("v_lshl_add_u32", "v13", "v1", 3, "s5")
D.v("v_and_b32", "v10", 48, "v1"); D.v("v_add_u32", V(DT + 10), "s5", "v10")
D.v("v_lshlrev_b32", V(DT), 16, "v14"); D.v("v_and_b32", V(DT + 1), "0xffff0000", "v14")
D.dsw("ds_write_b64", "v13", V(DT, 2))
for b in range(7): D.dsr("ds_read_b128", V(BI + 4 * b, 4), V(DT + 10), 64 * b)
def i_base():
    D.v("v_add_u32", "v10", "s10", V(DT + 8)); D.v("v_add_u32", "v11", "s10", V(DT + 9))
def i_adv():
    D.s("s_add_u32", "s10", "s10", 8); D.s("s_cmp_eq_u32", "s10", 104); D.s("s_cselect_b32", "s10", 0, "s10")
def i_reads(t): return [("ds_read_b32", V(GI + 4 * (t & 1) + sb), "v10" if sb < 2 else "v11", IDXS + (sb & 1) * 16 * 104) for sb in range(4)]
def i_addr(t):
    L = []
    for k in range(4): L += gaddr_ops(GI + 4 * (t & 1) + k, GI + 4 * (t & 1) + k, 12, DT + 4 + k)
    return L
def w_reads(t):
    return [("ds_read_b64_tr_b16", V(WF + 28 * (t & 1) + 4 * b + 2 * h, 2), "v9", (t % NS) * SLOT + 32 * b + 8 * 224 * h) for b in range(7) for h in range(2)]
def x_reads(t): return [("ds_read_b128", V(XF + 16 * (t & 1) + 4 * sb, 4), V(GI + 4 * (t & 1) + sb), TAB) for sb in range(4)]
i_base(); i_adv()
if not OPT.get("w1late", 1):
    for m in range(7): w_m0(1, m); w_piece(1, m)
    w_adv(1)
wtok = {}
D.wait(tabt)
stamp(D, 8)
D.s("s_barrier")
stamp(D, 3)
D.s("s_setprio", 2)
for o in i_reads(0): D.dsr(*o)
i_base(); i_adv()
a0 = i_addr(0); xr0 = x_reads(0)
for sb in range(4):
    emitv(D, a0[sb]); D.dsr(*xr0[sb])
if OPT.get("w1late", 1):
    for m in range(7): w_m0(1, m); w_piece(1, m)
    w_adv(1)
D.wait(dmat[0])
stamp(D, 7)
for o in w_reads(0): wtok[0] = D.dsr(*o)
for o in i_reads(1): D.dsr(*o)
tiles = [(b, sb) for sb in range(4) for b in range(6)]
tiles = tiles[:6] + [(6, 0)] + tiles[6:12] + [(6, 1)] + tiles[12:]
if OPT.get("tord", 0) == 1: tiles = [(b, sb) for b in range(6) for sb in range(4)] + [(6, 0), (6, 1)]
if OPT.get("tord", 0) == 2:
    tiles = []
    for b in range(6): tiles += [(b, sb) for sb in (range(4) if b % 2 == 0 else range(3, -1, -1))]
    tiles += [(6, 0), (6, 1)]
def tacc(b, sb): return DACC + 4 * (4 * b + sb)
WSTART = OPT.get("wstart", 11)
for t in range(13):
    sched = {k: [] for k in range(26)}
    if t + 1 < 13:
        av = i_addr(t + 1); xr = x_reads(t + 1)
        for sb in range(4): sched[2 * sb + 1] += [("v", av[sb]), ("r", xr[sb])]
        sched[WSTART] += [("wait", t + 1)]
        for n, o in enumerate(w_reads(t + 1)): sched[WSTART + n // 2] += [("w", o)]
    if t + 2 < 13:
        sched[0] += [("ww", t), ("m0", t + 2, 0)]
        for m in range(7):
            k = [2, 4, 6, 8, 10, 20, 22][m] if OPT.get("dsp", 0) else 2 + 2 * m if m < 4 else 2 * m + 1
            k = {0: 2, 1: 4, 2: 6, 3: 8, 4: 10, 5: 19, 6: 21}[m] if OPT.get("dsp", 0) else {0: 2, 1: 4, 2: 6, 3: 8, 4: 9, 5: 10, 6: 10}[m]
            sched[k] += [("dma", t + 2, m)]
            if m == 3: sched[k] += [("m0", t + 2, 4)]
        sched[22] += [("adv", t + 2)]
        sched[WSTART + 7] += [("ib",)]
        for n, o in enumerate(i_reads(t + 2)): sched[WSTART + 8 + n // 2] += [("r", o)]
    if t in (1, 2, 5, 9): stamp(D, {1: "mx", 2: "pf", 5: 6, 9: 9}[t])
    for k, (b, sb) in enumerate(tiles):
        acc = tacc(b, sb)
        D.mfma("v_mfma_f32_16x16x32_bf16", V(acc, 4), V(WF + 28 * (t & 1) + 4 * b, 4), V(XF + 16 * (t & 1) + 4 * sb, 4), V(BI + 4 * b, 4) if t == 0 else V(acc, 4))
        for f in sched[k]:
            if f[0] == "v": emitv(D, f[1])
            elif f[0] == "r": D.dsr(*f[1])
            elif f[0] == "w": wtok[t + 1] = D.dsr(*f[1])
            elif f[0] == "wait": D.wait(dmat[f[1]])
            elif f[0] == "ww": D.wait(wtok[f[1]])
            elif f[0] == "ib": i_base(); i_adv()
            elif f[0] == "m0": w_m0(f[1], f[2])
            elif f[0] == "dma": w_piece(f[1], f[2])
            elif f[0] == "adv": w_adv(f[1])
stamp(D, 4)
D.s("s_setprio", 0)
D.v("v_mov_b32", V(DT + 4), f32(2.0 ** 100))
D.v("v_lshlrev_b32", V(DT + 2), 16, "v15"); D.v("v_and_b32", V(DT + 3), "0xffff0000", "v15")
D.v("v_rcp_f32", V(DT + 2), V(DT + 2)); D.v("v_rcp_f32", V(DT + 3), V(DT + 3))
D.v("v_med3_f32", V(DT + 2), V(DT + 2), V(DT + 4), "-" + V(DT + 4)); D.v("v_med3_f32", V(DT + 3), V(DT + 3), V(DT + 4), "-" + V(DT + 4))
D.dsw("ds_write_b64", "v13", V(DT + 2, 2), 512)
for b in range(7): D.dsr("ds_read_b128", V(BI + 4 * b, 4), V(DT + 10), 512 + 64 * b)
VK1, VK2, SS, GT = 120, 121, 124, 128
D.v("v_mov_b32", V(VK1), f32(K1)); D.v("v_mov_b32", V(VK2), f32(K2))
for r in range(4): D.v("v_mov_b32", V(SS + r), 0)
D.v("v_mov_b32", "v8", MISC); D.v("v_mov_b32", "v9", 1)
def gelu(items):
    for g0 in range(0, len(items), 4):
        grp = items[g0:g0 + 4]
        t = [GT + 4 * ((g0 // 4) & 1) + i for i in range(len(grp))]
        for (x, w, s), r in zip(grp, t): D.v("v_mul_f32", V(r), V(x), V(x))
        for (x, w, s), r in zip(grp, t): D.v("v_fma_f32", V(r), V(r), V(VK2), V(VK1))
        for (x, w, s), r in zip(grp, t): D.v("v_mul_f32", V(r), V(x), V(r))
        for (x, w, s), r in zip(grp, t): D.v("v_exp_f32", V(r), V(r))
        for (x, w, s), r in zip(grp, t): D.v("v_fma_f32", V(r), V(r), V(w), V(w))
        for (x, w, s), r in zip(grp, t): D.v("v_rcp_f32", V(r), V(r))
        for (x, w, s), r in zip(grp, t): D.v("v_fmac_f32", V(s), V(x), V(r))
its = []
for b in range(7):
    for r in range(4):
        for sb in range(4 if b < 6 else 2): its.append((tacc(b, sb) + r, BI + 4 * b + r, SS + sb))
gelu(its)
D.s("s_lshl_b32", "s5", "s14", 9); D.s("s_add_u32", "s9", "s7", "s5"); D.s("s_sub_u32", "s5", "s7", "s5"); D.s("s_add_u32", "s5", "s5", 512)
D.v("v_lshl_add_u32", "v10", "v1", 2, "s9"); D.v("v_lshl_add_u32", "v11", "v1", 2, "s5")
for sb in range(4): D.dsw("ds_write_b32", "v10" if sb < 2 else "v11", V(SS + sb), 256 * (sb & 1))
lds_signal(D, 8, 9, CNT3)
stamp(D, 10)
dump_stamps(D, 10, 11)
D.label("L_end")
D.s("s_endpgm")

lt = ".p2align 6\n.type L_lut,@object\nL_lut:\n"
for c in range(2):
    for l in range(64):
        dm = 800 + 4 * (l & 31)
        g_ = lambda x: dm if x is None else x
        w = [(g_(lut[l][8 * c + 2 * e]) | (g_(lut[l][8 * c + 2 * e + 1]) << 16)) for e in range(4)]
        lt += "  .long " + ", ".join("0x%08x" % x for x in w) + "\n"
for l in range(64): lt += "  .long " + ", ".join("0x%08x" % x for x in fac[l]) + "\n"
lt += ".size L_lut, 3072\nL_lut_end:\n"

ctext = C.text()
cut = ctext.index("L_CN:")
pt, xt = CP.text(), CX.text()
pc_, xc_ = pt.index("L_P2u:"), xt.index("L_P2x:")
dt1 = D1.text(); dc_ = dt1.index("L_D1:")
body = dt1[:dc_] + ctext[:cut] + pt[:pc_] + xt[:xc_] + dt1[dc_:] + ctext[cut:] + SL.text() + AS.text() + pt[pc_:] + xt[xc_:] + D.text()
hdr = open("standalone__deep_cross_xdeepfm__recsys.s.ref").read().split("; @launch")[0]
src = hdr + f"; @launch grid=(256,1,1) block=(512,1,1) lds={LDS_TOTAL}\n"
src += f""".amdgcn_target "amdgcn-amd-amdhsa--gfx950"
.text
.globl {NAME}
.p2align 8
.type {NAME},@function
{NAME}:
""" + body + lt + f""".section .rodata,"a"
.p2align 6
.amdhsa_kernel {NAME}
  .amdhsa_next_free_vgpr 256
  .amdhsa_next_free_sgpr 102
  .amdhsa_accum_offset 256
  .amdhsa_group_segment_fixed_size 0
  .amdhsa_kernarg_size 88
  .amdhsa_user_sgpr_count 2
  .amdhsa_user_sgpr_kernarg_segment_ptr 1
  .amdhsa_system_sgpr_workgroup_id_x 1
.end_amdhsa_kernel
"""
open(sys.argv[1], "w").write(src)
for n_, s_ in (("D1", D1), ("C", C), ("CP", CP), ("CX", CX), ("D", D)): print(n_, s_.stats(), "nops", s_.nops)
print("LDS", LDS_TOTAL)
```

```python
import sys, struct
from asmlib import *
import slotmap as sm

NAME = "standalone__deep_cross_xdeepfm__recsys_kernel"
OPT = dict(stamps=0, ns=2, nstg=6)
for a in sys.argv[2:]:
    k, v = a.split("="); OPT[k] = int(v) if v.lstrip("-").isdigit() else v
STAMPS = OPT["stamps"]

TAB = 0
IDXS = 32768
AIMG = IDXS + 6656 + 512
RS = 784
BS = 27 * RS
NS = OPT["ns"]
W3S = AIMG
RING = W3S + 4 * 11264
assert 2 * BS <= 4 * 11264
SLOT = 7168
RSZ = NS * SLOT
MISC = RING + 4 * RSZ
CNT2, CNT3, MCNT, PCNT, RDY, CLAIM, MCNT2 = 0, 4, 8, 12, 16, 32, 36
M3B = MISC + 64
STG = M3B + 2048 + 64
DSC = STG + 4096
LDS_TOTAL = DSC + 4096
assert LDS_TOTAL <= 163840 and AIMG % 16 == 0
def f32(x): return "0x%08x" % struct.unpack("<I", struct.pack("<f", x))[0]
K1 = -2.0 * 0.7978845608028654 * 1.4426950408889634
K2 = K1 * 0.044715
SC1 = "sc1"
def frag_id(blk, ks): return (blk, ks)

SEL = str(OPT.get("sel", "")).split(",")
def stamp(st, name):
    if name == 0 or name == 10: idx = name
    else:
        if "R" + str(name) in SEL and STAMPS:
            j = 1 + SEL.index("R" + str(name))
            st.raw(f"s_memrealtime s[{64+2*j}:{65+2*j}]", 'misc')
            st.lg.append(Tok('lg', [], True, True))
        if str(name) in SEL: idx = 1 + SEL.index(str(name)); assert idx <= 9
        else: return
    if STAMPS:
        st.raw(f"s_memtime s[{64+2*idx}:{65+2*idx}]", 'misc')
        st.lg.append(Tok('lg', [], True, True))
def dump_stamps(st, vt, va):
    if not STAMPS: return
    if OPT.get("dbgdump"):
        if st is not C: return
        st.raw("s_memrealtime s[84:85]", 'misc')
        st.waitcnt(None, 0)
        st.s("s_cmp_eq_u32", "s2", 100); st.s("s_cbranch_scc0", "L_dd"); st.s("s_cmp_eq_u32", "s3", 0); st.s("s_cbranch_scc0", "L_dd")
        st.s("s_mov_b64", "exec", 1)
        st.v("v_mov_b32", V(va), 0)
        for i in range(1, 11):
            st.s("s_sub_u32", "s5", f"s{64+2*i}", "s100")
            st.v("v_mov_b32", V(vt), "s5")
            st.bstore("buffer_store_dword", V(vt), V(va), S(R_DBG, 4), 0, 12 + 4 * i)
        st.label("L_dd")
        return
    st.raw("s_memrealtime s[98:99]", 'misc')
    st.waitcnt(None, 0)
    st.s("s_mov_b32", "s86", "s100"); st.s("s_mov_b32", "s88", "s98"); n = 13
    st.s("s_lshl_b32", "s5", "s2", 3); st.s("s_add_u32", "s5", "s5", "s3"); st.s("s_lshl_b32", "s5", "s5", 6)
    st.s("s_add_u32", "s5", "s5", 0x100000)
    st.v("v_mov_b32", V(va), "s5")
    for i in range(n):
        st.v("v_mov_b32", V(vt), f"s{64+2*i}")
        st.gstore("global_store_dword", V(va), V(vt), "s[36:37]", off=4 * i)
    st.waitcnt(0, None)
def srd(st, r, base): st.s("s_mov_b64", S(r, 2), S(base, 2))
def srd_const(st, r, size):
    st.s("s_mov_b32", S(r + 2), size); st.s("s_mov_b32", S(r + 3), "0x20000")
def lds_signal(st, vaddr, vone, off):
    st.s("s_mov_b64", "exec", 1)
    st.dsw("ds_add_u32", V(vaddr), V(vone), off)
    st.s("s_mov_b64", "exec", -1)
def lds_wait(st, vaddr, vtmp, off, target, name, sleep=None):
    st.s("s_branch", name + "_in") if sleep is not None else None
    st.label(name)
    if sleep is not None:
        st.s("s_sleep", sleep); st.label(name + "_in")
    st.dsr("ds_read_b32", V(vtmp), V(vaddr), off)
    st.waitcnt(None, 0)
    st.v("v_readfirstlane_b32", "s5", V(vtmp))
    st.s("s_cmp_lt_u32", "s5", target)
    st.s("s_cbranch_scc1", name)
def gaddr_ops(dst, idx, vbase, tmp):
    return [("v_xor_b32", V(dst), V(idx), V(vbase), "")]
def emitv(st, o): st.v(o[0], o[1], *o[2:-1], mods=o[-1])

P = Stream()
stamp(P, 0)
if STAMPS or OPT.get("dl", 0) or OPT.get("dl2", 0): P.raw("s_memrealtime s[100:101]", 'misc')
ka = P.sload("s_load_dwordx16", "s[16:31]", "s[0:1]", 0)
P.v("v_lshrrev_b32", "v2", 6, "v0")
P.v("v_and_b32", "v1", 63, "v0")
P.s("s_cmp_ge_u32", "s2", 256)
P.v("v_readfirstlane_b32", "s3", "v2")
P.s("s_cbranch_scc1", "L_end")
if OPT.get("coldhop", 0):
    P.sload("s_load_dwordx2", "s[36:37]", "s[0:1]", 80)
    P.v("v_mov_b32", "v3", 0x8000000)
    P.waitcnt(None, 0)
    P.gload("global_load_dword", "v3", "v3", "s[36:37]")
    P.waitcnt(0, None)
P.raw("s_getpc_b64 s[94:95]", 'salu')
P.label("L_pc")
P.s("s_lshr_b32", "s15", "s2", 3)
P.s("s_and_b32", "s5", "s2", 7); P.s("s_sub_u32", "s5", "s5", OPT.get("cg0", 2)); P.s("s_cmp_lt_u32", "s5", 1); P.s("s_cselect_b32", "s38", "s15", 99)
R_TAB = 44
P.s("s_cmp_ge_u32", "s3", 4)
P.s("s_cbranch_scc1", "L_D1")
C = P.fork()
D = P
D.label("L_D1")
R_W1 = 40
DACC, WF, XF, BI, GI, DT = 16, 120, 176, 208, 236, 244
D.s("s_sub_u32", "s6", "s3", 4)
D.s("s_and_b32", "s5", "s15", 7); D.s("s_lshl_b32", "s5", "s5", 2); D.s("s_add_u32", "s5", "s5", "s6"); D.s("s_mul_i32", "s5", "s5", 9 * 128)
D.v("v_lshl_add_u32", "v8", "v1", 7, "s5")
D.raw("v_min_u32 v8, L_lut_end-L_pc-4, v8", 'misc')
D.s("s_mov_b64", "exec", "0x1ff")
D.gload("global_load_dword", "v255", "v8", "s[94:95]")
D.s("s_mov_b64", "exec", -1)
if STAMPS: D.sload("s_load_dwordx2", "s[36:37]", "s[0:1]", 80)
srd_const(D, R_W1, 416 * 832 + 4096); srd_const(D, R_TAB, 32000)
D.v("v_bfe_u32", "v33", "v1", 4, 1); D.v("v_xor_b32", "v33", "v33", "v1"); D.v("v_lshlrev_b32", "v33", 4, "v33")
D.s("s_lshl_b32", "s13", "s6", 13)
for n in range(4):
    D.s("s_add_u32", "s5", "s15", n); D.s("s_and_b32", "s5", "s5", 3); D.s("s_lshl_b32", "s5", "s5", 11); D.s("s_add_u32", S(8 + n), "s5", "s13")
D.s("s_add_u32", "s4", "s15", 18); D.s("s_bfe_u32", "s4", "s4", "0x40001"); D.s("s_sub_u32", "s5", "s4", 13); D.s("s_min_u32", "s4", "s4", "s5")
D.s("s_and_b32", "s39", "s15", 1); D.s("s_lshl_b32", "s39", "s39", 4)
D.s("s_mul_i32", "s12", "s4", 32 * 832)
D.s("s_mul_i32", "s7", "s6", RSZ); D.s("s_add_u32", "s7", "s7", RING)
D.s("s_and_b32", "s14", "s6", 1); D.s("s_lshr_b32", "s5", "s6", 1); D.s("s_mul_i32", "s5", "s5", 416); D.s("s_mul_i32", "s13", "s14", 192); D.s("s_add_u32", "s13", "s13", "s5")
D.s("s_lshl_b32", "s5", "s14", 1)
def dma_off(m):
    src = "v1"
    if m: D.v("v_add_u32", "v10", 64 * m, "v1"); src = "v10"
    D.v("v_mul_u32_u24", "v11", 4682, src); D.v("v_lshrrev_b32", "v11", 16, "v11")
    D.v("v_mad_i32_i24", "v12", "v11", -14, src); D.v("v_add_u32", "v12", "s5", "v12")
    D.v("v_subrev_u32", "v13", 14, "v12"); D.v("v_min_u32", "v12", "v12", "v13")
    D.v("v_lshrrev_b32", "v13", 1, "v11"); D.v("v_xor_b32", "v13", "v13", "v11"); D.v("v_and_b32", "v13", 4, "v13")
    D.v("v_mul_u32_u24", "v13", 3, "v13"); D.v("v_bitop3_b32", "v11", "v11", "v13", "s39", mods="bitop3:0x96")
    D.v("v_mul_u32_u24", "v11", 832, "v11"); D.v("v_lshl_add_u32", "v11", "v12", 4, "v11"); D.v("v_add_u32", V(2 + m), "s13", "v11")
    D.v("v_add_u32", V(2 + m), 4096 - 1024 * (m % 4), V(2 + m))
D.v("v_lshl_add_u32", "v10", "s14", 3, "v1"); D.v("v_subrev_u32", "v11", 56, "v10"); D.v("v_min_u32", "v10", "v10", "v11")
D.v("v_min_u32", "v10", 55, "v10"); D.v("v_lshl_add_u32", "v9", "v10", 2, "s13")
for m in range(4): dma_off(m)
HOLD = 1
D.wait(ka)
srd(D, R_TAB, 18)
bt = D.gload("global_load_dword", "v14", "v9", "s[26:27]")
D.s("s_sub_u32", S(R_W1), "s24", 4096); D.s("s_subb_u32", S(R_W1 + 1), "s25", 0)
dmat = {}
def w_m0(t, m, force=False):
    if m % 4 == 0 or force: D.s("s_add_u32", "m0", "s7", (t % NS) * SLOT + 4096 * (m // 4))
def w_piece(t, m): dmat[t] = D.dma(V(2 + m), S(R_W1, 4), "s12", 1024 * (m % 4))
def w_adv(t):
    D.s("s_add_u32", "s12", "s12", 32 * 832)
    D.s("s_cmp_eq_u32", "s12", 416 * 832); D.s("s_cselect_b32", "s12", 0, "s12")
def t_dma(n):
    D.s("s_mov_b32", "m0", S(8 + n))
    D.dma("v33", S(R_TAB, 4), S(8 + n)); return D.dma("v33", S(R_TAB, 4), S(8 + n), 1024)
TE = OPT.get("te", 1)
t_dma(0)
D.s("s_cmp_ge_u32", "s38", 14)
D.s("s_cbranch_scc1", "L_D_nb0")
D.cond = True
for n in range(1, TE): t_dma(n)
D.cond = False
D.s("s_barrier")
D.label("L_D_nb0")
for m in range(4): w_m0(0, m); w_piece(0, m)
for m in range(4, 7): dma_off(m)
if TE > 1:
    D.s("s_cmp_lt_u32", "s38", 14)
    D.s("s_cbranch_scc1", "L_D_nb1")
    D.cond = True
    for n in range(1, TE): t_dma(n)
    D.cond = False
    D.label("L_D_nb1")
for n in range(TE, 4): tabt = t_dma(n)
for m in range(4, 7): w_m0(0, m); w_piece(0, m)
w_adv(0)
stamp(D, 1)
D.s("s_branch", "L_D2")
D1 = D
D = D1.fork()

R_IDX, R_CIN, R_WS, R_OUT, R_DBG, R_WO = 48, 40, 52, 56, 60, 48
C.label("L_C")
k2 = C.sload("s_load_dwordx4", "s[32:35]", "s[0:1]", 64)
C.sload("s_load_dwordx2", "s[36:37]", "s[0:1]", 80)
srd_const(C, R_IDX, 16384 * 104)
C.v("v_lshlrev_b32", "v32", 4, "v1")
C.s("s_and_b32", "s7", "s3", 1)
C.s("s_lshl_b32", "s12", "s2", 2); C.s("s_add_u32", "s12", "s12", "s3"); C.s("s_mul_i32", "s12", "s12", 1664)
C.s("s_mul_i32", "s13", "s3", 1664); C.s("s_add_u32", "s13", "s13", IDXS)
srd_const(C, R_CIN, 105456)
C.s("s_lshl_b32", "s14", "s15", 2); C.s("s_add_u32", "s14", "s14", "s3"); C.s("s_mul_i32", "s14", "s14", 3 * 128); C.s("s_add_u32", "s14", "s14", 70272)
C.v("v_lshlrev_b32", "v7", 7, "v1")
srd_const(C, R_DBG, 256)
C.wait(ka)
srd(C, R_DBG, 34)
srd(C, R_IDX, 16)
C.bload("buffer_load_dwordx4", "v[12:15]", "v32", S(R_IDX, 4), "s12")
idxt = C.bload("buffer_load_dwordx4", "v[16:19]", "v32", S(R_IDX, 4), "s12", 640)
srd(C, R_CIN, 20)
C.s("s_mov_b64", "exec", 7)
C.bload("buffer_load_dword", "v23", "v7", S(R_CIN, 4), "s14")
C.s("s_mov_b64", "exec", -1)
stamp(C, 1)
C.s("s_cmp_ge_u32", "s38", 14)
C.s("s_cbranch_scc1", "L_CN")
CP = C.fork()
CP.label("L_CP")
C.label("L_CN")
GA = 118
def c_setup2(C):
    srd_const(C, R_WS, 2 * BS); srd_const(C, R_OUT, 32768)
    for r, b in ((R_WS, 36), (R_OUT, 32)): srd(C, r, b)
    C.v("v_mov_b32", "v2", MISC)
    for r in range(24, 28): C.v("v_mov_b32", V(r), 0)
    C.dsw("ds_write_b128", "v2", "v[24:27]"); C.dsw("ds_write_b32", "v2", "v24", RDY)
    C.v("v_mov_b32", "v5", 0); C.v("v_mov_b32", "v6", 1)
    if OPT.get("pretouch", 1):
        C.v("v_mov_b32", "v11", 0x10000)
        C.s("s_mov_b64", "exec", 1)
        C.cond = True
        if OPT.get("pt2", 0):
            C.gload("global_load_dword", "v248", "v11", "s[36:37]")
            C.gload("global_load_ushort", "v249", "v5", "s[32:33]")
        C.gload("global_load_ushort", "v250", "v5", "s[30:31]")
        C.cond = False
        C.s("s_mov_b64", "exec", -1)
    C.v("v_and_b32", "v8", 15, "v1"); C.v("v_mul_u32_u24", "v7", 104, "v8"); C.v("v_add_u32", "v7", "s13", "v7")
    C.v("v_lshrrev_b32", "v9", 2, "v1"); C.v("v_xor_b32", "v9", "v9", "v1"); C.v("v_and_b32", "v9", 8, "v9")
    C.v("v_and_b32", "v10", 16, "v1"); C.v("v_add_u32", "v4", "v9", "v10")
def c_xform(C):
    C.v("v_add_u32", "v11", "s13", "v32")
    for r in range(12, 20):
        C.v("v_and_b32", "v8" if r & 1 else "v9", 8, V(r))
        C.v("v_lshlrev_b32", V(r), 5, V(r))
        C.v("v_lshl_or_b32", V(r), "v8" if r & 1 else "v9", 1, V(r))
        if r == 15: C.dsw("ds_write_b128", "v11", "v[12:15]")
    C.dsw("ds_write_b128", "v11", "v[16:19]", 640)
def c_addr(C):
    for r in range(13): C.dsr("ds_read_b64", V(GA + 2 * r, 2), "v7", 8 * r)
    for f in range(26):
        if f in (0, 12): C.waitcnt(None, 7 if f == 0 else 0)
        for o in gaddr_ops(GA + f, GA + f, 4, 0): emitv(C, o)

c_setup2(C)
C.s("s_mov_b32", "s38", 0); C.s("s_mov_b32", "s91", 0)
c_xform(C)
stamp(C, 2)
C.waitcnt(0, 0)
C.s("s_barrier")
stamp(C, 3)
if OPT.get("xprio", 0): C.s("s_setprio", OPT["xprio"])
C.label("L_C_join")
c_addr(C)

PASSES = [(4, 5), (0, 2), (1, 3), (6, 7)]
ACC = 118
SACC = 182
KAP, KAP2, MSK = 195, 196, 197
ZR = 198
STGR = 214
NSTG = OPT.get("nstg2", 5)
RES0 = STGR + 4 * NSTG
def Fr(u, r):
    if u < 4: return 40 + 26 * (u & 1) + 2 * r + (u >> 1)
    return {4: 8, 5: 21, 6: 92, 7: 105}[u] + r
def Rw(f): return Fr(f & 1, f >> 1)
MX, MN = 182, 183
LEAD = 12
def sig1():
    C.s("s_cmp_eq_u32", "s38", 0); C.s("s_cbranch_scc1", "L_C_s1")
    C.s("s_mov_b64", "exec", 1)
    C.raw("s_waitcnt vmcnt(0)", 'wait')
    stamp(C, "pe")
    C.raw(f"ds_add_rtn_u32 v186, v2, v6 offset:{PCNT}", 'misc')
    C.v("v_mov_b32", "v187", "s90")
    C.s("s_mov_b32", "s38", 0)
    C.raw("s_waitcnt lgkmcnt(0)", 'wait')
    C.v("v_readfirstlane_b32", "s5", "v186")
    C.s("s_cmp_lg_u32", "s5", 3); C.s("s_cbranch_scc1", "L_C_s1b")
    C.raw(f"buffer_atomic_or v187, v5, s[{R_DBG}:{R_DBG+3}], 0 offen sc1", 'misc')
    stamp(C, "pf")
    C.label("L_C_s1b")
    C.s("s_mov_b64", "exec", -1)
    C.label("L_C_s1")
def sig2():
    C.s("s_cmp_eq_u32", "s38", 0); C.s("s_cbranch_scc1", "L_C_s2")
    C.raw("s_waitcnt vmcnt(0)", 'wait')
    C.v("v_readfirstlane_b32", "s5", "v187")
    C.s("s_or_b32", "s5", "s5", "s90"); C.s("s_cmp_lg_u32", "s5", "0x3fff"); C.s("s_cbranch_scc1", "L_C_s2")
    C.s("s_mov_b64", "exec", 1)
    C.raw(f"buffer_store_dword v6, v5, s[{R_DBG}:{R_DBG+3}], 0 offen offset:128 sc1", 'misc')
    C.s("s_mov_b64", "exec", -1)
    stamp(C, "pf")
    C.label("L_C_s2")
for f in range(LEAD): C.dsr("ds_read_b64", V(Rw(f), 2), V(GA + f), TAB)
for f in range(26):
    if f == OPT.get("sig1", 8): sig1()
    if f + LEAD < 26: C.dsr("ds_read_b64", V(Rw(f + LEAD), 2), V(GA + f + LEAD), TAB)
    C.v("v_pk_maximum3_f16", V(MX), V(Rw(f)), V(Rw(f) + 1), V(MX) if f else V(Rw(f)))
    C.v("v_pk_minimum3_f16", V(MN), V(Rw(f)), V(Rw(f) + 1), V(MN) if f else V(Rw(f)))
stamp(C, "mx")
C.v("v_lshlrev_b32", "v250", 16, "v250"); C.v("v_mul_f32", "v250", "0x3e800000", "v250")
C.v("v_readfirstlane_b32", "s96", "v250")
C.v("v_and_b32", V(MX), "0x7fff7fff", V(MX)); C.v("v_and_b32", V(MN), "0x7fff7fff", V(MN))
C.v("v_pk_max_u16", V(MX), V(MX), V(MN))
C.v("v_lshrrev_b32", V(MN), 16, V(MX)); C.v("v_and_b32", V(MX), "0xffff", V(MX)); C.v("v_max_u32", V(MX), V(MX), V(MN))
C.v("v_mov_b32", V(MN), V(MX))
C.v("v_mov_b32", V(MSK), "0xfff8fff8")
C.s("s_mov_b32", "s12", "0x05040100")
C.v("v_permlane32_swap_b32", V(MX), V(MN))
C.v("v_max_u32", V(MX), V(MX), V(MN))
C.v("v_lshrrev_b32", V(MX), 7, V(MX)); C.v("v_max_u32", V(MX), 127, V(MX)); C.v("v_min_u32", V(MX), 254, V(MX))
SCL = 4
C.v("v_sub_u32", V(MN), 260, V(MX)); C.v("v_lshlrev_b32", V(SCL), 23, V(MN))
C.v("v_lshlrev_b32", V(MX), 2, V(MX)); C.v("v_subrev_u32", "v3", 4 * 133 + 282, V(MX))
C.v("v_cvt_pkrtz_f16_f32", V(KAP), V(SCL), V(SCL))
C.v("v_pk_mul_f16", V(KAP2), V(KAP), V(KAP)); C.v("v_and_b32", V(KAP2), "0xffff", V(KAP2))
def conv_ops(kk, T0, nt):
    L = []
    for r in range(13):
        a, b = Fr(2 * kk, r), Fr(2 * kk + 1, r)
        t = T0 + 4 * (r % nt)
        lo, hi = a, b; rp = (r - 1) % 13
        L += [("v_lshlrev_b32", V(t), 16, V(a), ""), ("v_lshlrev_b32", V(t + 1), 16, V(b), ""),
              ("v_mul_f32", V(t + 2), V(SCL), V(a), ""), ("v_mul_f32", V(t + 3), V(SCL), V(b), ""),
              ("v_mul_f32", V(t), V(SCL), V(t), ""), ("v_mul_f32", V(t + 1), V(SCL), V(t + 1), ""),
              ("v_cvt_pkrtz_f16_f32", V(hi), V(t + 2), V(t + 3), ""), ("v_cvt_pkrtz_f16_f32", V(lo), V(t), V(t + 1), ""),
              ("v_and_b32", V(hi), V(MSK), V(hi), ""),
              ("v_cvt_pkrtz_f16_f32", V(Fr(4 + 2 * kk, rp)), V(t + 1), V(t), ""),
              ("v_alignbit_b32", V(Fr(5 + 2 * kk, rp)), V(hi), V(hi), 16, "")]
        if r >= 2:
            for k in range(2): L.append(("v_permlane32_swap_b32", V(Fr(2 * kk + k, r - 2)), V(Fr(4 + 2 * kk + k, r - 2)), ""))
    for r in (12, 11):
        for k in range(2): L.append(("v_permlane32_swap_b32", V(Fr(2 * kk + k, r)), V(Fr(4 + 2 * kk + k, r)), ""))
    return L
FLG = 194
ops = conv_ops(0, 198, 3) + conv_ops(1, 246, 2)
C.v("v_lshlrev_b32", V(193), 4, "v1")
def a_load(tag):
    C.raw("s_call_b64 s[92:93], L_aload", 'salu')
AS = Stream()
AS.label("L_aload")
AS.s("s_cmp_lg_u32", "s3", 0); AS.s("s_cbranch_scc1", "L_C_nr")
AS.raw(f"ds_write_b32 v2, v6 offset:{RDY}", 'misc')
AS.label("L_C_nr")
AS.s("s_lshr_b32", "s8", "s2", 3); AS.s("s_and_b32", "s9", "s8", 3)
AS.s("s_mul_i32", "s13", "s3", 11264)
AS.s("s_cmp_eq_u32", "s9", 3); AS.s("s_cselect_b32", "s9", 0, "s9"); AS.s("s_lshl_b32", "s9", "s9", 12)
for n in range(3):
    AS.s("s_add_u32", "s11", "s13", "s9")
    AS.s("s_add_u32", "m0", "s11", AIMG)
    AS.s("s_cmp_eq_u32", "s9", 8192)
    for e in range(3):
        AS.raw(f"buffer_load_dwordx4 v193, s[{R_WS}:{R_WS+3}], s11 offen offset:{1024*e} sc1 lds", 'misc')
    AS.s("s_cbranch_scc1", f"L_al{n}")
    AS.raw(f"buffer_load_dwordx4 v193, s[{R_WS}:{R_WS+3}], s11 offen offset:3072 sc1 lds", 'misc')
    AS.label(f"L_al{n}")
    if n < 2: AS.s("s_cselect_b32", "s9", -4096, "s9"); AS.s("s_add_u32", "s9", "s9", 4096)
AS.s("s_mov_b32", "s39", 0)
AS.raw("s_setpc_b64 s[92:93]", 'salu')
NDEF = OPT.get("ndef", 0)
ops1 = ops[len(ops) - NDEF:]; ops = ops[:len(ops) - NDEF]
NPRE = OPT.get("npre", 0)
ops2 = ops[len(ops) - NPRE:]; ops = ops[:len(ops) - NPRE]
POLL = f"buffer_load_dword v{FLG}, v5, s[{R_DBG}:{R_DBG+3}], 0 offen sc1"
CHECKS = [int(x) for x in str(OPT.get("chk", "0")).split("_") if 0 < int(x) < len(ops)]
for i, o in enumerate(ops):
    PC = OPT.get("pchk", 0)
    if PC and i == PC - 60:
        C.s("s_cmp_eq_u32", "s91", 0); C.s("s_cbranch_scc1", "L_C_pp")
        C.raw(POLL, 'misc')
        C.label("L_C_pp")
    if PC and i == PC:
        C.s("s_cmp_eq_u32", "s91", 0); C.s("s_cbranch_scc1", "L_C_pc")
        C.raw("s_waitcnt vmcnt(0)", 'wait')
        C.v("v_readfirstlane_b32", "s5", V(FLG))
        C.s("s_cmp_lg_u32", "s5", "0x3fff"); C.s("s_cbranch_scc1", "L_C_pc")
        C.s("s_setprio", 3)
        C.raw(f"ds_write_b32 v2, v6 offset:{RDY}", 'misc')
        a_load("p")
        C.s("s_setprio", OPT.get("pprio2", 0))
        C.label("L_C_pc")
    if i in CHECKS:
        t = str(CHECKS.index(i) + 1)
        C.s("s_cmp_eq_u32", "s39", 0); C.s("s_cbranch_scc1", "L_C_nc" + t)
        C.raw("s_waitcnt vmcnt(0)", 'wait')
        C.v("v_readfirstlane_b32", "s5", V(FLG))
        C.s("s_cmp_lg_u32", "s5", "0x3fff"); C.s("s_cbranch_scc1", "L_C_nc" + t)
        C.raw(f"ds_write_b32 v2, v6 offset:{RDY}", 'misc')
        a_load(t)
        C.label("L_C_nc" + t)
    nx = [c for c in CHECKS + [len(ops) + 30] if i == c - 70]
    if nx:
        C.raw(POLL, 'misc')
    emitv(C, o)
stamp(C, 6)
C.v("v_and_b32", V(192), 31, "v1"); C.v("v_lshrrev_b32", V(191), 5, "v1")
C.v("v_cmp_eq_u32", "vcc", 28, V(192)); C.v("v_cmp_gt_u32", "s[14:15]", 25, V(192)); C.v("v_mov_b32", V(190), 26)
C.v("v_cndmask_b32", V(190), V(190), 25, "vcc") if False else None
C.v("v_subb_co_u32", V(190), "s[10:11]", V(190), 0, "vcc") if False else None
C.v("v_mov_b32", V(189), 25); C.v("v_cndmask_b32", V(190), V(190), V(189), "vcc"); C.v("v_cndmask_b32", V(192), V(190), V(192), "s[14:15]")
C.v("v_mul_u32_u24", V(192), RS, V(192)); C.v("v_mul_u32_u24", V(191), 384, V(191)); C.v("v_add3_u32", "v7", V(192), V(191), "v5")
C.v("v_add_u32", "v7", AIMG, "v7")
C.s("s_setprio", 3)
C.raw("s_waitcnt vmcnt(0)", 'wait')
C.v("v_readfirstlane_b32", "s5", V(FLG))
C.s("s_cmp_lg_u32", "s5", "0x3fff")
C.s("s_cbranch_scc1", "L_C_notyet")
C.label("L_C_ready")
stamp(C, 7)
for ins in AS.out[1:-2]: C.out.append(ins)
AS = Stream()
AS.label("L_C_notyet")
AS.s("s_setprio", 0)
AS.s("s_cmp_lg_u32", "s3", 0); AS.s("s_cbranch_scc1", "L_C_w0")
AS.s("s_mov_b32", "s14", 1 << 17)
AS.label("L_C_poll")
AS.s("s_sleep", OPT.get("psl", 6))
AS.raw(POLL, 'misc')
AS.raw("s_waitcnt vmcnt(0)", 'wait')
AS.v("v_readfirstlane_b32", "s5", V(FLG))
AS.s("s_sub_u32", "s14", "s14", 1); AS.s("s_cmp_eq_u32", "s14", 0); AS.s("s_cbranch_scc1", "L_C_got")
AS.s("s_cmp_lg_u32", "s5", "0x3fff")
AS.s("s_cbranch_scc1", "L_C_poll")
AS.label("L_C_got")
AS.s("s_setprio", 3)
AS.s("s_branch", "L_C_ready")
AS.label("L_C_w0s")
AS.s("s_sleep", 2)
AS.label("L_C_w0")
AS.dsr("ds_read_b32", V(190), "v2", RDY); AS.waitcnt(None, 0)
AS.v("v_readfirstlane_b32", "s5", V(190)); AS.s("s_cmp_eq_u32", "s5", 0); AS.s("s_cbranch_scc1", "L_C_w0s")
AS.s("s_branch", "L_C_got")
C.s("s_setprio", OPT.get("prio2", 0))
for o in ops2: emitv(C, o)
for k in range(13): C.v("v_mov_b32", V(SACC + k), 0)

order = list(range(22, 24)) + list(range(22))
order_last = [22, 0] + list(range(1, 22)) + [23]
steps = [(n, ks) for n in range(4) for ks in (order if n < 3 else order_last)]
def zops(si):
    n, ks = steps[si]; L = []
    for h in range(2):
        u = PASSES[n][h]; q = ZR + 8 * (si % 2) + 4 * h
        for j in range(4):
            ins = sm.dwords[4 * ks + j]; d = V(q + j)
            if ins[0] == 'A': L.append(("v_pk_mul_f16", d, V(Fr(u, ins[1])), V(Fr(u, ins[2])), "op_sel:[0,0] op_sel_hi:[0,1]"))
            elif ins[0] == 'D': L.append(("v_pk_mul_f16", d, V(Fr(u, ins[1])), V(Fr(u, ins[1])), "op_sel:[0,0] op_sel_hi:[0,1]"))
            elif ins[0] == 'E':
                L.append(("v_perm_b32", d, V(Fr(u, ins[2])), V(Fr(u, ins[1])), "s12", ""))
                L.append(("v_pk_mul_f16", d, d, d, ""))
            elif ins[0] == 'L': L.append(("v_pk_mul_f16", d, V(Fr(u, ins[1])), V(KAP), ""))
            else: L.append(("v_mov_b32", d, V(KAP2), ""))
    return L
for o in zops(0): emitv(C, o)
C.raw("s_waitcnt vmcnt(0)", 'wait')
lds_signal(C, 2, 6, CNT2)
C.s("s_setprio", 0)
lds_wait(C, 2, 255, CNT2, 4, "L_C_w2")
C.label("L_C_go")
C.s("s_setprio", 1)
stamp(C, 8)
uses = []
for si, (n, ks) in enumerate(steps):
    if ks < 22: uses.append((si, 0))
    uses.append((si, 1))
resident = {}
free_quads = list(range(RES0, 246 - 3 if ops1 else 253, 4))
had1 = bool(ops1)
LOOK = NSTG - 2
stg_next = [0]; use_reg = {}; use_tok = {}
def plan_read(i):
    si, blk = uses[i]; n, ks = steps[si]; fid = (blk, ks)
    if fid in resident: use_reg[(si, blk)] = resident[fid]; return
    if free_quads and n < 3:
        reg = free_quads.pop(0); resident[fid] = reg
    else:
        reg = STGR + 4 * stg_next[0]; stg_next[0] = (stg_next[0] + 1) % NSTG
    use_reg[(si, blk)] = reg
    use_tok[(si, blk)] = C.dsr("ds_read_b128", V(reg, 4), "v7", blk * BS + ks * 16)
nread = [0]
def read_upto(i):
    while nread[0] <= i and nread[0] < len(uses): plan_read(nread[0]); nread[0] += 1
read_upto(LOOK)
accs = [{(0, 0): ACC, (1, 0): ACC + 16, (0, 1): ACC + 32, (1, 1): ACC + 48}]
spare = [8, 24]
for n in range(1, 4):
    p = accs[-1]
    accs.append({(1, 0): spare[0], (1, 1): spare[1], (0, 0): p[(0, 0)], (0, 1): p[(1, 0)]})
    spare = [p[(0, 1)], p[(1, 1)]]
EXR, EXU = 66, 79
T1, RP = 92 - 2, 0
first_of = set(); extra = []; tail_pre = []
mi = 0; ui = 0
for si, (n, ks) in enumerate(steps):
    seq = [(0, 0), (1, 0), (1, 1), (0, 1)] if ks < 22 else [(1, 0), (1, 1)]
    if OPT.get("cord", 0) == 1 and ks < 22: seq = [(0, 0), (0, 1), (1, 1), (1, 0)]
    if OPT.get("cord", 0) == 2 and ks < 22 and si % 2: seq = [(0, 1), (1, 1), (1, 0), (0, 0)]
    if ks == order[-1]: seq = [(0, 0), (1, 0), (0, 1), (1, 1)] if n < 3 else [(0, 0), (0, 1), (1, 0), (1, 1)]
    if n > 0 and ks == 0: seq = [(1, 0), (1, 1), (0, 1), (0, 0)]
    if si == len(order) - 1: assert not ops1, len(ops1)
    pend = zops(si + 1) if si + 1 < len(steps) else []
    if ks == order[0]:
        pm = 0
        if n > 0 and STAMPS and ("u%d" % n in SEL or "Ru%d" % n in SEL):
            keep = list(C.lg); stamp(C, "u%d" % n); C.lg = keep
        if n > 0:
            p = accs[n - 1]
            epa = [("v_fmac_f32", V(SACC + k), V(p[(0, 0)] + k), V(p[(1, 0)] + k), "") for k in range(13)]
            epb = [("v_fmac_f32", V(SACC + k), V(p[(0, 1)] + k), V(p[(1, 1)] + k), "") for k in range(13)]
            if n == 1 and had1: free_quads += [246, 250]
            if n == 2: free_quads += list(range(40, 63, 4))
            if n == 3:
                sp = spare
                T1, RP = sp[0], sp[0] + 2
                tail_pre = [("v", "v_lshrrev_b32", V(MSK), 5, "v1", ""), ("v", "v_mul_u32_u24", V(SCL), RS, V(MSK), ""), ("v", "v_lshlrev_b32", V(MSK), 2, V(SCL), ""),
                            ("v", "v_add_u32", V(MSK), AIMG + 768, V(MSK), ""), ("v", "v_add_u32", V(SCL), AIMG + 768, V(SCL), "")]
                for k in range(13):
                    row = 8 * (k // 4) + k % 4; ar = V(SCL) if k == 12 else V(MSK)
                    tail_pre += [("r", "ds_read_b32", V(EXR + k), ar, row * RS), ("r", "ds_read_b32", V(EXU + k), ar, BS + row * RS)]
                tail_pre += [("v", "v_add3_u32", V(EXR + k), V(EXR + k), V(EXU + k), "v3", "") for k in range(13)]
                tail_pre += [("v", "v_and_b32", "v5", 15, "v1", ""),
                  ("s", "s_lshl_b32", "s5", "s3", 8), ("s", "s_add_u32", "s5", "s5", RING), ("v", "v_lshl_add_u32", V(T1), "v1", 2, "s5", ""),
                  ("v", "v_lshlrev_b32", "v5", 1, "v5", ""),
                  ("s", "s_lshl_b32", "s13", "s2", 2), ("s", "s_add_u32", "s13", "s13", "s3"), ("s", "s_lshl_b32", "s13", "s13", 5),
                  ]
                tail_pre += [("v", "v_ldexp_f32", V(SACC + k), V(SACC + k), V(EXR + k), "") for k in range(13)]
                for k in range(4, 13): tail_pre += [("v", "v_add_f32", V(SACC + k % 4), V(SACC + k % 4), V(SACC + k), "")]
                tail_pre += [("v", "v_add_f32", V(SACC + 1), "s96", V(SACC + 1), "")]
        else: epa, epb = [], []
    nblk = 2 if ks < 22 else 1
    for e, (blk, h) in enumerate(seq):
        if e == 0 or (e == 2 and nblk == 2): ui += 1; read_upto(ui - 1 + LOOK + (1 if False else 0))
        if e == 0 and OPT.get("mw", 1): C.wait(use_tok.get((si, 0)), use_tok.get((si, 1)))
        acc = accs[n][(blk, h)]
        first = (n, blk, h) not in first_of; first_of.add((n, blk, h))
        if first and blk == 0: assert not epa
        C.mfma("v_mfma_f32_32x32x16_f16", V(acc, 16), V(use_reg[(si, blk)], 4), V(ZR + 8 * (si % 2) + 4 * h, 4), 0 if first else V(acc, 16))
        pm += 1
        left = len(seq) - e
        cnt = len(pend) if left <= 1 else min(len(pend), -(-len(pend) // left) + (1 if left == 2 and len(seq) == 4 else 0))
        for o in pend[:cnt]: emitv(C, o)
        pend = pend[cnt:]
        if epa:
            for _ in range(4 if n == 3 else (2 if ks >= 22 else 3)):
                if epa: emitv(C, epa.pop(0))
        elif epb and pm >= 4:
            for _ in range(2):
                if epb: emitv(C, epb.pop(0))
        elif ops1 and cnt <= 3:
            for _ in range(5 - cnt if cnt < 3 else 1):
                if ops1: emitv(C, ops1.pop(0))
        elif tail_pre and not epb and cnt <= 2:
            for _ in range(2):
                if not tail_pre: break
                o = tail_pre.pop(0)
                if o[0] == "v": emitv(C, o[1:])
                elif o[0] == "r": C.dsr(*o[1:])
                elif o[0] == "s": C.s(*o[1:])
                else: C.gload("global_load_ushort", "v6", "v5", "s[30:31]")
        if si == len(steps) - 4 and e == 0:
            assert not tail_pre, len(tail_pre)
            C.dsr("ds_read_b32", V(SACC + 5), "v2", CNT3)
            for j in range(4): C.dsr("ds_read_b32", V(RP + j), V(T1), j * RSZ)
        if si == len(steps) - 3 and e == 1:
            C.v("v_readfirstlane_b32", "s10", V(SACC + 5))
        if (si == len(steps) - 2 and e == 3) or (si == len(steps) - 1 and e == 0):
            hh = 0 if e == 3 else 1
            for k in range(13): C.v("v_ldexp_f32", V(accs[3][(0, hh)] + k), V(accs[3][(0, hh)] + k), V(EXR + k))
stamp(C, 9)
p = accs[3]
C.s("s_cmp_lt_u32", "s10", 4)
C.s("s_cbranch_scc1", "L_C_slow")
SL = Stream()
SL.label("L_C_slow")
SL.s("s_setprio", 0)
lds_wait(SL, 2, KAP, CNT3, 4, "L_C_w3", sleep=1)
for j in range(4): SL.dsr("ds_read_b32", V(RP + j), V(T1), j * RSZ)
SL.waitcnt(None, 0)
SL.s("s_branch", "L_C_fin")
C.label("L_C_fin")
for j in range(4): C.v("v_add_f32", V(SACC + j), V(SACC + j), V(RP + j))
for h in range(2):
    for k in range(13): C.v("v_fmac_f32", V(SACC + k % 4), V(p[(0, h)] + k), V(p[(1, h)] + k))
C.v("v_add_f32", V(SACC), V(SACC), V(SACC + 1)); C.v("v_add_f32", V(SACC + 2), V(SACC + 2), V(SACC + 3)); C.v("v_add_f32", V(SACC), V(SACC), V(SACC + 2))
C.v("v_mov_b32", V(SACC + 1), V(SACC)); C.v("v_permlane32_swap_b32", V(SACC), V(SACC + 1)); C.v("v_add_f32", V(SACC), V(SACC), V(SACC + 1))
C.v("v_mov_b32", V(SACC + 1), V(SACC)); C.v("v_permlane16_swap_b32", V(SACC), V(SACC + 1))
C.v("v_add_f32", V(SACC), V(SACC), V(SACC + 1))
C.v("v_cvt_pk_bf16_f32", V(SACC), V(SACC), V(SACC))
if OPT.get("dl", 0):
    C.label("L_dl")
    C.raw("s_memrealtime s[66:67]", 'misc'); C.raw("s_waitcnt lgkmcnt(0)", 'wait')
    C.s("s_sub_u32", "s5", "s66", "s100"); C.s("s_cmp_lt_u32", "s5", OPT["dl"]); C.s("s_cbranch_scc1", "L_dl")
if OPT.get("dmask", 0):
    C.s("s_and_b32", "s5", "s2", 7); C.s("s_lshr_b32", "s5", OPT["dmask"], "s5"); C.s("s_and_b32", "s5", "s5", 1)
    C.s("s_cmp_eq_u32", "s5", 0); C.s("s_cbranch_scc1", "L_nodelay")
    C.raw("s_memrealtime s[64:65]", 'misc'); C.raw("s_waitcnt lgkmcnt(0)", 'wait')
    C.label("L_delay")
    C.s("s_sleep", 2)
    C.raw("s_memrealtime s[66:67]", 'misc'); C.raw("s_waitcnt lgkmcnt(0)", 'wait')
    C.s("s_sub_u32", "s5", "s66", "s64"); C.s("s_cmp_lt_u32", "s5", OPT["dus"]); C.s("s_cbranch_scc1", "L_delay")
    C.label("L_nodelay")
C.s("s_mov_b64", "exec", "0xffff")
C.bstore("buffer_store_short", V(SACC), "v5", S(R_OUT, 4), "s13")
if STAMPS:
    C.s("s_mov_b64", "exec", -1)
    stamp(C, 10)
    dump_stamps(C, 250, 251)
C.s("s_endpgm")

WOF, BF, MD, MA, NF, LUT, IDN, MF, TD, TF, SD, FAC, LA = 44, 48, 92, 236, 140, 148, 164, 172, 180, 196, 204, 156, 220
lut = [[None] * 16 for _ in range(64)]
for l in range(64):
    j, hfc = l & 31, l >> 5
    for k in range(14):
        q = 8 * (k // 4) + 4 * hfc + k % 4
        if q < 26 and j <= 26 and q <= j:
            hf, di, half = sm.target[(q, j)]
            lut[l][k] = hf * 384 + di * 4 + half * 2
hf, di, half = sm.target[(26, 26)]
lut[0][14] = hf * 384 + di * 4 + half * 2
def emask(k): return sum(1 << l for l in range(64) if lut[l][k] is not None)
fac = [[0x3c003c00] * 4 for _ in range(64)]
for a_ in range(26):
    hf, di, half = sm.target[(a_, a_)]
    l = hf * 24 + di // 4
    fac[l][di % 4] = (fac[l][di % 4] & ~(0xffff << (16 * half))) | (0x3800 << (16 * half))
def producer(Q, typ):
    tag = "u" if typ == 1 else "x"
    Q.label("L_P1" + tag)
    Q.s("s_setprio", 3)
    BB = "pb" if typ == 1 else OPT.get("bbx", "pa")
    if typ == 1: Q.s("s_lshl_b32", "s39", "s15", 2)
    else: Q.s("s_sub_u32", "s39", "s15", 7); Q.s("s_lshl_b32", "s39", "s39", 2)
    Q.s("s_add_u32", "s39", "s39", "s3")
    Q.s("s_mul_i32", "s93", "s39", 52 if typ == 1 else 1352)
    if typ == 1: Q.s("s_add_u32", "s93", "s93", 35152)
    Q.v("v_and_b32", "v29", 31, "v1"); Q.v("v_lshrrev_b32", "v30", 5, "v1")
    Q.v("v_mul_u32_u24", "v31", 1352 if typ == 1 else 52, "v29"); Q.v("v_lshl_add_u32", "v31", "v30", 4, "v31")
    Q.bload("buffer_load_dwordx4", V(NF, 4), "v31", S(R_CIN, 4), "s93")
    Q.bload("buffer_load_dwordx4", V(NF + 4, 4), "v31", S(R_CIN, 4), "s93", 32)
    Q.raw("s_add_u32 s94, s94, L_lut-L_pc", 'salu'); Q.raw("s_addc_u32 s95, s95, 0", 'salu')
    for c in range(3): Q.gload("global_load_dwordx4", V(LUT + 4 * c, 4), "v32", "s[94:95]", c * 1024)
    if typ == 1:
        Q.s("s_mov_b32", S(R_WO + 2), 156); srd(Q, R_WO, 22)
        Q.v("v_and_b32", "v35", 48, "v1"); Q.v("v_lshlrev_b32", "v34", 1, "v29")
        Q.bload("buffer_load_dwordx4", V(WOF, 4), "v35", S(R_WO, 4), 0, 104)
        Q.bload("buffer_load_ushort", "v34", "v34", S(R_WO, 4), 0, 52)
        Q.s("s_lshl_b32", "s5", "s39", 1); Q.v("v_mov_b32", "v35", 0)
        Q.bload("buffer_load_ushort", "v35", "v35", S(R_WO, 4), "s5")
    def w3_dma(ms, issue=True):
        tk = None
        for m in ms:
            src = "v1"
            if m: Q.v("v_add_u32", "v22", 64 * m, "v1"); src = "v22"
            Q.v("v_mul_u32_u24", "v20", 2979, src); Q.s("s_add_u32", "m0", "s90", 1024 * m); Q.v("v_lshrrev_b32", "v20", 16, "v20")
            Q.v("v_mul_u32_u24", "v20", 1000, "v20"); Q.v("v_lshl_add_u32", V(112 + m), src, 4, "v20")
            if issue: tk = Q.dma(V(112 + m), S(R_CIN, 4), "s91")
        return tk
    if typ == 1:
        Q.s("s_mul_i32", "s90", "s3", 11264); Q.s("s_add_u32", "s90", "s90", W3S)
        Q.s("s_mul_i32", "s91", "s3", 352); Q.s("s_add_u32", "s91", "s91", 70304)
        w3_dma(range(OPT.get("w3a", 4)))
    if BB == "pa": Q.s("s_barrier")
    Q.s("s_branch", "L_P2" + tag)
    Q.label("L_P2" + tag)
    stamp(Q, 2)
    c_setup2(Q)
    Q.s("s_lshl_b32", "s5", "s3", 10); Q.s("s_add_u32", "s92", "s5", STG)
    Q.v("v_add_u32", "v41", "s92", "v32")
    Q.dsw("ds_write_b128", "v41", "v[24:27]")
    if typ == 1:
        Q.v("v_add_u32", "v42", "s90", "v32"); Q.dsw("ds_write_b128", "v42", "v[24:27]", 9216); Q.dsw("ds_write_b128", "v42", "v[24:27]", 10240)
        Q.s("s_mov_b64", "exec", "0xffffff")
        Q.v("v_add_u32", "v42", M3B + 26 * 64, "v32"); Q.dsw("ds_write_b128", "v42", "v[24:27]")
        Q.s("s_mov_b64", "exec", -1)
        Q.v("v_lshlrev_b32", "v43", 6, "v29"); Q.v("v_add_u32", "v43", M3B, "v43"); Q.dsw("ds_write_b64", "v43", "v[24:25]", 56)
    Q.v("v_and_b32", "v36", 1, "v29"); Q.v("v_lshlrev_b32", "v36", 4, "v36")
    Q.v("v_mov_b32", "v37", "0x3f80"); Q.v("v_lshlrev_b32", "v37", "v36", "v37")
    Q.v("v_cmp_gt_u32", "vcc", 26, "v29"); Q.v("v_lshrrev_b32", "v38", 1, "v29")
    Q.v("v_lshlrev_b32", "v39", 2, "v30"); Q.v("v_cndmask_b32", "v37", 0, "v37", "vcc")
    Q.v("v_sub_u32", "v39", "v38", "v39")
    Q.v("v_lshlrev_b32", "v40", 1, "v30"); Q.v("v_sub_u32", "v40", "v38", "v40")
    def ident(dst, vsel, key):
        for s_ in range(2):
            for m in range(0, 4, 2):
                Q.v("v_cmp_eq_u32", "vcc", key(s_, m), vsel); Q.v("v_cmp_eq_u32", "s[96:97]", key(s_, m + 1), vsel)
                Q.v("v_cndmask_b32", V(dst + 4 * s_ + m), 0, "v37", "vcc"); Q.v("v_cndmask_b32", V(dst + 4 * s_ + m + 1), 0, "v37", "s[96:97]")
    ident(IDN, "v39", lambda s_, m: 8 * s_ + m)
    if typ == 2: ident(MF, "v40", lambda s_, m: 8 * s_ + 4 * (m >> 1) + (m & 1))
    Q.s("s_mul_i32", "s93", "s39", RS)
    if typ == 1: Q.s("s_add_u32", "s93", "s93", BS)
    Q.v("v_mov_b32", "v36", "s92")
    if typ == 1:
        Q.v("v_lshrrev_b32", "v38", 4, "v1"); Q.v("v_bfe_u32", "v39", "v1", 2, 2); Q.v("v_lshl_add_u32", "v38", "v38", 3, "v39"); Q.v("v_mul_u32_u24", "v38", 352, "v38")
        Q.v("v_and_b32", "v40", 3, "v1"); Q.v("v_lshl_add_u32", "v38", "v40", 3, "v38"); Q.v("v_add_u32", "v28", "s90", "v38")
        Q.v("v_lshl_add_u32", "v39", "v30", 2, "v39"); Q.v("v_lshlrev_b32", "v39", 6, "v39"); Q.v("v_lshl_add_u32", "v39", "v40", 3, "v39")
        Q.v("v_and_b32", "v40", 16, "v1"); Q.v("v_lshl_add_u32", "v39", "v40", 1, "v39"); Q.v("v_add_u32", "v42", M3B, "v39")
        Q.s("s_mul_i32", "s5", "s3", 176); Q.v("v_add_u32", "v38", "s5", "v1")
        Q.v("v_mov_b32", "v43", M3B)
        for i in range(3):
            if i: Q.v("v_add_u32", "v38", 64, "v38")
            Q.v("v_mul_u32_u24", "v39", 2521, "v38"); Q.v("v_lshrrev_b32", "v39", 16, "v39")
            Q.v("v_mad_u32_u24", "v39", "v39", 12, "v43"); Q.v("v_lshl_add_u32", V(MA + i), "v38", 1, "v39")
        Q.v("v_cmp_gt_u32", "vcc", 676, "v38")
        Q.s("s_and_b32", "s15", "vcc_hi", "0xffff"); Q.s("s_mov_b32", "s14", "vcc_lo")
        Q.v("v_lshl_add_u32", "v43", "v29", 6, "v43")
    stamp(Q, "pa")
    if typ == 1:
        w3t = w3_dma(range(OPT.get("w3a", 4), 9))
        if OPT.get("pa2", 1): Q.waitcnt(None, 0); Q.s("s_barrier")
    Q.mfma("v_mfma_f32_32x32x16_bf16", V(TD, 16), V(NF, 4), V(IDN, 4), 0)
    Q.mfma("v_mfma_f32_32x32x16_bf16", V(TD, 16), V(NF + 4, 4), V(IDN + 4, 4), V(TD, 16))
    for k in range(15):
        Q.v("v_add_u32_sdwa", V(LA + k), "v36", V(LUT + k // 2), mods=f"dst_sel:DWORD dst_unused:UNUSED_PAD src0_sel:DWORD src1_sel:WORD_{k&1}")
    for m in range(8): Q.v("v_cvt_pk_bf16_f32", V(TF + m), V(TD + 2 * m), V(TD + 2 * m + 1))
    c_xform(Q)
    if typ == 1:
        Q.s("s_mov_b64", "exec", "0x3ffffff")
        Q.dsw("ds_write_b32", "v43", "v34", 52)
        Q.s("s_mov_b64", "exec", -1)
        Q.v("v_lshlrev_b32", "v35", 16, "v35")
        for q in range(4):
            Q.s("s_mov_b32", "s10", "0x%x" % (0x000f000f << (4 * q))); Q.s("s_mov_b32", "s11", "s10")
            for e in range(4): Q.v("v_cndmask_b32", V(MD + 16 + 4 * q + e), 0, V(WOF + e), "s[10:11]")
        Q.wait(w3t)
        stamp(Q, "pw")
        for T in range(11):
            for h in range(2): Q.dsr("ds_read_b64_tr_b16", V(BF + 4 * T + 2 * h, 2), "v28", 32 * T + 4 * 352 * h)
        for T in range(11):
            i = T // 4
            Q.mfma("v_mfma_f32_16x16x32_bf16", V(MD + 4 * i, 4), V(MD + 16 + 4 * (T % 4), 4), V(BF + 4 * T, 4), 0 if T % 4 == 0 else V(MD + 4 * i, 4))
        for i in range(3):
            Q.v("v_cvt_pk_bf16_f32", V(MD + 4 * i), V(MD + 4 * i), V(MD + 4 * i))
            if i == 2: Q.s("s_mov_b64", "exec", "s[14:15]")
            Q.dsw("ds_write_b16", V(MA + i), V(MD + 4 * i))
        if OPT.get("pa2", 1):
            lds_signal(Q, 2, 6, MCNT)
            stamp(Q, "pb")
            lds_wait(Q, 2, 44, MCNT, 4, "L_P_wm")
        else:
            Q.s("s_mov_b64", "exec", -1)
            stamp(Q, "pb")
            Q.waitcnt(None, 0)
            Q.s("s_barrier")
        for s_ in range(2):
            for jj in range(2): Q.dsr("ds_read_b64_tr_b16", V(MF + 4 * s_ + 2 * jj, 2), "v42", (16 * s_ + 8 * jj) * 64)
    aops = []
    if typ == 2 and OPT.get("xb1", 1):
        Q.waitcnt(None, 0); Q.s("s_barrier")
    for n_, mm in enumerate(((TF, MF, 0), (TF + 4, MF + 4, V(SD, 16)), (MF, TF, V(SD, 16)), (MF + 4, TF + 4, V(SD, 16)))):
        Q.mfma("v_mfma_f32_32x32x16_bf16", V(SD, 16), V(mm[0], 4), V(mm[1], 4), mm[2])
        c_ = 0 if n_ < 3 else 10
        for o in aops[:c_]: emitv(Q, o)
        aops = aops[c_:]
    ne = 15 if typ == 1 else 14
    if typ == 1: Q.v("v_mov_b32", V(SD + 14), "v35")
    Q.v("v_max3_f32", "v44", f"|{V(SD)}|", f"|{V(SD+1)}|", f"|{V(SD+ne-1)}|")
    Q.v("v_max3_f32", "v45", f"|{V(SD+2)}|", f"|{V(SD+3)}|", f"|{V(SD+4)}|")
    for k in range(5, 13, 4):
        Q.v("v_max3_f32", "v44", f"|{V(SD+k)}|", f"|{V(SD+k+1)}|", "v44"); Q.v("v_max3_f32", "v45", f"|{V(SD+k+2)}|", f"|{V(SD+k+3)}|", "v45")
    Q.v("v_max3_f32", "v44", f"|{V(SD+13)}|", "v45", "v44")
    for sh in (8, 4, 2, 1):
        for o in aops[:2]: emitv(Q, o)
        aops = aops[2:]
        Q.v("v_max_f32_dpp", "v44", "v44", "v44", mods=f"row_ror:{sh} row_mask:0xf bank_mask:0xf")
    for q in range(4): Q.v("v_readlane_b32", S(8 + q), "v44", 16 * q)
    stamp(Q, "pc")
    if BB == "pc": Q.s("s_barrier")
    Q.s("s_max_u32", "s8", "s8", "s9"); Q.s("s_max_u32", "s10", "s10", "s11"); Q.s("s_max_u32", "s8", "s8", "s10")
    Q.s("s_lshr_b32", "s8", "s8", 23); Q.s("s_max_u32", "s8", "s8", 67); Q.s("s_min_u32", "s8", "s8", 187)
    Q.s("s_sub_u32", "s9", 268, "s8"); Q.s("s_lshl_b32", "s9", "s9", 23)
    Q.s("s_cmp_ge_u32", "s39", 26); Q.s("s_cselect_b32", "s9", 0, "s9")
    for k in range(ne): Q.v("v_mul_f32", V(SD + k), "s9", V(SD + k))
    for k in range(0, ne, 2): Q.v("v_cvt_pk_f16_f32", V(SD + k), V(SD + k), V(SD + min(k + 1, ne - 1)))
    for k in range(ne):
        Q.dsw("ds_write_b16_d16_hi" if k & 1 else "ds_write_b16", V(LA + k), V(SD + (k & ~1)))
    Q.dsr("ds_read_b128", "v[240:243]", "v41")
    for o in aops[:10]: emitv(Q, o)
    aops = aops[10:]
    for e in range(4): Q.v("v_pk_mul_f16", V(240 + e), V(240 + e), V(FAC + e))
    if OPT.get("a8", 0):
        Q.v("v_mov_b32", "v46", "0x00040004"); Q.v("v_mov_b32", "v47", "0xfff8fff8")
        for e in range(4): Q.v("v_pk_add_u16", V(240 + e), V(240 + e), "v46")
        for e in range(4): Q.v("v_and_b32", V(240 + e), "v47", V(240 + e))
    Q.s("s_cmp_ge_u32", "s39", 27)
    Q.v("v_writelane_b32", "v240", "s8", 48)
    Q.s("s_cbranch_scc1", "L_P_skip" + tag)
    Q.cond = True
    Q.s("s_mov_b32", "exec_hi", "0x1ffff")
    Q.bstore("buffer_store_dwordx4", "v[240:243]", "v32", S(R_WS, 4), "s93", mods=SC1)
    Q.s("s_mov_b32", "exec_hi", -1)
    Q.cond = False
    Q.label("L_P_skip" + tag)
    stamp(Q, "pd")
    Q.s("s_mov_b32", "s38", 1); Q.s("s_mov_b32", "s91", 1)
    Q.s("s_lshr_b32", "s5", "s2", 3); Q.s("s_lshl_b32", "s90", 1, "s5")
    Q.waitcnt(None, 0)
    if not (typ == 2 and OPT.get("xb1", 1)): Q.s("s_barrier")
    stamp(Q, 3)
    Q.s("s_setprio", OPT.get("pprio", 0))
    Q.s("s_branch", "L_C_join")
CP.s("s_cmp_ge_u32", "s15", 7)
CP.s("s_cbranch_scc1", "L_P1x")
CX = CP.fork()
producer(CP, 1)
producer(CX, 2)

D.label("L_D2")
wt = D.gload("global_load_dword", "v15", "v9", "s[28:29]")
D.v("v_lshrrev_b32", "v10", 5, "v1"); D.v("v_bfe_u32", "v11", "v1", 2, 3); D.v("v_lshl_add_u32", "v11", "v10", 4, "v11"); D.v("v_mul_u32_u24", "v11", 224, "v11")
D.v("v_and_b32", "v12", 3, "v1"); D.v("v_lshl_add_u32", "v11", "v12", 3, "v11"); D.v("v_add_u32", "v9", "s7", "v11")
D.s("s_lshr_b32", "s5", "s39", 4); D.v("v_xor_b32", "v10", "s5", "v10")
D.v("v_and_b32", "v11", 15, "v1"); D.v("v_mul_u32_u24", "v11", 104, "v11"); D.v("v_lshl_add_u32", "v11", "v10", 2, "v11")
D.s("s_mul_i32", "s5", "s14", 32 * 104); D.s("s_sub_u32", "s9", 32 * 104, "s5")
D.v("v_add_u32", V(DT + 8), "s5", "v11"); D.v("v_add_u32", V(DT + 9), "s9", "v11")
D.v("v_and_b32", "v12", 16, "v1")
D.s("s_lshl_b32", "s10", "s4", 3)
D.s("s_lshl_b32", "s5", "s6", 10); D.s("s_add_u32", "s5", "s5", DSC)
D.v("v_lshl_add_u32", "v13", "v1", 3, "s5")
D.v("v_and_b32", "v10", 48, "v1"); D.v("v_add_u32", V(DT + 10), "s5", "v10")
D.v("v_lshlrev_b32", V(DT), 16, "v14"); D.v("v_and_b32", V(DT + 1), "0xffff0000", "v14")
D.dsw("ds_write_b64", "v13", V(DT, 2))
for b in range(7): D.dsr("ds_read_b128", V(BI + 4 * b, 4), V(DT + 10), 64 * b)
def i_base():
    D.v("v_add_u32", "v10", "s10", V(DT + 8)); D.v("v_add_u32", "v11", "s10", V(DT + 9))
def i_adv():
    D.s("s_add_u32", "s10", "s10", 8); D.s("s_cmp_eq_u32", "s10", 104); D.s("s_cselect_b32", "s10", 0, "s10")
def i_reads(t): return [("ds_read_b32", V(GI + 4 * (t & 1) + sb), "v10" if sb < 2 else "v11", IDXS + (sb & 1) * 16 * 104) for sb in range(4)]
def i_addr(t):
    L = []
    for k in range(4): L += gaddr_ops(GI + 4 * (t & 1) + k, GI + 4 * (t & 1) + k, 12, DT + 4 + k)
    return L
def w_reads(t):
    return [("ds_read_b64_tr_b16", V(WF + 28 * (t & 1) + 4 * b + 2 * h, 2), "v9", (t % NS) * SLOT + 32 * b + 8 * 224 * h) for b in range(7) for h in range(2)]
def x_reads(t): return [("ds_read_b128", V(XF + 16 * (t & 1) + 4 * sb, 4), V(GI + 4 * (t & 1) + sb), TAB) for sb in range(4)]
i_base(); i_adv()
if not OPT.get("w1late", 1):
    for m in range(7): w_m0(1, m); w_piece(1, m)
    w_adv(1)
wtok = {}
D.wait(tabt)
stamp(D, 8)
D.s("s_barrier")
stamp(D, 3)
D.s("s_setprio", 2)
for o in i_reads(0): D.dsr(*o)
i_base(); i_adv()
a0 = i_addr(0); xr0 = x_reads(0)
for sb in range(4):
    emitv(D, a0[sb]); D.dsr(*xr0[sb])
if OPT.get("w1late", 1):
    for m in range(7): w_m0(1, m); w_piece(1, m)
    w_adv(1)
D.wait(dmat[0])
stamp(D, 7)
for o in w_reads(0): wtok[0] = D.dsr(*o)
for o in i_reads(1): D.dsr(*o)
tiles = [(b, sb) for sb in range(4) for b in range(6)]
tiles = tiles[:6] + [(6, 0)] + tiles[6:12] + [(6, 1)] + tiles[12:]
if OPT.get("tord", 0) == 1: tiles = [(b, sb) for b in range(6) for sb in range(4)] + [(6, 0), (6, 1)]
if OPT.get("tord", 0) == 2:
    tiles = []
    for b in range(6): tiles += [(b, sb) for sb in (range(4) if b % 2 == 0 else range(3, -1, -1))]
    tiles += [(6, 0), (6, 1)]
def tacc(b, sb): return DACC + 4 * (4 * b + sb)
WSTART = OPT.get("wstart", 11)
for t in range(13):
    sched = {k: [] for k in range(26)}
    if t + 1 < 13:
        av = i_addr(t + 1); xr = x_reads(t + 1)
        for sb in range(4): sched[2 * sb + 1] += [("v", av[sb]), ("r", xr[sb])]
        sched[WSTART] += [("wait", t + 1)]
        for n, o in enumerate(w_reads(t + 1)): sched[WSTART + n // 2] += [("w", o)]
    if t + 2 < 13:
        sched[0] += [("ww", t), ("m0", t + 2, 0)]
        for m in range(7):
            k = [2, 4, 6, 8, 10, 20, 22][m] if OPT.get("dsp", 0) else 2 + 2 * m if m < 4 else 2 * m + 1
            k = {0: 2, 1: 4, 2: 6, 3: 8, 4: 10, 5: 19, 6: 21}[m] if OPT.get("dsp", 0) else {0: 2, 1: 4, 2: 6, 3: 8, 4: 9, 5: 10, 6: 10}[m]
            sched[k] += [("dma", t + 2, m)]
            if m == 3: sched[k] += [("m0", t + 2, 4)]
        sched[22] += [("adv", t + 2)]
        sched[WSTART + 7] += [("ib",)]
        for n, o in enumerate(i_reads(t + 2)): sched[WSTART + 8 + n // 2] += [("r", o)]
    if t in (1, 2, 5, 9): stamp(D, {1: "mx", 2: "pf", 5: 6, 9: 9}[t])
    for k, (b, sb) in enumerate(tiles):
        acc = tacc(b, sb)
        D.mfma("v_mfma_f32_16x16x32_bf16", V(acc, 4), V(WF + 28 * (t & 1) + 4 * b, 4), V(XF + 16 * (t & 1) + 4 * sb, 4), V(BI + 4 * b, 4) if t == 0 else V(acc, 4))
        for f in sched[k]:
            if f[0] == "v": emitv(D, f[1])
            elif f[0] == "r": D.dsr(*f[1])
            elif f[0] == "w": wtok[t + 1] = D.dsr(*f[1])
            elif f[0] == "wait": D.wait(dmat[f[1]])
            elif f[0] == "ww": D.wait(wtok[f[1]])
            elif f[0] == "ib": i_base(); i_adv()
            elif f[0] == "m0": w_m0(f[1], f[2])
            elif f[0] == "dma": w_piece(f[1], f[2])
            elif f[0] == "adv": w_adv(f[1])
stamp(D, 4)
D.s("s_setprio", 0)
D.v("v_mov_b32", V(DT + 4), f32(2.0 ** 100))
D.v("v_lshlrev_b32", V(DT + 2), 16, "v15"); D.v("v_and_b32", V(DT + 3), "0xffff0000", "v15")
D.v("v_rcp_f32", V(DT + 2), V(DT + 2)); D.v("v_rcp_f32", V(DT + 3), V(DT + 3))
D.v("v_med3_f32", V(DT + 2), V(DT + 2), V(DT + 4), "-" + V(DT + 4)); D.v("v_med3_f32", V(DT + 3), V(DT + 3), V(DT + 4), "-" + V(DT + 4))
D.dsw("ds_write_b64", "v13", V(DT + 2, 2), 512)
for b in range(7): D.dsr("ds_read_b128", V(BI + 4 * b, 4), V(DT + 10), 512 + 64 * b)
VK1, VK2, SS, GT = 120, 121, 124, 128
D.v("v_mov_b32", V(VK1), f32(K1)); D.v("v_mov_b32", V(VK2), f32(K2))
for r in range(4): D.v("v_mov_b32", V(SS + r), 0)
D.v("v_mov_b32", "v8", MISC); D.v("v_mov_b32", "v9", 1)
def gelu(items):
    for g0 in range(0, len(items), 4):
        grp = items[g0:g0 + 4]
        t = [GT + 4 * ((g0 // 4) & 1) + i for i in range(len(grp))]
        for (x, w, s), r in zip(grp, t): D.v("v_mul_f32", V(r), V(x), V(x))
        for (x, w, s), r in zip(grp, t): D.v("v_fma_f32", V(r), V(r), V(VK2), V(VK1))
        for (x, w, s), r in zip(grp, t): D.v("v_mul_f32", V(r), V(x), V(r))
        for (x, w, s), r in zip(grp, t): D.v("v_exp_f32", V(r), V(r))
        for (x, w, s), r in zip(grp, t): D.v("v_fma_f32", V(r), V(r), V(w), V(w))
        for (x, w, s), r in zip(grp, t): D.v("v_rcp_f32", V(r), V(r))
        for (x, w, s), r in zip(grp, t): D.v("v_fmac_f32", V(s), V(x), V(r))
its = []
for b in range(7):
    for r in range(4):
        for sb in range(4 if b < 6 else 2): its.append((tacc(b, sb) + r, BI + 4 * b + r, SS + sb))
gelu(its)
D.s("s_lshl_b32", "s5", "s14", 9); D.s("s_add_u32", "s9", "s7", "s5"); D.s("s_sub_u32", "s5", "s7", "s5"); D.s("s_add_u32", "s5", "s5", 512)
D.v("v_lshl_add_u32", "v10", "v1", 2, "s9"); D.v("v_lshl_add_u32", "v11", "v1", 2, "s5")
for sb in range(4): D.dsw("ds_write_b32", "v10" if sb < 2 else "v11", V(SS + sb), 256 * (sb & 1))
lds_signal(D, 8, 9, CNT3)
stamp(D, 10)
dump_stamps(D, 10, 11)
D.label("L_end")
D.s("s_endpgm")

lt = ".p2align 6\n.type L_lut,@object\nL_lut:\n"
for c in range(2):
    for l in range(64):
        dm = 800 + 4 * (l & 31)
        g_ = lambda x: dm if x is None else x
        w = [(g_(lut[l][8 * c + 2 * e]) | (g_(lut[l][8 * c + 2 * e + 1]) << 16)) for e in range(4)]
        lt += "  .long " + ", ".join("0x%08x" % x for x in w) + "\n"
for l in range(64): lt += "  .long " + ", ".join("0x%08x" % x for x in fac[l]) + "\n"
lt += ".size L_lut, 3072\nL_lut_end:\n"

DOC = """;
; ---------------------------------------------------------------------------------------------------------
;
;
; ---------------------------------------------------------------------------------------------------------
"""
ctext = C.text()
cut = ctext.index("L_CN:")
pt, xt = CP.text(), CX.text()
pc_, xc_ = pt.index("L_P2u:"), xt.index("L_P2x:")
dt1 = D1.text(); dc_ = dt1.index("L_D1:")
body = dt1[:dc_] + ctext[:cut] + pt[:pc_] + xt[:xc_] + dt1[dc_:] + ctext[cut:] + SL.text() + AS.text() + pt[pc_:] + xt[xc_:] + D.text()
hdr = open("standalone__deep_cross_xdeepfm__recsys.s.ref").read().split("; @launch")[0]
src = hdr + f"; @launch grid=(256,1,1) block=(512,1,1) lds={LDS_TOTAL}\n"
src += DOC
src += f""".amdgcn_target "amdgcn-amd-amdhsa--gfx950"
.text
.globl {NAME}
.p2align 8
.type {NAME},@function
{NAME}:
""" + body + lt + f""".section .rodata,"a"
.p2align 6
.amdhsa_kernel {NAME}
  .amdhsa_next_free_vgpr 256
  .amdhsa_next_free_sgpr 102
  .amdhsa_accum_offset 256
  .amdhsa_group_segment_fixed_size 0
  .amdhsa_kernarg_size 88
  .amdhsa_user_sgpr_count 2
  .amdhsa_user_sgpr_kernarg_segment_ptr 1
  .amdhsa_system_sgpr_workgroup_id_x 1
.end_amdhsa_kernel
"""
open(sys.argv[1], "w").write(src)
for n_, s_ in (("D1", D1), ("C", C), ("CP", CP), ("CX", CX), ("D", D)): print(n_, s_.stats(), "nops", s_.nops)
print("LDS", LDS_TOTAL)
```

```python
import sys, struct
from asmlib import *
import slotmap as sm

NAME = "standalone__deep_cross_xdeepfm__recsys_kernel"
OPT = dict(stamps=0, ns=2, nstg=6)
for a in sys.argv[2:]:
    k, v = a.split("="); OPT[k] = int(v) if v.lstrip("-").isdigit() else v
STAMPS = OPT["stamps"]

TAB = 0
IDXS = 32768
AIMG = IDXS + 6656 + 512
RS = 784
BS = 27 * RS
NS = OPT["ns"]
W3S = AIMG
RING = W3S + 4 * 11264
assert 2 * BS <= 4 * 11264
SLOT = 7168
RSZ = NS * SLOT
MISC = RING + 4 * RSZ
CNT2, CNT3, MCNT, PCNT, RDY, CLAIM, MCNT2 = 0, 4, 8, 12, 16, 32, 36
M3B = MISC + 64
STG = M3B + 2048 + 64
DSC = STG + 4096
LDS_TOTAL = DSC + 4096
assert LDS_TOTAL <= 163840 and AIMG % 16 == 0
def f32(x): return "0x%08x" % struct.unpack("<I", struct.pack("<f", x))[0]
K1 = -2.0 * 0.7978845608028654 * 1.4426950408889634
K2 = K1 * 0.044715
SC1 = "sc1"
def frag_id(blk, ks): return (blk, ks)

SEL = str(OPT.get("sel", "")).split(",")
def stamp(st, name):
    if name == 0 or name == 10: idx = name
    else:
        if "R" + str(name) in SEL and STAMPS:
            j = 1 + SEL.index("R" + str(name))
            st.raw(f"s_memrealtime s[{64+2*j}:{65+2*j}]", 'misc')
            st.lg.append(Tok('lg', [], True, True))
        if str(name) in SEL: idx = 1 + SEL.index(str(name)); assert idx <= 9
        else: return
    if STAMPS:
        st.raw(f"s_memtime s[{64+2*idx}:{65+2*idx}]", 'misc')
        st.lg.append(Tok('lg', [], True, True))
def dump_stamps(st, vt, va):
    if not STAMPS: return
    if OPT.get("dbgdump"):
        if st is not C: return
        st.raw("s_memrealtime s[84:85]", 'misc')
        st.waitcnt(None, 0)
        st.s("s_cmp_eq_u32", "s2", 100); st.s("s_cbranch_scc0", "L_dd"); st.s("s_cmp_eq_u32", "s3", 0); st.s("s_cbranch_scc0", "L_dd")
        st.s("s_mov_b64", "exec", 1)
        st.v("v_mov_b32", V(va), 0)
        for i in range(1, 11):
            st.s("s_sub_u32", "s5", f"s{64+2*i}", "s100")
            st.v("v_mov_b32", V(vt), "s5")
            st.bstore("buffer_store_dword", V(vt), V(va), S(R_DBG, 4), 0, 12 + 4 * i)
        st.label("L_dd")
        return
    st.raw("s_memrealtime s[98:99]", 'misc')
    st.waitcnt(None, 0)
    st.s("s_mov_b32", "s86", "s100"); st.s("s_mov_b32", "s88", "s98"); n = 13
    st.s("s_lshl_b32", "s5", "s2", 3); st.s("s_add_u32", "s5", "s5", "s3"); st.s("s_lshl_b32", "s5", "s5", 6)
    st.s("s_add_u32", "s5", "s5", 0x100000)
    st.v("v_mov_b32", V(va), "s5")
    for i in range(n):
        st.v("v_mov_b32", V(vt), f"s{64+2*i}")
        st.gstore("global_store_dword", V(va), V(vt), "s[36:37]", off=4 * i)
    st.waitcnt(0, None)
def srd(st, r, base): st.s("s_mov_b64", S(r, 2), S(base, 2))
def srd_const(st, r, size):
    st.s("s_mov_b32", S(r + 2), size); st.s("s_mov_b32", S(r + 3), "0x20000")
def lds_signal(st, vaddr, vone, off):
    st.s("s_mov_b64", "exec", 1)
    st.dsw("ds_add_u32", V(vaddr), V(vone), off)
    st.s("s_mov_b64", "exec", -1)
def lds_wait(st, vaddr, vtmp, off, target, name, sleep=None):
    st.s("s_branch", name + "_in") if sleep is not None else None
    st.label(name)
    if sleep is not None:
        st.s("s_sleep", sleep); st.label(name + "_in")
    st.dsr("ds_read_b32", V(vtmp), V(vaddr), off)
    st.waitcnt(None, 0)
    st.v("v_readfirstlane_b32", "s5", V(vtmp))
    st.s("s_cmp_lt_u32", "s5", target)
    st.s("s_cbranch_scc1", name)
def gaddr_ops(dst, idx, vbase, tmp):
    return [("v_xor_b32", V(dst), V(idx), V(vbase), "")]
def emitv(st, o): st.v(o[0], o[1], *o[2:-1], mods=o[-1])

P = Stream()
stamp(P, 0)
if STAMPS or OPT.get("dl", 0) or OPT.get("dl2", 0): P.raw("s_memrealtime s[100:101]", 'misc')
ka = P.sload("s_load_dwordx16", "s[16:31]", "s[0:1]", 0)
P.v("v_lshrrev_b32", "v2", 6, "v0")
P.v("v_and_b32", "v1", 63, "v0")
P.s("s_cmp_ge_u32", "s2", 256)
P.v("v_readfirstlane_b32", "s3", "v2")
P.s("s_cbranch_scc1", "L_end")
if OPT.get("coldhop", 0):
    P.sload("s_load_dwordx2", "s[36:37]", "s[0:1]", 80)
    P.v("v_mov_b32", "v3", 0x8000000)
    P.waitcnt(None, 0)
    P.gload("global_load_dword", "v3", "v3", "s[36:37]")
    P.waitcnt(0, None)
P.raw("s_getpc_b64 s[94:95]", 'salu')
P.label("L_pc")
P.s("s_lshr_b32", "s15", "s2", 3)
P.s("s_and_b32", "s5", "s2", 7); P.s("s_sub_u32", "s5", "s5", OPT.get("cg0", 2)); P.s("s_cmp_lt_u32", "s5", 1); P.s("s_cselect_b32", "s38", "s15", 99)
R_TAB = 44
P.s("s_cmp_ge_u32", "s3", 4)
P.s("s_cbranch_scc1", "L_D1")
C = P.fork()
D = P
D.label("L_D1")
R_W1 = 40
DACC, WF, XF, BI, GI, DT = 16, 120, 176, 208, 236, 244
D.s("s_sub_u32", "s6", "s3", 4)
D.s("s_and_b32", "s5", "s15", 7); D.s("s_lshl_b32", "s5", "s5", 2); D.s("s_add_u32", "s5", "s5", "s6"); D.s("s_mul_i32", "s5", "s5", 9 * 128)
D.v("v_lshl_add_u32", "v8", "v1", 7, "s5")
D.raw("v_min_u32 v8, L_lut_end-L_pc-4, v8", 'misc')
D.s("s_mov_b64", "exec", "0x1ff")
D.gload("global_load_dword", "v255", "v8", "s[94:95]")
D.s("s_mov_b64", "exec", -1)
if STAMPS: D.sload("s_load_dwordx2", "s[36:37]", "s[0:1]", 80)
srd_const(D, R_W1, 416 * 832 + 4096); srd_const(D, R_TAB, 32000)
D.v("v_bfe_u32", "v33", "v1", 4, 1); D.v("v_xor_b32", "v33", "v33", "v1"); D.v("v_lshlrev_b32", "v33", 4, "v33")
D.s("s_lshl_b32", "s13", "s6", 13)
for n in range(4):
    D.s("s_add_u32", "s5", "s15", n); D.s("s_and_b32", "s5", "s5", 3); D.s("s_lshl_b32", "s5", "s5", 11); D.s("s_add_u32", S(8 + n), "s5", "s13")
D.s("s_add_u32", "s4", "s15", 18); D.s("s_bfe_u32", "s4", "s4", "0x40001"); D.s("s_sub_u32", "s5", "s4", 13); D.s("s_min_u32", "s4", "s4", "s5")
D.s("s_and_b32", "s39", "s15", 1); D.s("s_lshl_b32", "s39", "s39", 4)
D.s("s_mul_i32", "s12", "s4", 32 * 832)
D.s("s_mul_i32", "s7", "s6", RSZ); D.s("s_add_u32", "s7", "s7", RING)
D.s("s_and_b32", "s14", "s6", 1); D.s("s_lshr_b32", "s5", "s6", 1); D.s("s_mul_i32", "s5", "s5", 416); D.s("s_mul_i32", "s13", "s14", 192); D.s("s_add_u32", "s13", "s13", "s5")
D.s("s_lshl_b32", "s5", "s14", 1)
def dma_off(m):
    src = "v1"
    if m: D.v("v_add_u32", "v10", 64 * m, "v1"); src = "v10"
    D.v("v_mul_u32_u24", "v11", 4682, src); D.v("v_lshrrev_b32", "v11", 16, "v11")
    D.v("v_mad_i32_i24", "v12", "v11", -14, src); D.v("v_add_u32", "v12", "s5", "v12")
    D.v("v_subrev_u32", "v13", 14, "v12"); D.v("v_min_u32", "v12", "v12", "v13")
    D.v("v_lshrrev_b32", "v13", 1, "v11"); D.v("v_xor_b32", "v13", "v13", "v11"); D.v("v_and_b32", "v13", 4, "v13")
    D.v("v_mul_u32_u24", "v13", 3, "v13"); D.v("v_bitop3_b32", "v11", "v11", "v13", "s39", mods="bitop3:0x96")
    D.v("v_mul_u32_u24", "v11", 832, "v11"); D.v("v_lshl_add_u32", "v11", "v12", 4, "v11"); D.v("v_add_u32", V(2 + m), "s13", "v11")
    D.v("v_add_u32", V(2 + m), 4096 - 1024 * (m % 4), V(2 + m))
D.v("v_lshl_add_u32", "v10", "s14", 3, "v1"); D.v("v_subrev_u32", "v11", 56, "v10"); D.v("v_min_u32", "v10", "v10", "v11")
D.v("v_min_u32", "v10", 55, "v10"); D.v("v_lshl_add_u32", "v9", "v10", 2, "s13")
for m in range(4): dma_off(m)
HOLD = 1
D.wait(ka)
srd(D, R_TAB, 18)
bt = D.gload("global_load_dword", "v14", "v9", "s[26:27]")
D.s("s_sub_u32", S(R_W1), "s24", 4096); D.s("s_subb_u32", S(R_W1 + 1), "s25", 0)
dmat = {}
def w_m0(t, m, force=False):
    if m % 4 == 0 or force: D.s("s_add_u32", "m0", "s7", (t % NS) * SLOT + 4096 * (m // 4))
def w_piece(t, m): dmat[t] = D.dma(V(2 + m), S(R_W1, 4), "s12", 1024 * (m % 4))
def w_adv(t):
    D.s("s_add_u32", "s12", "s12", 32 * 832)
    D.s("s_cmp_eq_u32", "s12", 416 * 832); D.s("s_cselect_b32", "s12", 0, "s12")
def t_dma(n):
    D.s("s_mov_b32", "m0", S(8 + n))
    D.dma("v33", S(R_TAB, 4), S(8 + n)); return D.dma("v33", S(R_TAB, 4), S(8 + n), 1024)
TE = OPT.get("te", 1)
t_dma(0)
D.s("s_cmp_ge_u32", "s38", 14)
D.s("s_cbranch_scc1", "L_D_nb0")
D.cond = True
for n in range(1, TE): t_dma(n)
D.cond = False
D.s("s_barrier")
D.label("L_D_nb0")
for m in range(4): w_m0(0, m); w_piece(0, m)
for m in range(4, 7): dma_off(m)
if TE > 1:
    D.s("s_cmp_lt_u32", "s38", 14)
    D.s("s_cbranch_scc1", "L_D_nb1")
    D.cond = True
    for n in range(1, TE): t_dma(n)
    D.cond = False
    D.label("L_D_nb1")
for n in range(TE, 4): tabt = t_dma(n)
for m in range(4, 7): w_m0(0, m); w_piece(0, m)
w_adv(0)
stamp(D, 1)
D.s("s_branch", "L_D2")
D1 = D
D = D1.fork()

R_IDX, R_CIN, R_WS, R_OUT, R_DBG, R_WO = 48, 40, 52, 56, 60, 48
C.label("L_C")
k2 = C.sload("s_load_dwordx4", "s[32:35]", "s[0:1]", 64)
C.sload("s_load_dwordx2", "s[36:37]", "s[0:1]", 80)
srd_const(C, R_IDX, 16384 * 104)
C.v("v_lshlrev_b32", "v32", 4, "v1")
C.s("s_and_b32", "s7", "s3", 1)
C.s("s_lshl_b32", "s12", "s2", 2); C.s("s_add_u32", "s12", "s12", "s3"); C.s("s_mul_i32", "s12", "s12", 1664)
C.s("s_mul_i32", "s13", "s3", 1664); C.s("s_add_u32", "s13", "s13", IDXS)
srd_const(C, R_CIN, 105456)
C.s("s_lshl_b32", "s14", "s15", 2); C.s("s_add_u32", "s14", "s14", "s3"); C.s("s_mul_i32", "s14", "s14", 3 * 128); C.s("s_add_u32", "s14", "s14", 70272)
C.v("v_lshlrev_b32", "v7", 7, "v1")
srd_const(C, R_DBG, 256)
C.wait(ka)
srd(C, R_DBG, 34)
srd(C, R_IDX, 16)
C.bload("buffer_load_dwordx4", "v[12:15]", "v32", S(R_IDX, 4), "s12")
idxt = C.bload("buffer_load_dwordx4", "v[16:19]", "v32", S(R_IDX, 4), "s12", 640)
srd(C, R_CIN, 20)
C.s("s_mov_b64", "exec", 7)
C.bload("buffer_load_dword", "v23", "v7", S(R_CIN, 4), "s14")
C.s("s_mov_b64", "exec", -1)
stamp(C, 1)
C.s("s_cmp_ge_u32", "s38", 14)
C.s("s_cbranch_scc1", "L_CN")
CP = C.fork()
CP.label("L_CP")
C.label("L_CN")
GA = 118
def c_setup2(C):
    srd_const(C, R_WS, 2 * BS); srd_const(C, R_OUT, 32768)
    for r, b in ((R_WS, 36), (R_OUT, 32)): srd(C, r, b)
    C.v("v_mov_b32", "v2", MISC)
    for r in range(24, 28): C.v("v_mov_b32", V(r), 0)
    C.dsw("ds_write_b128", "v2", "v[24:27]"); C.dsw("ds_write_b32", "v2", "v24", RDY)
    C.v("v_mov_b32", "v5", 0); C.v("v_mov_b32", "v6", 1)
    if OPT.get("pretouch", 1):
        C.v("v_mov_b32", "v11", 0x10000)
        C.s("s_mov_b64", "exec", 1)
        C.cond = True
        if OPT.get("pt2", 0):
            C.gload("global_load_dword", "v248", "v11", "s[36:37]")
            C.gload("global_load_ushort", "v249", "v5", "s[32:33]")
        C.gload("global_load_ushort", "v250", "v5", "s[30:31]")
        C.cond = False
        C.s("s_mov_b64", "exec", -1)
    C.v("v_and_b32", "v8", 15, "v1"); C.v("v_mul_u32_u24", "v7", 104, "v8"); C.v("v_add_u32", "v7", "s13", "v7")
    C.v("v_lshrrev_b32", "v9", 2, "v1"); C.v("v_xor_b32", "v9", "v9", "v1"); C.v("v_and_b32", "v9", 8, "v9")
    C.v("v_and_b32", "v10", 16, "v1"); C.v("v_add_u32", "v4", "v9", "v10")
def c_xform(C):
    C.v("v_add_u32", "v11", "s13", "v32")
    for r in range(12, 20):
        C.v("v_and_b32", "v8" if r & 1 else "v9", 8, V(r))
        C.v("v_lshlrev_b32", V(r), 5, V(r))
        C.v("v_lshl_or_b32", V(r), "v8" if r & 1 else "v9", 1, V(r))
        if r == 15: C.dsw("ds_write_b128", "v11", "v[12:15]")
    C.dsw("ds_write_b128", "v11", "v[16:19]", 640)
def c_addr(C):
    for r in range(13): C.dsr("ds_read_b64", V(GA + 2 * r, 2), "v7", 8 * r)
    for f in range(26):
        if f in (0, 12): C.waitcnt(None, 7 if f == 0 else 0)
        for o in gaddr_ops(GA + f, GA + f, 4, 0): emitv(C, o)

c_setup2(C)
C.s("s_mov_b32", "s38", 0); C.s("s_mov_b32", "s91", 0)
c_xform(C)
stamp(C, 2)
C.waitcnt(0, 0)
C.s("s_barrier")
stamp(C, 3)
if OPT.get("xprio", 0): C.s("s_setprio", OPT["xprio"])
C.label("L_C_join")
c_addr(C)

PASSES = [(4, 5), (0, 2), (1, 3), (6, 7)]
ACC = 118
SACC = 182
KAP, KAP2, MSK = 195, 196, 197
ZR = 198
STGR = 214
NSTG = OPT.get("nstg2", 5)
RES0 = STGR + 4 * NSTG
def Fr(u, r):
    if u < 4: return 40 + 26 * (u & 1) + 2 * r + (u >> 1)
    return {4: 8, 5: 21, 6: 92, 7: 105}[u] + r
def Rw(f): return Fr(f & 1, f >> 1)
MX, MN = 182, 183
LEAD = 12
def sig1():
    C.s("s_cmp_eq_u32", "s38", 0); C.s("s_cbranch_scc1", "L_C_s1")
    C.s("s_mov_b64", "exec", 1)
    C.raw("s_waitcnt vmcnt(0)", 'wait')
    stamp(C, "pe")
    C.raw(f"ds_add_rtn_u32 v186, v2, v6 offset:{PCNT}", 'misc')
    C.v("v_mov_b32", "v187", "s90")
    C.s("s_mov_b32", "s38", 0)
    C.raw("s_waitcnt lgkmcnt(0)", 'wait')
    C.v("v_readfirstlane_b32", "s5", "v186")
    C.s("s_cmp_lg_u32", "s5", 3); C.s("s_cbranch_scc1", "L_C_s1b")
    C.raw(f"buffer_atomic_or v187, v5, s[{R_DBG}:{R_DBG+3}], 0 offen sc1", 'misc')
    stamp(C, "pf")
    C.label("L_C_s1b")
    C.s("s_mov_b64", "exec", -1)
    C.label("L_C_s1")
def sig2():
    C.s("s_cmp_eq_u32", "s38", 0); C.s("s_cbranch_scc1", "L_C_s2")
    C.raw("s_waitcnt vmcnt(0)", 'wait')
    C.v("v_readfirstlane_b32", "s5", "v187")
    C.s("s_or_b32", "s5", "s5", "s90"); C.s("s_cmp_lg_u32", "s5", "0x3fff"); C.s("s_cbranch_scc1", "L_C_s2")
    C.s("s_mov_b64", "exec", 1)
    C.raw(f"buffer_store_dword v6, v5, s[{R_DBG}:{R_DBG+3}], 0 offen offset:128 sc1", 'misc')
    C.s("s_mov_b64", "exec", -1)
    stamp(C, "pf")
    C.label("L_C_s2")
for f in range(LEAD): C.dsr("ds_read_b64", V(Rw(f), 2), V(GA + f), TAB)
for f in range(26):
    if f == OPT.get("sig1", 8): sig1()
    if f + LEAD < 26: C.dsr("ds_read_b64", V(Rw(f + LEAD), 2), V(GA + f + LEAD), TAB)
    C.v("v_pk_maximum3_f16", V(MX), V(Rw(f)), V(Rw(f) + 1), V(MX) if f else V(Rw(f)))
    C.v("v_pk_minimum3_f16", V(MN), V(Rw(f)), V(Rw(f) + 1), V(MN) if f else V(Rw(f)))
stamp(C, "mx")
C.v("v_lshlrev_b32", "v250", 16, "v250"); C.v("v_mul_f32", "v250", "0x3e800000", "v250")
C.v("v_readfirstlane_b32", "s96", "v250")
C.v("v_and_b32", V(MX), "0x7fff7fff", V(MX)); C.v("v_and_b32", V(MN), "0x7fff7fff", V(MN))
C.v("v_pk_max_u16", V(MX), V(MX), V(MN))
C.v("v_lshrrev_b32", V(MN), 16, V(MX)); C.v("v_and_b32", V(MX), "0xffff", V(MX)); C.v("v_max_u32", V(MX), V(MX), V(MN))
C.v("v_mov_b32", V(MN), V(MX))
C.v("v_mov_b32", V(MSK), "0xfff8fff8")
C.s("s_mov_b32", "s12", "0x05040100")
C.v("v_permlane32_swap_b32", V(MX), V(MN))
C.v("v_max_u32", V(MX), V(MX), V(MN))
C.v("v_lshrrev_b32", V(MX), 7, V(MX)); C.v("v_max_u32", V(MX), 127, V(MX)); C.v("v_min_u32", V(MX), 254, V(MX))
SCL = 4
C.v("v_sub_u32", V(MN), 260, V(MX)); C.v("v_lshlrev_b32", V(SCL), 23, V(MN))
C.v("v_lshlrev_b32", V(MX), 2, V(MX)); C.v("v_subrev_u32", "v3", 4 * 133 + 282, V(MX))
C.v("v_cvt_pkrtz_f16_f32", V(KAP), V(SCL), V(SCL))
C.v("v_pk_mul_f16", V(KAP2), V(KAP), V(KAP)); C.v("v_and_b32", V(KAP2), "0xffff", V(KAP2))
def conv_ops(kk, T0, nt):
    L = []
    for r in range(13):
        a, b = Fr(2 * kk, r), Fr(2 * kk + 1, r)
        t = T0 + 4 * (r % nt)
        lo, hi = a, b; rp = (r - 1) % 13
        L += [("v_lshlrev_b32", V(t), 16, V(a), ""), ("v_lshlrev_b32", V(t + 1), 16, V(b), ""),
              ("v_mul_f32", V(t + 2), V(SCL), V(a), ""), ("v_mul_f32", V(t + 3), V(SCL), V(b), ""),
              ("v_mul_f32", V(t), V(SCL), V(t), ""), ("v_mul_f32", V(t + 1), V(SCL), V(t + 1), ""),
              ("v_cvt_pkrtz_f16_f32", V(hi), V(t + 2), V(t + 3), ""), ("v_cvt_pkrtz_f16_f32", V(lo), V(t), V(t + 1), ""),
              ("v_and_b32", V(hi), V(MSK), V(hi), ""),
              ("v_cvt_pkrtz_f16_f32", V(Fr(4 + 2 * kk, rp)), V(t + 1), V(t), ""),
              ("v_alignbit_b32", V(Fr(5 + 2 * kk, rp)), V(hi), V(hi), 16, "")]
        if r >= 2:
            for k in range(2): L.append(("v_permlane32_swap_b32", V(Fr(2 * kk + k, r - 2)), V(Fr(4 + 2 * kk + k, r - 2)), ""))
    for r in (12, 11):
        for k in range(2): L.append(("v_permlane32_swap_b32", V(Fr(2 * kk + k, r)), V(Fr(4 + 2 * kk + k, r)), ""))
    return L
FLG = 194
ops = conv_ops(0, 198, 3) + conv_ops(1, 246, 2)
C.v("v_lshlrev_b32", V(193), 4, "v1")
def a_load(tag):
    C.raw("s_call_b64 s[92:93], L_aload", 'salu')
AS = Stream()
AS.label("L_aload")
AS.s("s_cmp_lg_u32", "s3", 0); AS.s("s_cbranch_scc1", "L_C_nr")
AS.raw(f"ds_write_b32 v2, v6 offset:{RDY}", 'misc')
AS.label("L_C_nr")
AS.s("s_lshr_b32", "s8", "s2", 3); AS.s("s_and_b32", "s9", "s8", 3)
AS.s("s_mul_i32", "s13", "s3", 11264)
AS.s("s_cmp_eq_u32", "s9", 3); AS.s("s_cselect_b32", "s9", 0, "s9"); AS.s("s_lshl_b32", "s9", "s9", 12)
for n in range(3):
    AS.s("s_add_u32", "s11", "s13", "s9")
    AS.s("s_add_u32", "m0", "s11", AIMG)
    AS.s("s_cmp_eq_u32", "s9", 8192)
    for e in range(3):
        AS.raw(f"buffer_load_dwordx4 v193, s[{R_WS}:{R_WS+3}], s11 offen offset:{1024*e} sc1 lds", 'misc')
    AS.s("s_cbranch_scc1", f"L_al{n}")
    AS.raw(f"buffer_load_dwordx4 v193, s[{R_WS}:{R_WS+3}], s11 offen offset:3072 sc1 lds", 'misc')
    AS.label(f"L_al{n}")
    if n < 2: AS.s("s_cselect_b32", "s9", -4096, "s9"); AS.s("s_add_u32", "s9", "s9", 4096)
AS.s("s_mov_b32", "s39", 0)
AS.raw("s_setpc_b64 s[92:93]", 'salu')
NDEF = OPT.get("ndef", 0)
ops1 = ops[len(ops) - NDEF:]; ops = ops[:len(ops) - NDEF]
NPRE = OPT.get("npre", 0)
ops2 = ops[len(ops) - NPRE:]; ops = ops[:len(ops) - NPRE]
POLL = f"buffer_load_dword v{FLG}, v5, s[{R_DBG}:{R_DBG+3}], 0 offen sc1"
CHECKS = [int(x) for x in str(OPT.get("chk", "0")).split("_") if 0 < int(x) < len(ops)]
for i, o in enumerate(ops):
    PC = OPT.get("pchk", 0)
    if PC and i == PC - 60:
        C.s("s_cmp_eq_u32", "s91", 0); C.s("s_cbranch_scc1", "L_C_pp")
        C.raw(POLL, 'misc')
        C.label("L_C_pp")
    if PC and i == PC:
        C.s("s_cmp_eq_u32", "s91", 0); C.s("s_cbranch_scc1", "L_C_pc")
        C.raw("s_waitcnt vmcnt(0)", 'wait')
        C.v("v_readfirstlane_b32", "s5", V(FLG))
        C.s("s_cmp_lg_u32", "s5", "0x3fff"); C.s("s_cbranch_scc1", "L_C_pc")
        C.s("s_setprio", 3)
        C.raw(f"ds_write_b32 v2, v6 offset:{RDY}", 'misc')
        a_load("p")
        C.s("s_setprio", OPT.get("pprio2", 0))
        C.label("L_C_pc")
    if i in CHECKS:
        t = str(CHECKS.index(i) + 1)
        C.s("s_cmp_eq_u32", "s39", 0); C.s("s_cbranch_scc1", "L_C_nc" + t)
        C.raw("s_waitcnt vmcnt(0)", 'wait')
        C.v("v_readfirstlane_b32", "s5", V(FLG))
        C.s("s_cmp_lg_u32", "s5", "0x3fff"); C.s("s_cbranch_scc1", "L_C_nc" + t)
        C.raw(f"ds_write_b32 v2, v6 offset:{RDY}", 'misc')
        a_load(t)
        C.label("L_C_nc" + t)
    nx = [c for c in CHECKS + [len(ops) + 30] if i == c - 70]
    if nx:
        if OPT.get("dl2", 0):
            C.label("L_dl2")
            C.raw("s_memrealtime s[66:67]", 'misc'); C.raw("s_waitcnt lgkmcnt(0)", 'wait')
            C.s("s_sub_u32", "s5", "s66", "s100"); C.s("s_cmp_lt_u32", "s5", OPT["dl2"]); C.s("s_cbranch_scc1", "L_dl2")
        C.raw(POLL, 'misc')
    emitv(C, o)
stamp(C, 6)
C.v("v_and_b32", V(192), 31, "v1"); C.v("v_lshrrev_b32", V(191), 5, "v1")
C.v("v_cmp_eq_u32", "vcc", 28, V(192)); C.v("v_cmp_gt_u32", "s[14:15]", 25, V(192)); C.v("v_mov_b32", V(190), 26)
C.v("v_cndmask_b32", V(190), V(190), 25, "vcc") if False else None
C.v("v_subb_co_u32", V(190), "s[10:11]", V(190), 0, "vcc") if False else None
C.v("v_mov_b32", V(189), 25); C.v("v_cndmask_b32", V(190), V(190), V(189), "vcc"); C.v("v_cndmask_b32", V(192), V(190), V(192), "s[14:15]")
C.v("v_mul_u32_u24", V(192), RS, V(192)); C.v("v_mul_u32_u24", V(191), 384, V(191)); C.v("v_add3_u32", "v7", V(192), V(191), "v5")
C.v("v_add_u32", "v7", AIMG, "v7")
C.s("s_setprio", 3)
C.raw("s_waitcnt vmcnt(0)", 'wait')
C.v("v_readfirstlane_b32", "s5", V(FLG))
C.s("s_cmp_lg_u32", "s5", "0x3fff")
C.s("s_cbranch_scc1", "L_C_notyet")
C.label("L_C_ready")
stamp(C, 7)
for ins in AS.out[1:-2]: C.out.append(ins)
AS = Stream()
AS.label("L_C_notyet")
AS.s("s_setprio", 0)
AS.s("s_cmp_lg_u32", "s3", 0); AS.s("s_cbranch_scc1", "L_C_w0")
AS.s("s_mov_b32", "s14", 1 << 17)
AS.label("L_C_poll")
AS.s("s_sleep", OPT.get("psl", 6))
AS.raw(POLL, 'misc')
AS.raw("s_waitcnt vmcnt(0)", 'wait')
AS.v("v_readfirstlane_b32", "s5", V(FLG))
AS.s("s_sub_u32", "s14", "s14", 1); AS.s("s_cmp_eq_u32", "s14", 0); AS.s("s_cbranch_scc1", "L_C_got")
AS.s("s_cmp_lg_u32", "s5", "0x3fff")
AS.s("s_cbranch_scc1", "L_C_poll")
AS.label("L_C_got")
AS.s("s_setprio", 3)
AS.s("s_branch", "L_C_ready")
AS.label("L_C_w0s")
AS.s("s_sleep", 2)
AS.label("L_C_w0")
AS.dsr("ds_read_b32", V(190), "v2", RDY); AS.waitcnt(None, 0)
AS.v("v_readfirstlane_b32", "s5", V(190)); AS.s("s_cmp_eq_u32", "s5", 0); AS.s("s_cbranch_scc1", "L_C_w0s")
AS.s("s_branch", "L_C_got")
C.s("s_setprio", OPT.get("prio2", 0))
for o in ops2: emitv(C, o)
for k in range(13): C.v("v_mov_b32", V(SACC + k), 0)

order = list(range(22, 24)) + list(range(22))
order_last = [22, 0] + list(range(1, 22)) + [23]
steps = [(n, ks) for n in range(4) for ks in (order if n < 3 else order_last)]
def zops(si):
    n, ks = steps[si]; L = []
    for h in range(2):
        u = PASSES[n][h]; q = ZR + 8 * (si % 2) + 4 * h
        for j in range(4):
            ins = sm.dwords[4 * ks + j]; d = V(q + j)
            if ins[0] == 'A': L.append(("v_pk_mul_f16", d, V(Fr(u, ins[1])), V(Fr(u, ins[2])), "op_sel:[0,0] op_sel_hi:[0,1]"))
            elif ins[0] == 'D': L.append(("v_pk_mul_f16", d, V(Fr(u, ins[1])), V(Fr(u, ins[1])), "op_sel:[0,0] op_sel_hi:[0,1]"))
            elif ins[0] == 'E':
                L.append(("v_perm_b32", d, V(Fr(u, ins[2])), V(Fr(u, ins[1])), "s12", ""))
                L.append(("v_pk_mul_f16", d, d, d, ""))
            elif ins[0] == 'L': L.append(("v_pk_mul_f16", d, V(Fr(u, ins[1])), V(KAP), ""))
            else: L.append(("v_mov_b32", d, V(KAP2), ""))
    return L
for o in zops(0): emitv(C, o)
C.raw("s_waitcnt vmcnt(0)", 'wait')
lds_signal(C, 2, 6, CNT2)
C.s("s_setprio", 0)
lds_wait(C, 2, 255, CNT2, 4, "L_C_w2")
C.label("L_C_go")
C.s("s_setprio", 1)
stamp(C, 8)
uses = []
for si, (n, ks) in enumerate(steps):
    if ks < 22: uses.append((si, 0))
    uses.append((si, 1))
resident = {}
free_quads = list(range(RES0, 246 - 3 if ops1 else 253, 4))
had1 = bool(ops1)
LOOK = NSTG - 2
stg_next = [0]; use_reg = {}; use_tok = {}
def plan_read(i):
    si, blk = uses[i]; n, ks = steps[si]; fid = (blk, ks)
    if fid in resident: use_reg[(si, blk)] = resident[fid]; return
    if free_quads and n < 3:
        reg = free_quads.pop(0); resident[fid] = reg
    else:
        reg = STGR + 4 * stg_next[0]; stg_next[0] = (stg_next[0] + 1) % NSTG
    use_reg[(si, blk)] = reg
    use_tok[(si, blk)] = C.dsr("ds_read_b128", V(reg, 4), "v7", blk * BS + ks * 16)
nread = [0]
def read_upto(i):
    while nread[0] <= i and nread[0] < len(uses): plan_read(nread[0]); nread[0] += 1
read_upto(LOOK)
accs = [{(0, 0): ACC, (1, 0): ACC + 16, (0, 1): ACC + 32, (1, 1): ACC + 48}]
spare = [8, 24]
for n in range(1, 4):
    p = accs[-1]
    accs.append({(1, 0): spare[0], (1, 1): spare[1], (0, 0): p[(0, 0)], (0, 1): p[(1, 0)]})
    spare = [p[(0, 1)], p[(1, 1)]]
EXR, EXU = 66, 79
T1, RP = 92 - 2, 0
first_of = set(); extra = []; tail_pre = []
mi = 0; ui = 0
for si, (n, ks) in enumerate(steps):
    seq = [(0, 0), (1, 0), (1, 1), (0, 1)] if ks < 22 else [(1, 0), (1, 1)]
    if OPT.get("cord", 0) == 1 and ks < 22: seq = [(0, 0), (0, 1), (1, 1), (1, 0)]
    if OPT.get("cord", 0) == 2 and ks < 22 and si % 2: seq = [(0, 1), (1, 1), (1, 0), (0, 0)]
    if ks == order[-1]: seq = [(0, 0), (1, 0), (0, 1), (1, 1)] if n < 3 else [(0, 0), (0, 1), (1, 0), (1, 1)]
    if n > 0 and ks == 0: seq = [(1, 0), (1, 1), (0, 1), (0, 0)]
    if si == len(order) - 1: assert not ops1, len(ops1)
    pend = zops(si + 1) if si + 1 < len(steps) else []
    if ks == order[0]:
        pm = 0
        if n > 0 and STAMPS and ("u%d" % n in SEL or "Ru%d" % n in SEL):
            keep = list(C.lg); stamp(C, "u%d" % n); C.lg = keep
        if n > 0:
            p = accs[n - 1]
            epa = [("v_fmac_f32", V(SACC + k), V(p[(0, 0)] + k), V(p[(1, 0)] + k), "") for k in range(13)]
            epb = [("v_fmac_f32", V(SACC + k), V(p[(0, 1)] + k), V(p[(1, 1)] + k), "") for k in range(13)]
            if n == 1 and had1: free_quads += [246, 250]
            if n == 2: free_quads += list(range(40, 63, 4))
            if n == 3:
                sp = spare
                T1, RP = sp[0], sp[0] + 2
                tail_pre = [("v", "v_lshrrev_b32", V(MSK), 5, "v1", ""), ("v", "v_mul_u32_u24", V(SCL), RS, V(MSK), ""), ("v", "v_lshlrev_b32", V(MSK), 2, V(SCL), ""),
                            ("v", "v_add_u32", V(MSK), AIMG + 768, V(MSK), ""), ("v", "v_add_u32", V(SCL), AIMG + 768, V(SCL), "")]
                for k in range(13):
                    row = 8 * (k // 4) + k % 4; ar = V(SCL) if k == 12 else V(MSK)
                    tail_pre += [("r", "ds_read_b32", V(EXR + k), ar, row * RS), ("r", "ds_read_b32", V(EXU + k), ar, BS + row * RS)]
                tail_pre += [("v", "v_add3_u32", V(EXR + k), V(EXR + k), V(EXU + k), "v3", "") for k in range(13)]
                tail_pre += [("v", "v_and_b32", "v5", 15, "v1", ""),
                  ("s", "s_lshl_b32", "s5", "s3", 8), ("s", "s_add_u32", "s5", "s5", RING), ("v", "v_lshl_add_u32", V(T1), "v1", 2, "s5", ""),
                  ("v", "v_lshlrev_b32", "v5", 1, "v5", ""),
                  ("s", "s_lshl_b32", "s13", "s2", 2), ("s", "s_add_u32", "s13", "s13", "s3"), ("s", "s_lshl_b32", "s13", "s13", 5),
                  ]
                tail_pre += [("v", "v_ldexp_f32", V(SACC + k), V(SACC + k), V(EXR + k), "") for k in range(13)]
                for k in range(4, 13): tail_pre += [("v", "v_add_f32", V(SACC + k % 4), V(SACC + k % 4), V(SACC + k), "")]
                tail_pre += [("v", "v_add_f32", V(SACC + 1), "s96", V(SACC + 1), "")]
        else: epa, epb = [], []
    nblk = 2 if ks < 22 else 1
    for e, (blk, h) in enumerate(seq):
        if e == 0 or (e == 2 and nblk == 2): ui += 1; read_upto(ui - 1 + LOOK + (1 if False else 0))
        if e == 0 and OPT.get("mw", 1): C.wait(use_tok.get((si, 0)), use_tok.get((si, 1)))
        acc = accs[n][(blk, h)]
        first = (n, blk, h) not in first_of; first_of.add((n, blk, h))
        if first and blk == 0: assert not epa
        C.mfma("v_mfma_f32_32x32x16_f16", V(acc, 16), V(use_reg[(si, blk)], 4), V(ZR + 8 * (si % 2) + 4 * h, 4), 0 if first else V(acc, 16))
        pm += 1
        left = len(seq) - e
        cnt = len(pend) if left <= 1 else min(len(pend), -(-len(pend) // left) + (1 if left == 2 and len(seq) == 4 else 0))
        for o in pend[:cnt]: emitv(C, o)
        pend = pend[cnt:]
        if epa:
            for _ in range(4 if n == 3 else (2 if ks >= 22 else 3)):
                if epa: emitv(C, epa.pop(0))
        elif epb and pm >= 4:
            for _ in range(2):
                if epb: emitv(C, epb.pop(0))
        elif ops1 and cnt <= 3:
            for _ in range(5 - cnt if cnt < 3 else 1):
                if ops1: emitv(C, ops1.pop(0))
        elif tail_pre and not epb and cnt <= 2:
            for _ in range(2):
                if not tail_pre: break
                o = tail_pre.pop(0)
                if o[0] == "v": emitv(C, o[1:])
                elif o[0] == "r": C.dsr(*o[1:])
                elif o[0] == "s": C.s(*o[1:])
                else: C.gload("global_load_ushort", "v6", "v5", "s[30:31]")
        if si == len(steps) - 4 and e == 0:
            assert not tail_pre, len(tail_pre)
            C.dsr("ds_read_b32", V(SACC + 5), "v2", CNT3)
            for j in range(4): C.dsr("ds_read_b32", V(RP + j), V(T1), j * RSZ)
        if si == len(steps) - 3 and e == 1:
            C.v("v_readfirstlane_b32", "s10", V(SACC + 5))
        if (si == len(steps) - 2 and e == 3) or (si == len(steps) - 1 and e == 0):
            hh = 0 if e == 3 else 1
            for k in range(13): C.v("v_ldexp_f32", V(accs[3][(0, hh)] + k), V(accs[3][(0, hh)] + k), V(EXR + k))
stamp(C, 9)
p = accs[3]
C.s("s_cmp_lt_u32", "s10", 4)
C.s("s_cbranch_scc1", "L_C_slow")
SL = Stream()
SL.label("L_C_slow")
SL.s("s_setprio", 0)
lds_wait(SL, 2, KAP, CNT3, 4, "L_C_w3", sleep=1)
for j in range(4): SL.dsr("ds_read_b32", V(RP + j), V(T1), j * RSZ)
SL.waitcnt(None, 0)
SL.s("s_branch", "L_C_fin")
C.label("L_C_fin")
for j in range(4): C.v("v_add_f32", V(SACC + j), V(SACC + j), V(RP + j))
for h in range(2):
    for k in range(13): C.v("v_fmac_f32", V(SACC + k % 4), V(p[(0, h)] + k), V(p[(1, h)] + k))
C.v("v_add_f32", V(SACC), V(SACC), V(SACC + 1)); C.v("v_add_f32", V(SACC + 2), V(SACC + 2), V(SACC + 3)); C.v("v_add_f32", V(SACC), V(SACC), V(SACC + 2))
C.v("v_mov_b32", V(SACC + 1), V(SACC)); C.v("v_permlane32_swap_b32", V(SACC), V(SACC + 1)); C.v("v_add_f32", V(SACC), V(SACC), V(SACC + 1))
C.v("v_mov_b32", V(SACC + 1), V(SACC)); C.v("v_permlane16_swap_b32", V(SACC), V(SACC + 1))
C.v("v_add_f32", V(SACC), V(SACC), V(SACC + 1))
C.v("v_cvt_pk_bf16_f32", V(SACC), V(SACC), V(SACC))
if OPT.get("dl", 0):
    C.label("L_dl")
    C.raw("s_memrealtime s[66:67]", 'misc'); C.raw("s_waitcnt lgkmcnt(0)", 'wait')
    C.s("s_sub_u32", "s5", "s66", "s100"); C.s("s_cmp_lt_u32", "s5", OPT["dl"]); C.s("s_cbranch_scc1", "L_dl")
if OPT.get("dmask", 0):
    C.s("s_and_b32", "s5", "s2", 7); C.s("s_lshr_b32", "s5", OPT["dmask"], "s5"); C.s("s_and_b32", "s5", "s5", 1)
    C.s("s_cmp_eq_u32", "s5", 0); C.s("s_cbranch_scc1", "L_nodelay")
    C.raw("s_memrealtime s[64:65]", 'misc'); C.raw("s_waitcnt lgkmcnt(0)", 'wait')
    C.label("L_delay")
    C.s("s_sleep", 2)
    C.raw("s_memrealtime s[66:67]", 'misc'); C.raw("s_waitcnt lgkmcnt(0)", 'wait')
    C.s("s_sub_u32", "s5", "s66", "s64"); C.s("s_cmp_lt_u32", "s5", OPT["dus"]); C.s("s_cbranch_scc1", "L_delay")
    C.label("L_nodelay")
C.s("s_mov_b64", "exec", "0xffff")
C.bstore("buffer_store_short", V(SACC), "v5", S(R_OUT, 4), "s13")
if STAMPS:
    C.s("s_mov_b64", "exec", -1)
    stamp(C, 10)
    dump_stamps(C, 250, 251)
C.s("s_endpgm")

WOF, BF, MD, MA, NF, LUT, IDN, MF, TD, TF, SD, FAC, LA = 44, 48, 92, 236, 140, 148, 164, 172, 180, 196, 204, 156, 220
lut = [[None] * 16 for _ in range(64)]
for l in range(64):
    j, hfc = l & 31, l >> 5
    for k in range(14):
        q = 8 * (k // 4) + 4 * hfc + k % 4
        if q < 26 and j <= 26 and q <= j:
            hf, di, half = sm.target[(q, j)]
            lut[l][k] = hf * 384 + di * 4 + half * 2
hf, di, half = sm.target[(26, 26)]
lut[0][14] = hf * 384 + di * 4 + half * 2
def emask(k): return sum(1 << l for l in range(64) if lut[l][k] is not None)
fac = [[0x3c003c00] * 4 for _ in range(64)]
for a_ in range(26):
    hf, di, half = sm.target[(a_, a_)]
    l = hf * 24 + di // 4
    fac[l][di % 4] = (fac[l][di % 4] & ~(0xffff << (16 * half))) | (0x3800 << (16 * half))
def producer(Q, typ):
    tag = "u" if typ == 1 else "x"
    Q.label("L_P1" + tag)
    Q.s("s_setprio", 3)
    BB = "pb" if typ == 1 else OPT.get("bbx", "pa")
    if typ == 1: Q.s("s_lshl_b32", "s39", "s15", 2)
    else: Q.s("s_sub_u32", "s39", "s15", 7); Q.s("s_lshl_b32", "s39", "s39", 2)
    Q.s("s_add_u32", "s39", "s39", "s3")
    Q.s("s_mul_i32", "s93", "s39", 52 if typ == 1 else 1352)
    if typ == 1: Q.s("s_add_u32", "s93", "s93", 35152)
    Q.v("v_and_b32", "v29", 31, "v1"); Q.v("v_lshrrev_b32", "v30", 5, "v1")
    Q.v("v_mul_u32_u24", "v31", 1352 if typ == 1 else 52, "v29"); Q.v("v_lshl_add_u32", "v31", "v30", 4, "v31")
    Q.bload("buffer_load_dwordx4", V(NF, 4), "v31", S(R_CIN, 4), "s93")
    Q.bload("buffer_load_dwordx4", V(NF + 4, 4), "v31", S(R_CIN, 4), "s93", 32)
    Q.raw("s_add_u32 s94, s94, L_lut-L_pc", 'salu'); Q.raw("s_addc_u32 s95, s95, 0", 'salu')
    for c in range(3): Q.gload("global_load_dwordx4", V(LUT + 4 * c, 4), "v32", "s[94:95]", c * 1024)
    if typ == 1:
        Q.s("s_mov_b32", S(R_WO + 2), 156); srd(Q, R_WO, 22)
        Q.v("v_and_b32", "v35", 48, "v1"); Q.v("v_lshlrev_b32", "v34", 1, "v29")
        Q.bload("buffer_load_dwordx4", V(WOF, 4), "v35", S(R_WO, 4), 0, 104)
        Q.bload("buffer_load_ushort", "v34", "v34", S(R_WO, 4), 0, 52)
        Q.s("s_lshl_b32", "s5", "s39", 1); Q.v("v_mov_b32", "v35", 0)
        Q.bload("buffer_load_ushort", "v35", "v35", S(R_WO, 4), "s5")
    def w3_dma(ms, issue=True):
        tk = None
        for m in ms:
            src = "v1"
            if m: Q.v("v_add_u32", "v22", 64 * m, "v1"); src = "v22"
            Q.v("v_mul_u32_u24", "v20", 2979, src); Q.s("s_add_u32", "m0", "s90", 1024 * m); Q.v("v_lshrrev_b32", "v20", 16, "v20")
            Q.v("v_mul_u32_u24", "v20", 1000, "v20"); Q.v("v_lshl_add_u32", V(112 + m), src, 4, "v20")
            if issue: tk = Q.dma(V(112 + m), S(R_CIN, 4), "s91")
        return tk
    if typ == 1:
        Q.s("s_mul_i32", "s90", "s3", 11264); Q.s("s_add_u32", "s90", "s90", W3S)
        Q.s("s_mul_i32", "s91", "s3", 352); Q.s("s_add_u32", "s91", "s91", 70304)
        w3_dma(range(OPT.get("w3a", 4)))
    if BB == "pa": Q.s("s_barrier")
    Q.s("s_branch", "L_P2" + tag)
    Q.label("L_P2" + tag)
    stamp(Q, 2)
    c_setup2(Q)
    Q.s("s_lshl_b32", "s5", "s3", 10); Q.s("s_add_u32", "s92", "s5", STG)
    Q.v("v_add_u32", "v41", "s92", "v32")
    Q.dsw("ds_write_b128", "v41", "v[24:27]")
    if typ == 1:
        Q.v("v_add_u32", "v42", "s90", "v32"); Q.dsw("ds_write_b128", "v42", "v[24:27]", 9216); Q.dsw("ds_write_b128", "v42", "v[24:27]", 10240)
        Q.s("s_mov_b64", "exec", "0xffffff")
        Q.v("v_add_u32", "v42", M3B + 26 * 64, "v32"); Q.dsw("ds_write_b128", "v42", "v[24:27]")
        Q.s("s_mov_b64", "exec", -1)
        Q.v("v_lshlrev_b32", "v43", 6, "v29"); Q.v("v_add_u32", "v43", M3B, "v43"); Q.dsw("ds_write_b64", "v43", "v[24:25]", 56)
    Q.v("v_and_b32", "v36", 1, "v29"); Q.v("v_lshlrev_b32", "v36", 4, "v36")
    Q.v("v_mov_b32", "v37", "0x3f80"); Q.v("v_lshlrev_b32", "v37", "v36", "v37")
    Q.v("v_cmp_gt_u32", "vcc", 26, "v29"); Q.v("v_lshrrev_b32", "v38", 1, "v29")
    Q.v("v_lshlrev_b32", "v39", 2, "v30"); Q.v("v_cndmask_b32", "v37", 0, "v37", "vcc")
    Q.v("v_sub_u32", "v39", "v38", "v39")
    Q.v("v_lshlrev_b32", "v40", 1, "v30"); Q.v("v_sub_u32", "v40", "v38", "v40")
    def ident(dst, vsel, key):
        for s_ in range(2):
            for m in range(0, 4, 2):
                Q.v("v_cmp_eq_u32", "vcc", key(s_, m), vsel); Q.v("v_cmp_eq_u32", "s[96:97]", key(s_, m + 1), vsel)
                Q.v("v_cndmask_b32", V(dst + 4 * s_ + m), 0, "v37", "vcc"); Q.v("v_cndmask_b32", V(dst + 4 * s_ + m + 1), 0, "v37", "s[96:97]")
    ident(IDN, "v39", lambda s_, m: 8 * s_ + m)
    if typ == 2: ident(MF, "v40", lambda s_, m: 8 * s_ + 4 * (m >> 1) + (m & 1))
    Q.s("s_mul_i32", "s93", "s39", RS)
    if typ == 1: Q.s("s_add_u32", "s93", "s93", BS)
    Q.v("v_mov_b32", "v36", "s92")
    if typ == 1:
        Q.v("v_lshrrev_b32", "v38", 4, "v1"); Q.v("v_bfe_u32", "v39", "v1", 2, 2); Q.v("v_lshl_add_u32", "v38", "v38", 3, "v39"); Q.v("v_mul_u32_u24", "v38", 352, "v38")
        Q.v("v_and_b32", "v40", 3, "v1"); Q.v("v_lshl_add_u32", "v38", "v40", 3, "v38"); Q.v("v_add_u32", "v28", "s90", "v38")
        Q.v("v_lshl_add_u32", "v39", "v30", 2, "v39"); Q.v("v_lshlrev_b32", "v39", 6, "v39"); Q.v("v_lshl_add_u32", "v39", "v40", 3, "v39")
        Q.v("v_and_b32", "v40", 16, "v1"); Q.v("v_lshl_add_u32", "v39", "v40", 1, "v39"); Q.v("v_add_u32", "v42", M3B, "v39")
        Q.s("s_mul_i32", "s5", "s3", 176); Q.v("v_add_u32", "v38", "s5", "v1")
        Q.v("v_mov_b32", "v43", M3B)
        for i in range(3):
            if i: Q.v("v_add_u32", "v38", 64, "v38")
            Q.v("v_mul_u32_u24", "v39", 2521, "v38"); Q.v("v_lshrrev_b32", "v39", 16, "v39")
            Q.v("v_mad_u32_u24", "v39", "v39", 12, "v43"); Q.v("v_lshl_add_u32", V(MA + i), "v38", 1, "v39")
        Q.v("v_cmp_gt_u32", "vcc", 676, "v38")
        Q.s("s_and_b32", "s15", "vcc_hi", "0xffff"); Q.s("s_mov_b32", "s14", "vcc_lo")
        Q.v("v_lshl_add_u32", "v43", "v29", 6, "v43")
    stamp(Q, "pa")
    if typ == 1:
        w3t = w3_dma(range(OPT.get("w3a", 4), 9))
        if OPT.get("pa2", 1): Q.waitcnt(None, 0); Q.s("s_barrier")
    Q.mfma("v_mfma_f32_32x32x16_bf16", V(TD, 16), V(NF, 4), V(IDN, 4), 0)
    Q.mfma("v_mfma_f32_32x32x16_bf16", V(TD, 16), V(NF + 4, 4), V(IDN + 4, 4), V(TD, 16))
    for k in range(15):
        Q.v("v_add_u32_sdwa", V(LA + k), "v36", V(LUT + k // 2), mods=f"dst_sel:DWORD dst_unused:UNUSED_PAD src0_sel:DWORD src1_sel:WORD_{k&1}")
    for m in range(8): Q.v("v_cvt_pk_bf16_f32", V(TF + m), V(TD + 2 * m), V(TD + 2 * m + 1))
    c_xform(Q)
    if typ == 1:
        Q.s("s_mov_b64", "exec", "0x3ffffff")
        Q.dsw("ds_write_b32", "v43", "v34", 52)
        Q.s("s_mov_b64", "exec", -1)
        Q.v("v_lshlrev_b32", "v35", 16, "v35")
        for q in range(4):
            Q.s("s_mov_b32", "s10", "0x%x" % (0x000f000f << (4 * q))); Q.s("s_mov_b32", "s11", "s10")
            for e in range(4): Q.v("v_cndmask_b32", V(MD + 16 + 4 * q + e), 0, V(WOF + e), "s[10:11]")
        Q.wait(w3t)
        stamp(Q, "pw")
        for T in range(11):
            for h in range(2): Q.dsr("ds_read_b64_tr_b16", V(BF + 4 * T + 2 * h, 2), "v28", 32 * T + 4 * 352 * h)
        for T in range(11):
            i = T // 4
            Q.mfma("v_mfma_f32_16x16x32_bf16", V(MD + 4 * i, 4), V(MD + 16 + 4 * (T % 4), 4), V(BF + 4 * T, 4), 0 if T % 4 == 0 else V(MD + 4 * i, 4))
        for i in range(3):
            Q.v("v_cvt_pk_bf16_f32", V(MD + 4 * i), V(MD + 4 * i), V(MD + 4 * i))
            if i == 2: Q.s("s_mov_b64", "exec", "s[14:15]")
            Q.dsw("ds_write_b16", V(MA + i), V(MD + 4 * i))
        if OPT.get("pa2", 1):
            lds_signal(Q, 2, 6, MCNT)
            stamp(Q, "pb")
            lds_wait(Q, 2, 44, MCNT, 4, "L_P_wm")
        else:
            Q.s("s_mov_b64", "exec", -1)
            stamp(Q, "pb")
            Q.waitcnt(None, 0)
            Q.s("s_barrier")
        for s_ in range(2):
            for jj in range(2): Q.dsr("ds_read_b64_tr_b16", V(MF + 4 * s_ + 2 * jj, 2), "v42", (16 * s_ + 8 * jj) * 64)
    aops = []
    if typ == 2 and OPT.get("xb1", 1):
        Q.waitcnt(None, 0); Q.s("s_barrier")
    for n_, mm in enumerate(((TF, MF, 0), (TF + 4, MF + 4, V(SD, 16)), (MF, TF, V(SD, 16)), (MF + 4, TF + 4, V(SD, 16)))):
        Q.mfma("v_mfma_f32_32x32x16_bf16", V(SD, 16), V(mm[0], 4), V(mm[1], 4), mm[2])
        c_ = 0 if n_ < 3 else 10
        for o in aops[:c_]: emitv(Q, o)
        aops = aops[c_:]
    ne = 15 if typ == 1 else 14
    if typ == 1: Q.v("v_mov_b32", V(SD + 14), "v35")
    Q.v("v_max3_f32", "v44", f"|{V(SD)}|", f"|{V(SD+1)}|", f"|{V(SD+ne-1)}|")
    Q.v("v_max3_f32", "v45", f"|{V(SD+2)}|", f"|{V(SD+3)}|", f"|{V(SD+4)}|")
    for k in range(5, 13, 4):
        Q.v("v_max3_f32", "v44", f"|{V(SD+k)}|", f"|{V(SD+k+1)}|", "v44"); Q.v("v_max3_f32", "v45", f"|{V(SD+k+2)}|", f"|{V(SD+k+3)}|", "v45")
    Q.v("v_max3_f32", "v44", f"|{V(SD+13)}|", "v45", "v44")
    for sh in (8, 4, 2, 1):
        for o in aops[:2]: emitv(Q, o)
        aops = aops[2:]
        Q.v("v_max_f32_dpp", "v44", "v44", "v44", mods=f"row_ror:{sh} row_mask:0xf bank_mask:0xf")
    for q in range(4): Q.v("v_readlane_b32", S(8 + q), "v44", 16 * q)
    stamp(Q, "pc")
    if BB == "pc": Q.s("s_barrier")
    Q.s("s_max_u32", "s8", "s8", "s9"); Q.s("s_max_u32", "s10", "s10", "s11"); Q.s("s_max_u32", "s8", "s8", "s10")
    Q.s("s_lshr_b32", "s8", "s8", 23); Q.s("s_max_u32", "s8", "s8", 67); Q.s("s_min_u32", "s8", "s8", 187)
    Q.s("s_sub_u32", "s9", 268, "s8"); Q.s("s_lshl_b32", "s9", "s9", 23)
    Q.s("s_cmp_ge_u32", "s39", 26); Q.s("s_cselect_b32", "s9", 0, "s9")
    for k in range(ne): Q.v("v_mul_f32", V(SD + k), "s9", V(SD + k))
    for k in range(0, ne, 2): Q.v("v_cvt_pk_f16_f32", V(SD + k), V(SD + k), V(SD + min(k + 1, ne - 1)))
    for k in range(ne):
        Q.dsw("ds_write_b16_d16_hi" if k & 1 else "ds_write_b16", V(LA + k), V(SD + (k & ~1)))
    Q.dsr("ds_read_b128", "v[240:243]", "v41")
    for o in aops[:10]: emitv(Q, o)
    aops = aops[10:]
    for e in range(4): Q.v("v_pk_mul_f16", V(240 + e), V(240 + e), V(FAC + e))
    if OPT.get("a8", 0):
        Q.v("v_mov_b32", "v46", "0x00040004"); Q.v("v_mov_b32", "v47", "0xfff8fff8")
        for e in range(4): Q.v("v_pk_add_u16", V(240 + e), V(240 + e), "v46")
        for e in range(4): Q.v("v_and_b32", V(240 + e), "v47", V(240 + e))
    Q.s("s_cmp_ge_u32", "s39", 27)
    Q.v("v_writelane_b32", "v240", "s8", 48)
    Q.s("s_cbranch_scc1", "L_P_skip" + tag)
    Q.cond = True
    Q.s("s_mov_b32", "exec_hi", "0x1ffff")
    Q.bstore("buffer_store_dwordx4", "v[240:243]", "v32", S(R_WS, 4), "s93", mods=SC1)
    Q.s("s_mov_b32", "exec_hi", -1)
    Q.cond = False
    Q.label("L_P_skip" + tag)
    stamp(Q, "pd")
    Q.s("s_mov_b32", "s38", 1); Q.s("s_mov_b32", "s91", 1)
    Q.s("s_lshr_b32", "s5", "s2", 3); Q.s("s_lshl_b32", "s90", 1, "s5")
    Q.waitcnt(None, 0)
    if not (typ == 2 and OPT.get("xb1", 1)): Q.s("s_barrier")
    stamp(Q, 3)
    Q.s("s_setprio", OPT.get("pprio", 0))
    Q.s("s_branch", "L_C_join")
CP.s("s_cmp_ge_u32", "s15", 7)
CP.s("s_cbranch_scc1", "L_P1x")
CX = CP.fork()
producer(CP, 1)
producer(CX, 2)

D.label("L_D2")
wt = D.gload("global_load_dword", "v15", "v9", "s[28:29]")
D.v("v_lshrrev_b32", "v10", 5, "v1"); D.v("v_bfe_u32", "v11", "v1", 2, 3); D.v("v_lshl_add_u32", "v11", "v10", 4, "v11"); D.v("v_mul_u32_u24", "v11", 224, "v11")
D.v("v_and_b32", "v12", 3, "v1"); D.v("v_lshl_add_u32", "v11", "v12", 3, "v11"); D.v("v_add_u32", "v9", "s7", "v11")
D.s("s_lshr_b32", "s5", "s39", 4); D.v("v_xor_b32", "v10", "s5", "v10")
D.v("v_and_b32", "v11", 15, "v1"); D.v("v_mul_u32_u24", "v11", 104, "v11"); D.v("v_lshl_add_u32", "v11", "v10", 2, "v11")
D.s("s_mul_i32", "s5", "s14", 32 * 104); D.s("s_sub_u32", "s9", 32 * 104, "s5")
D.v("v_add_u32", V(DT + 8), "s5", "v11"); D.v("v_add_u32", V(DT + 9), "s9", "v11")
D.v("v_and_b32", "v12", 16, "v1")
D.s("s_lshl_b32", "s10", "s4", 3)
D.s("s_lshl_b32", "s5", "s6", 10); D.s("s_add_u32", "s5", "s5", DSC)
D.v("v_lshl_add_u32", "v13", "v1", 3, "s5")
D.v("v_and_b32", "v10", 48, "v1"); D.v("v_add_u32", V(DT + 10), "s5", "v10")
D.v("v_lshlrev_b32", V(DT), 16, "v14"); D.v("v_and_b32", V(DT + 1), "0xffff0000", "v14")
D.dsw("ds_write_b64", "v13", V(DT, 2))
for b in range(7): D.dsr("ds_read_b128", V(BI + 4 * b, 4), V(DT + 10), 64 * b)
def i_base():
    D.v("v_add_u32", "v10", "s10", V(DT + 8)); D.v("v_add_u32", "v11", "s10", V(DT + 9))
def i_adv():
    D.s("s_add_u32", "s10", "s10", 8); D.s("s_cmp_eq_u32", "s10", 104); D.s("s_cselect_b32", "s10", 0, "s10")
def i_reads(t): return [("ds_read_b32", V(GI + 4 * (t & 1) + sb), "v10" if sb < 2 else "v11", IDXS + (sb & 1) * 16 * 104) for sb in range(4)]
def i_addr(t):
    L = []
    for k in range(4): L += gaddr_ops(GI + 4 * (t & 1) + k, GI + 4 * (t & 1) + k, 12, DT + 4 + k)
    return L
def w_reads(t):
    return [("ds_read_b64_tr_b16", V(WF + 28 * (t & 1) + 4 * b + 2 * h, 2), "v9", (t % NS) * SLOT + 32 * b + 8 * 224 * h) for b in range(7) for h in range(2)]
def x_reads(t): return [("ds_read_b128", V(XF + 16 * (t & 1) + 4 * sb, 4), V(GI + 4 * (t & 1) + sb), TAB) for sb in range(4)]
i_base(); i_adv()
if not OPT.get("w1late", 1):
    for m in range(7): w_m0(1, m); w_piece(1, m)
    w_adv(1)
wtok = {}
D.wait(tabt)
stamp(D, 8)
D.s("s_barrier")
stamp(D, 3)
D.s("s_setprio", 2)
for o in i_reads(0): D.dsr(*o)
i_base(); i_adv()
a0 = i_addr(0); xr0 = x_reads(0)
for sb in range(4):
    emitv(D, a0[sb]); D.dsr(*xr0[sb])
if OPT.get("w1late", 1):
    for m in range(7): w_m0(1, m); w_piece(1, m)
    w_adv(1)
D.wait(dmat[0])
stamp(D, 7)
for o in w_reads(0): wtok[0] = D.dsr(*o)
for o in i_reads(1): D.dsr(*o)
tiles = [(b, sb) for sb in range(4) for b in range(6)]
tiles = tiles[:6] + [(6, 0)] + tiles[6:12] + [(6, 1)] + tiles[12:]
if OPT.get("tord", 0) == 1: tiles = [(b, sb) for b in range(6) for sb in range(4)] + [(6, 0), (6, 1)]
if OPT.get("tord", 0) == 2:
    tiles = []
    for b in range(6): tiles += [(b, sb) for sb in (range(4) if b % 2 == 0 else range(3, -1, -1))]
    tiles += [(6, 0), (6, 1)]
def tacc(b, sb): return DACC + 4 * (4 * b + sb)
WSTART = OPT.get("wstart", 11)
for t in range(13):
    sched = {k: [] for k in range(26)}
    if t + 1 < 13:
        av = i_addr(t + 1); xr = x_reads(t + 1)
        for sb in range(4): sched[2 * sb + 1] += [("v", av[sb]), ("r", xr[sb])]
        sched[WSTART] += [("wait", t + 1)]
        for n, o in enumerate(w_reads(t + 1)): sched[WSTART + n // 2] += [("w", o)]
    if t + 2 < 13:
        sched[0] += [("ww", t), ("m0", t + 2, 0)]
        for m in range(7):
            k = [2, 4, 6, 8, 10, 20, 22][m] if OPT.get("dsp", 0) else 2 + 2 * m if m < 4 else 2 * m + 1
            k = {0: 2, 1: 4, 2: 6, 3: 8, 4: 10, 5: 19, 6: 21}[m] if OPT.get("dsp", 0) else {0: 2, 1: 4, 2: 6, 3: 8, 4: 9, 5: 10, 6: 10}[m]
            sched[k] += [("dma", t + 2, m)]
            if m == 3: sched[k] += [("m0", t + 2, 4)]
        sched[22] += [("adv", t + 2)]
        sched[WSTART + 7] += [("ib",)]
        for n, o in enumerate(i_reads(t + 2)): sched[WSTART + 8 + n // 2] += [("r", o)]
    if t in (1, 2, 5, 9): stamp(D, {1: "mx", 2: "pf", 5: 6, 9: 9}[t])
    for k, (b, sb) in enumerate(tiles):
        acc = tacc(b, sb)
        D.mfma("v_mfma_f32_16x16x32_bf16", V(acc, 4), V(WF + 28 * (t & 1) + 4 * b, 4), V(XF + 16 * (t & 1) + 4 * sb, 4), V(BI + 4 * b, 4) if t == 0 else V(acc, 4))
        for f in sched[k]:
            if f[0] == "v": emitv(D, f[1])
            elif f[0] == "r": D.dsr(*f[1])
            elif f[0] == "w": wtok[t + 1] = D.dsr(*f[1])
            elif f[0] == "wait": D.wait(dmat[f[1]])
            elif f[0] == "ww": D.wait(wtok[f[1]])
            elif f[0] == "ib": i_base(); i_adv()
            elif f[0] == "m0": w_m0(f[1], f[2])
            elif f[0] == "dma": w_piece(f[1], f[2])
            elif f[0] == "adv": w_adv(f[1])
stamp(D, 4)
D.s("s_setprio", 0)
D.v("v_mov_b32", V(DT + 4), f32(2.0 ** 100))
D.v("v_lshlrev_b32", V(DT + 2), 16, "v15"); D.v("v_and_b32", V(DT + 3), "0xffff0000", "v15")
D.v("v_rcp_f32", V(DT + 2), V(DT + 2)); D.v("v_rcp_f32", V(DT + 3), V(DT + 3))
D.v("v_med3_f32", V(DT + 2), V(DT + 2), V(DT + 4), "-" + V(DT + 4)); D.v("v_med3_f32", V(DT + 3), V(DT + 3), V(DT + 4), "-" + V(DT + 4))
D.dsw("ds_write_b64", "v13", V(DT + 2, 2), 512)
for b in range(7): D.dsr("ds_read_b128", V(BI + 4 * b, 4), V(DT + 10), 512 + 64 * b)
VK1, VK2, SS, GT = 120, 121, 124, 128
D.v("v_mov_b32", V(VK1), f32(K1)); D.v("v_mov_b32", V(VK2), f32(K2))
for r in range(4): D.v("v_mov_b32", V(SS + r), 0)
D.v("v_mov_b32", "v8", MISC); D.v("v_mov_b32", "v9", 1)
def gelu(items):
    for g0 in range(0, len(items), 4):
        grp = items[g0:g0 + 4]
        t = [GT + 4 * ((g0 // 4) & 1) + i for i in range(len(grp))]
        for (x, w, s), r in zip(grp, t): D.v("v_mul_f32", V(r), V(x), V(x))
        for (x, w, s), r in zip(grp, t): D.v("v_fma_f32", V(r), V(r), V(VK2), V(VK1))
        for (x, w, s), r in zip(grp, t): D.v("v_mul_f32", V(r), V(x), V(r))
        for (x, w, s), r in zip(grp, t): D.v("v_exp_f32", V(r), V(r))
        for (x, w, s), r in zip(grp, t): D.v("v_fma_f32", V(r), V(r), V(w), V(w))
        for (x, w, s), r in zip(grp, t): D.v("v_rcp_f32", V(r), V(r))
        for (x, w, s), r in zip(grp, t): D.v("v_fmac_f32", V(s), V(x), V(r))
its = []
for b in range(7):
    for r in range(4):
        for sb in range(4 if b < 6 else 2): its.append((tacc(b, sb) + r, BI + 4 * b + r, SS + sb))
gelu(its)
D.s("s_lshl_b32", "s5", "s14", 9); D.s("s_add_u32", "s9", "s7", "s5"); D.s("s_sub_u32", "s5", "s7", "s5"); D.s("s_add_u32", "s5", "s5", 512)
D.v("v_lshl_add_u32", "v10", "v1", 2, "s9"); D.v("v_lshl_add_u32", "v11", "v1", 2, "s5")
for sb in range(4): D.dsw("ds_write_b32", "v10" if sb < 2 else "v11", V(SS + sb), 256 * (sb & 1))
lds_signal(D, 8, 9, CNT3)
stamp(D, 10)
dump_stamps(D, 10, 11)
D.label("L_end")
D.s("s_endpgm")

lt = ".p2align 6\n.type L_lut,@object\nL_lut:\n"
for c in range(2):
    for l in range(64):
        dm = 800 + 4 * (l & 31)
        g_ = lambda x: dm if x is None else x
        w = [(g_(lut[l][8 * c + 2 * e]) | (g_(lut[l][8 * c + 2 * e + 1]) << 16)) for e in range(4)]
        lt += "  .long " + ", ".join("0x%08x" % x for x in w) + "\n"
for l in range(64): lt += "  .long " + ", ".join("0x%08x" % x for x in fac[l]) + "\n"
lt += ".size L_lut, 3072\nL_lut_end:\n"

DOC = """;
; ---------------------------------------------------------------------------------------------------------
;
;
; ---------------------------------------------------------------------------------------------------------
"""
ctext = C.text()
cut = ctext.index("L_CN:")
pt, xt = CP.text(), CX.text()
pc_, xc_ = pt.index("L_P2u:"), xt.index("L_P2x:")
dt1 = D1.text(); dc_ = dt1.index("L_D1:")
body = dt1[:dc_] + ctext[:cut] + pt[:pc_] + xt[:xc_] + dt1[dc_:] + ctext[cut:] + SL.text() + AS.text() + pt[pc_:] + xt[xc_:] + D.text()
hdr = open("standalone__deep_cross_xdeepfm__recsys.s.ref").read().split("; @launch")[0]
src = hdr + f"; @launch grid=(256,1,1) block=(512,1,1) lds={LDS_TOTAL}\n"
src += DOC
src += f""".amdgcn_target "amdgcn-amd-amdhsa--gfx950"
.text
.globl {NAME}
.p2align 8
.type {NAME},@function
{NAME}:
""" + body + lt + f""".section .rodata,"a"
.p2align 6
.amdhsa_kernel {NAME}
  .amdhsa_next_free_vgpr 256
  .amdhsa_next_free_sgpr 102
  .amdhsa_accum_offset 256
  .amdhsa_group_segment_fixed_size 0
  .amdhsa_kernarg_size 88
  .amdhsa_user_sgpr_count 2
  .amdhsa_user_sgpr_kernarg_segment_ptr 1
  .amdhsa_system_sgpr_workgroup_id_x 1
.end_amdhsa_kernel
"""
open(sys.argv[1], "w").write(src)
for n_, s_ in (("D1", D1), ("C", C), ("CP", CP), ("CX", CX), ("D", D)): print(n_, s_.stats(), "nops", s_.nops)
print("LDS", LDS_TOTAL)
```
